```python
import torch

def _softmax(x, axis=-1):
    return torch.softmax(x, dim=axis)
def _gelu(x):
    return torch.nn.functional.gelu(x, approximate="tanh")
def _silu(x):
    return torch.nn.functional.silu(x)
def _sigmoid(x):
    return torch.sigmoid(x)
def _layernorm(x, axis=-1, eps=1e-5):
    m = x.mean(dim=axis, keepdim=True)
    v = x.var(dim=axis, keepdim=True, unbiased=False)
    return (x - m) / torch.sqrt(v + eps)
def _scatter_add(tgt, idx, src, axis=0):
    return tgt.clone().index_add_(axis, idx, src)
def _segment_sum(src, seg, n):
    out = torch.zeros((n,) + src.shape[1:], dtype=src.dtype)
    return out.index_add_(0, seg, src)
def _pad(x, pw):
    flat = tuple(v for pair in reversed(pw) for v in pair)
    return torch.nn.functional.pad(x, flat)

kernel_name = 'gated_mix__gqa_block_cached__dense_activation_relu__decode'

def setup_inputs():

    _w = (lambda a: (lambda t: t.to(torch.bfloat16) if t.is_floating_point() else t)(torch.as_tensor(a)))
    def _A_setup():
        B, Sq, D = 4, 1, 448
        Hq, Hkv, Sk, Dh = 16, 8, 8192, 256
        assert Hq % Hkv == 0, (Hq, Hkv)
        return {
            "x": _w((lambda *s: torch.randn(*s, dtype=torch.bfloat16) * 0.05)(B, Sq, D)),
            "k_cache": _w((lambda *s: torch.randn(*s, dtype=torch.bfloat16) * 6.4)(B, Hkv, Sk, Dh)),
            "v_cache": _w((lambda *s: torch.randn(*s, dtype=torch.bfloat16) * 1.6)(B, Hkv, Sk, Dh)),
            "wq": _w((lambda *s: torch.randn(*s, dtype=torch.bfloat16) * 6.4)(D, Hq * Dh) * (D ** -0.5)),
            "wo": _w((lambda *s: torch.randn(*s, dtype=torch.bfloat16) * 1.6)(Hq * Dh, D) * ((Hq * Dh) ** -0.5)),
        }
    _A_in = _A_setup()

    def _B_setup():
        B, S, D, Dff = 4, 1, 448, 1792
        return {
            "x": _w((lambda *s: torch.randn(*s, dtype=torch.bfloat16) * 0.05)(B, S, D)),
            "w1": _w((lambda *s: torch.randn(*s, dtype=torch.bfloat16) * 0.05)(D, Dff)),
            "w2": _w((lambda *s: torch.randn(*s, dtype=torch.bfloat16) * 0.05)(Dff, D)),
        }
    _B_in = _B_setup()

    return {
        "A_x": _A_in["x"],
        "A_k_cache": _A_in["k_cache"],
        "A_v_cache": _A_in["v_cache"],
        "A_wq": _A_in["wq"],
        "A_wo": _A_in["wo"],
        "B_x": _B_in["x"],
        "B_w1": _B_in["w1"],
        "B_w2": _B_in["w2"],
        "gate_w": _w((lambda *s: torch.randn(*s, dtype=torch.bfloat16) * 0.05)(448) * 16.0),
    }

def reference(A_x, A_k_cache, A_v_cache, A_wq, A_wo, B_x, B_w1, B_w2, gate_w):
    def _A_ref(x, k_cache, v_cache, wq, wo):
        B, Sq, D = x.shape
        Hq, Dh = 16, 256
        Hkv = k_cache.shape[1]
        rep = Hq // Hkv
        q = (lambda x, *d: x.permute(*d))((x @ wq).reshape(B, Sq, Hq, Dh), 0, 2, 1, 3)
        k = (lambda x, n, axis: torch.repeat_interleave(x, n, dim=axis))(k_cache, rep, axis=1)
        v = (lambda x, n, axis: torch.repeat_interleave(x, n, dim=axis))(v_cache, rep, axis=1)
        scores = torch.einsum("bhqd,bhkd->bhqk", q, k) * (Dh ** -0.5)
        p = _softmax(scores, axis=-1)
        o = torch.einsum("bhqk,bhkd->bhqd", p, v)
        return (lambda x, *d: x.permute(*d))(o, 0, 2, 1, 3).reshape(B, Sq, Hq * Dh) @ wo

    def _B_ref(x, w1, w2):
        h = torch.einsum("bsd,df->bsf", x, w1)
        zero = torch.zeros_like(h)
        h = torch.maximum(h, zero)
        return torch.einsum("bsf,fd->bsd", h, w2)

    x = A_x
    g = _sigmoid((x * gate_w).sum(-1, keepdims=True))
    a = _A_ref(x, A_k_cache, A_v_cache, A_wq, A_wo)
    b = _B_ref(x, B_w1, B_w2)
    return g * a + (1 - g) * b
```

```python
import re

TRANS = ("v_exp_f32", "v_rcp_f32", "v_log_f32", "v_rsq_f32", "v_sqrt_f32")

def regs_of(tok):
    tok = tok.strip()
    neg = tok.lstrip("-")
    m = re.fullmatch(r"(?:abs\()?([vs])(\d+)\)?", neg)
    if m:
        return [(m.group(1), int(m.group(2)))]
    m = re.fullmatch(r"([vs])\[(\d+):(\d+)\]", neg)
    if m:
        return [(m.group(1), i) for i in range(int(m.group(2)), int(m.group(3)) + 1)]
    if neg == "vcc":
        return [("s", 106), ("s", 107)]
    if neg == "exec":
        return [("s", 126), ("s", 127)]
    if neg == "m0":
        return [("s", 124)]
    return []

class Ins:
    __slots__ = ("text", "mn", "kind", "w", "r", "dpp", "trans", "perml", "srcc", "ab", "wide_store", "lds_dma", "ws")

def parse(text):
    t = text.split(";")[0].strip()
    mn, _, rest = t.partition(" ")
    ops = [o.strip() for o in re.split(r",(?![^\[]*\])", rest)] if rest.strip() else []
    mods = ""
    clean = []
    for o in ops:
        parts = o.split()
        if parts:
            clean.append(parts[0])
            mods += " " + " ".join(parts[1:])
    ops = clean
    I = Ins()
    I.text = text; I.mn = mn; I.w = []; I.r = []; I.dpp = ("_dpp" in mn) or ("quad_perm" in mods) or ("row_" in mods)
    I.trans = mn.replace("_e32", "").replace("_e64", "") in TRANS
    I.perml = mn.startswith("v_permlane")
    I.srcc = []; I.ab = []; I.wide_store = False; I.lds_dma = False; I.ws = 1
    R = lambda lst: [x for o in lst for x in regs_of(o)]
    if mn.startswith("v_mfma"):
        I.kind = "mfma"
        I.w = R(ops[:1]); I.ab = R(ops[1:3]); I.srcc = R(ops[3:4]); I.r = I.ab + I.srcc
    elif mn.startswith("v_"):
        I.kind = "valu"
        if I.perml:
            I.w = R(ops[:2]); I.r = R(ops[:2])
        elif mn.startswith("v_cmp"):
            I.w = R(ops[:1]); I.r = R(ops[1:])
        else:
            I.w = R(ops[:1]); I.r = R(ops[1:])
            if mn.startswith("v_fmac") or mn.startswith("v_dot2c") or I.dpp:
                I.r += I.w
            if mn.startswith("v_cndmask") and len(ops) == 3:
                I.r += regs_of("vcc")
    elif mn.startswith("buffer_") or mn.startswith("global_"):
        I.kind = "vmem"
        if "lds" in mods.split() or "_lds_" in mn:
            I.lds_dma = True
            I.r = R(ops) + regs_of("m0")
        elif "load" in mn:
            I.w = R(ops[:1]); I.r = R(ops[1:])
        else:
            I.r = R(ops)
            I.wide_store = ("x4" in mn) or ("x3" in mn)
            I.srcc = R(ops[:1])
    elif mn.startswith("ds_"):
        I.kind = "ds"
        if "read" in mn or "bpermute" in mn or "swizzle" in mn:
            I.w = R(ops[:1]); I.r = R(ops[1:])
        else:
            I.r = R(ops)
    elif mn.startswith("s_"):
        I.kind = "salu"
        if mn == "s_nop":
            I.ws = int(ops[0], 0) + 1
        elif mn.startswith("s_cmp") or mn.startswith("s_cbranch") or mn in ("s_branch", "s_barrier", "s_waitcnt", "s_sleep", "s_setprio", "s_endpgm"):
            I.r = R(ops)
        elif mn.startswith("s_load") or mn.startswith("s_memtime") or mn.startswith("s_memrealtime"):
            I.kind = "smem"
            I.w = R(ops[:1]); I.r = R(ops[1:])
        else:
            I.w = R(ops[:1]); I.r = R(ops[1:])
    else:
        raise ValueError("unknown instr " + text)
    return I

def need(P, X):
    n = 0
    pw = set(P.w); xr = set(X.r); xw = set(X.w)
    pwv = {r for r in pw if r[0] == "v"}; pws = {r for r in pw if r[0] == "s"}
    if P.kind == "valu":
        if X.kind == "mfma" and pwv & xr: n = max(n, 2)
        if X.kind == "valu":
            if (X.dpp or X.perml) and pwv & xr: n = max(n, 2)
            if X.mn.startswith("v_readfirstlane") or X.mn.startswith("v_readlane"):
                if pwv & xr: n = max(n, 1)
                if pws & xr: n = max(n, 4)
            if P.trans and not X.trans and pwv & xr: n = max(n, 1)
            if P.trans and X.trans and pwv & xr: n = max(n, 1)
            if pws & xr: n = max(n, 2)
            if P.mn.startswith("v_cvt_pk") and pwv & (xr | xw): n = max(n, 1)
        if X.kind in ("vmem",) and pws & xr: n = max(n, 5)
        if X.kind in ("ds", "vmem") and P.trans and pwv & xr: n = max(n, 1)
        if X.kind in ("salu", "smem") and pws & xr: n = max(n, 2)
    if P.kind == "mfma":
        if X.kind == "mfma":
            if pwv & set(X.ab): n = max(n, 8)
            if pwv & set(X.srcc) and sorted(P.w) != sorted(X.srcc): n = max(n, 6)
            if pwv & xw and sorted(P.w) != sorted(X.srcc): n = max(n, 8)
        else:
            if pwv & (xr | xw): n = max(n, 8)
            if X.kind == "valu" and set(P.srcc) & xw: n = max(n, 3)
    if P.kind == "salu":
        if ("s", 124) in pw and (X.lds_dma): n = max(n, 1)
    if P.kind == "vmem" and P.wide_store:
        if set(P.srcc) & xw: n = max(n, 2)
    return n

class Emit:
    def __init__(self):
        self.lines = []
        self.hist = []
        self.vm = 0
        self.nins = 0
    def raw(self, s):
        self.lines.append(s)
    def __call__(self, text):
        for t in text.strip().split("\n"):
            t = t.strip()
            if not t or t.startswith(";"):
                if t: self.lines.append("    " + t)
                continue
            self.ins(t)
    def ins(self, t):
        X = parse(t)
        dist = 0
        req = 0
        for P in reversed(self.hist):
            n = need(P, X)
            if n > dist: req = max(req, n - dist)
            dist += P.ws
            if dist >= 12: break
        if req > 0:
            self._nop(req)
        self.lines.append("    " + t)
        self.hist.append(X)
        self.hist = self.hist[-16:]
        self.nins += 1
        if X.kind == "vmem":
            self.vm += 1
            return self.vm
        return None
    def _nop(self, n):
        while n > 0:
            k = min(n, 16)
            t = f"s_nop {k-1}"
            self.lines.append("    " + t)
            self.hist.append(parse(t))
            n -= k
    def flush(self):
        dist = 0; req = 0
        for P in reversed(self.hist):
            n = 0
            if P.kind == "mfma": n = 8
            elif P.kind == "valu":
                n = 5 if any(r[0] == "s" for r in P.w) else 2
            elif P.kind == "vmem" and P.wide_store: n = 2
            elif P.kind == "salu" and ("s", 124) in P.w: n = 1
            if n > dist: req = max(req, n - dist)
            dist += P.ws
            if dist >= 12: break
        if req: self._nop(req)
    def label(self, name):
        self.flush()
        self.lines.append(f"{name}:")
        self.hist = []
    def branch(self, t):
        self.flush()
        self.lines.append("    " + t)
    def wait_vm(self, opid):
        n = self.vm - opid
        assert n >= 0
        assert n <= 63, n
        self.ins(f"s_waitcnt vmcnt({n})")
    def text(self):
        return "\n".join(self.lines) + "\n"
```

```python
import sys, math
sys.path.insert(0, "gen")
from emit import Emit

KNAME = "gated_mix__gqa_block_cached__dense_activation_relu__decode_kernel"

W_OFF = 0
WQ_OFF = 86016
W1_OFF = 100352
MRG_OFF = 129024
P_OFF = 145408
Q_OFF = 151552
COEF_OFF = 152576
FAC_OFF = 152832
TAG_OFF = 152896
G_OFF = 152904
MLW_OFF = 152960
LDS_BYTES = 153088
QBOX = 0x1000
MLBOX = 0x20000
H1BOX = 0x40000
H2BOX = 0x140000
H1ML = 0x20000
WS_BYTES = 0x400000

NS = 6
RING = 64
SPIN = 400000

def slot(n): return RING + 32 * (n % NS)

def gen(cfg):
    E = Emit()
    POL = cfg.get("pol", "nt")
    hdr = open("gated_mix__gqa_block_cached__dense_activation_relu__decode.s.ref").read().split("\n")
    for l in hdr:
        if l.startswith("; @launch"): break
        if l.startswith(";"): E.raw(l)
    E.raw(f"; @launch grid=(256,1,1) block=(512,1,1) lds={LDS_BYTES}")
    E.raw('.amdgcn_target "amdgcn-amd-amdhsa--gfx950"')
    E.raw(".text")
    E.raw(f".globl {KNAME}\n.p2align 8\n.type {KNAME},@function\n{KNAME}:")
    E("s_cmp_ge_u32 s2, 256")
    E.branch("s_cbranch_scc1 L_end")
    E("""
    s_load_dwordx16 s[4:19], s[0:1], 0
    s_load_dwordx8 s[20:27], s[0:1], 64
    v_lshrrev_b32 v1, 6, v0
    v_and_b32 v0, 63, v0
    v_readfirstlane_b32 s52, v1
    s_and_b32 s53, s2, 7
    s_lshr_b32 s54, s2, 6
    s_bfe_u32 s55, s2, 0x30003
    s_lshr_b32 s56, s2, 3
    s_lshl_b32 s57, s54, 3
    s_add_u32 s57, s57, s53
    s_lshl_b32 s58, s53, 3
    s_add_u32 s58, s58, s55
    v_and_b32 v10, 15, v0
    v_lshrrev_b32 v11, 4, v0
    v_lshrrev_b32 v12, 2, v10
    v_and_b32 v13, 3, v10
    v_lshlrev_b32 v1, 9, v12
    v_lshl_add_u32 v1, v11, 6, v1
    v_lshl_add_u32 v1, v13, 4, v1
    v_add_u32 v2, 0x1000, v1
    v_lshlrev_b32 v3, 4, v0
    v_add_u32 v4, 0x1000, v3
    s_lshl_b32 s59, s57, 22
    s_lshl_b32 s60, s55, 19
    s_add_u32 s59, s59, s60
    s_lshl_b32 s60, s52, 13
    s_add_u32 s59, s59, s60
    s_mov_b32 s62, 0x22222222
    s_mov_b32 s63, 0x22222222
    s_mov_b32 s64, 0x44444444
    s_mov_b32 s65, 0x44444444
    s_mov_b32 s66, 0x88888888
    s_mov_b32 s67, 0x88888888
    s_mov_b32 s68, 0x05040100
    s_mov_b32 s69, 0x07060302
    s_mov_b32 s30, 0x8000000
    s_mov_b32 s31, 0x20000
    s_mov_b32 s34, 0x8000000
    s_mov_b32 s35, 0x20000
    """)
    E(f"s_mov_b32 s38, {WS_BYTES}")
    E("""
    s_mov_b32 s39, 0x20000
    s_mov_b32 s43, 0x20000
    s_mov_b32 s47, 0x20000
    s_mov_b32 s51, 0x20000
    s_min_u32 s72, s58, 55
    s_waitcnt lgkmcnt(0)
    s_mov_b32 s28, s6
    s_mov_b32 s29, s7
    s_mov_b32 s32, s8
    s_mov_b32 s33, s9
    s_mov_b32 s36, s26
    s_mov_b32 s37, s27
    s_mov_b32 s44, s4
    s_mov_b32 s45, s5
    s_mov_b32 s46, 3584
    s_mov_b32 s40, s10
    s_mov_b32 s41, s11
    s_mov_b32 s42, 3670016
    s_mov_b32 s48, s20
    s_mov_b32 s49, s21
    s_mov_b32 s50, 896
    """)
    E(f"""
    s_mul_i32 s73, s52, 768
    s_add_u32 s73, s73, {P_OFF}
    v_and_b32 v5, 1, v11
    v_lshlrev_b32 v5, 8, v5
    v_and_b32 v14, 1, v12
    v_lshl_add_u32 v5, v14, 4, v5
    v_lshl_add_u32 v5, v13, 2, v5
    v_lshrrev_b32 v14, 1, v12
    v_lshl_add_u32 v5, v14, 1, v5
    v_add_u32 v5, s73, v5
    v_lshrrev_b32 v6, 3, v10
    v_lshlrev_b32 v6, 8, v6
    v_xor_b32 v14, v12, v11
    v_and_b32 v14, 1, v14
    v_cmp_eq_u32 vcc, 1, v14
    v_mov_b32 v15, 0x200
    v_cndmask_b32 v6, v6, v15, vcc
    v_lshrrev_b32 v14, 1, v11
    v_lshl_add_u32 v6, v14, 4, v6
    v_add_u32 v6, s73, v6
    v_lshl_add_u32 v14, v0, 2, s73
    v_mov_b32 v15, 0
    ds_write_b32 v14, v15 offset:512
    """)
    E("s_cmp_eq_u32 s52, 0")
    E.branch("s_cbranch_scc1 L_w0")
    E("s_cmp_eq_u32 s52, 1")
    E.branch("s_cbranch_scc1 L_w1")

    def issue(n):
        r = slot(n)
        i = n & 7
        E(f"s_add_u32 s61, s59, {i * 65536}")
        last = None
        if n < 8:
            for u in range(4):
                for t in range(2):
                    va = "v1" if u < 2 else "v2"
                    off = (u & 1) * 2048 + t * 256
                    q = r + (u * 2 + t) * 4
                    last = E.ins(f"buffer_load_dwordx4 v[{q}:{q+3}], {va}, s[28:31], s61 offen offset:{off} {POL}")
        else:
            for j in range(8):
                va = "v3" if j < 4 else "v4"
                off = (j & 3) * 1024
                q = r + j * 4
                last = E.ins(f"buffer_load_dwordx4 v[{q}:{q+3}], {va}, s[32:35], s61 offen offset:{off} {POL}")
        return last

    def prologue():
        ids = {}
        for n in range(NS):
            ids[n] = issue(n)
        return ids

    base_vm = E.vm
    ids = prologue()
    E("s_waitcnt lgkmcnt(0)")
    E("s_barrier")
    E.branch("s_branch L_main")
    vm_after_prologue = E.vm

    E.label("L_w0")
    E("s_setprio 3")
    E("s_load_dwordx2 s[70:71], s[26:27], 0")
    E(f"""
    v_lshrrev_b32 v14, 1, v0
    v_lshlrev_b32 v14, 13, v14
    v_and_b32 v15, 1, v0
    v_lshl_add_u32 v14, v15, 4, v14
    s_lshl_b32 s73, s53, 10
    s_lshl_b32 s74, s56, 5
    s_add_u32 s73, s73, s74
    """)
    for i in range(14):
        E(f"s_mov_b32 m0, {WQ_OFF + i * 1024}")
        E(f"s_add_u32 s74, s73, {i * 262144}")
        E(f"buffer_load_dwordx4 v14, s[40:43], s74 offen lds")
    E(f"""
    v_mul_u32_u24 v15, 896, v13
    v_lshl_add_u32 v15, v11, 4, v15
    """)
    for ks in range(14):
        E(f"buffer_load_dwordx4 v[{64+4*ks}:{67+4*ks}], v15, s[44:47], 0 offen offset:{ks*64}")
    E(f"""
    v_lshl_add_u32 v14, v11, 3, v12
    v_lshlrev_b32 v14, 5, v14
    v_lshl_add_u32 v14, v13, 3, v14
    v_add_u32 v14, {WQ_OFF}, v14
    s_waitcnt lgkmcnt(0)
    s_add_u32 s70, s70, 1
    s_addc_u32 s71, s71, 0
    v_mov_b32 v8, s70
    v_mov_b32 v9, s71
    s_waitcnt vmcnt(0)
    """)
    for ks in range(14):
        E(f"ds_read_b64_tr_b16 v[{128+4*ks}:{129+4*ks}], v14 offset:{ks*1024}")
        E(f"ds_read_b64_tr_b16 v[{130+4*ks}:{131+4*ks}], v14 offset:{ks*1024+128}")
        if ks % 7 == 6:
            E("s_waitcnt lgkmcnt(0)")
    for ks in range(14):
        c = "0" if ks == 0 else "v[48:51]"
        E(f"v_mfma_f32_16x16x32_bf16 v[48:51], v[{128+4*ks}:{131+4*ks}], v[{64+4*ks}:{67+4*ks}], {c}")
    E(f"""
    v_lshlrev_b32 v14, 14, v10
    v_lshl_add_u32 v14, v11, 4, v14
    s_lshl_b32 s73, s53, 11
    s_lshl_b32 s74, s56, 6
    s_add_u32 s73, s73, s74
    s_add_u32 s73, s73, {QBOX}
    v_mov_b32 v54, v8
    v_mov_b32 v55, v9
    v_cvt_pk_bf16_f32 v52, v48, v49
    v_cvt_pk_bf16_f32 v53, v50, v51
    s_mov_b32 exec_lo, 0x000f000f
    s_mov_b32 exec_hi, 0x000f000f
    buffer_store_dwordx4 v[52:55], v14, s[36:39], s73 offen sc1
    s_mov_b64 exec, -1
    s_lshl_b32 s73, s57, 11
    s_add_u32 s73, s73, {QBOX}
    s_mov_b32 s80, 0
    """)
    E.label("L_w0_poll")
    E(f"""
    buffer_load_dwordx4 v[56:59], v3, s[36:39], s73 offen sc1
    buffer_load_dwordx4 v[60:63], v3, s[36:39], s73 offen offset:1024 sc1
    s_add_u32 s80, s80, 1
    s_waitcnt vmcnt(0)
    v_cmp_eq_u64 s[76:77], v[58:59], v[8:9]
    v_cmp_eq_u64 s[78:79], v[62:63], v[8:9]
    s_and_b64 s[76:77], s[76:77], s[78:79]
    s_cmp_eq_u64 s[76:77], exec
    """)
    E.branch("s_cbranch_scc1 L_w0_got")
    E(f"s_cmp_lt_u32 s80, {SPIN}")
    E.branch("s_cbranch_scc1 L_w0_poll")
    E.label("L_w0_got")
    E(f"""
    v_lshlrev_b32 v14, 3, v0
    v_add_u32 v14, {Q_OFF}, v14
    ds_write_b64 v14, v[56:57]
    ds_write_b64 v14, v[60:61] offset:512
    v_mov_b32 v15, {TAG_OFF}
    ds_write_b64 v15, v[8:9]
    s_setprio 0
    s_waitcnt lgkmcnt(0)
    s_barrier
    """)
    E.branch("s_branch L_late")

    E.label("L_w1")
    E(f"""
    s_setprio 2
    s_mov_b32 s40, s16
    s_mov_b32 s41, s17
    s_mov_b32 s42, 1605632
    v_lshrrev_b32 v14, 2, v0
    v_mul_u32_u24 v14, 3584, v14
    v_and_b32 v15, 3, v0
    v_lshl_add_u32 v14, v15, 4, v14
    s_lshl_b32 s73, s72, 6
    s_mul_i32 s75, s54, 896
    """)
    for i in range(28):
        E(f"s_mov_b32 m0, {W1_OFF + i * 1024}")
        E(f"s_add_u32 s74, s73, {i * 57344}")
        E(f"buffer_load_dwordx4 v14, s[40:43], s74 offen lds")
    E("v_lshlrev_b32 v15, 4, v11")
    for ks in range(14):
        E(f"buffer_load_dwordx4 v[{64+4*ks}:{67+4*ks}], v15, s[44:47], s75 offen offset:{ks*64}")
    E(f"""
    buffer_load_dwordx4 v[56:59], v3, s[44:47], s75 offen
    buffer_load_dwordx4 v[60:63], v3, s[48:51], 0 offen
    v_lshl_add_u32 v14, v11, 3, v12
    v_lshlrev_b32 v14, 6, v14
    v_lshl_add_u32 v14, v13, 3, v14
    v_add_u32 v14, {W1_OFF}, v14
    s_waitcnt vmcnt(0)
    """)
    cnt = 0
    for ct in range(2):
        for ks in range(14):
            q = 128 + (ct * 14 + ks) * 4
            E(f"ds_read_b64_tr_b16 v[{q}:{q+1}], v14 offset:{ks*2048+ct*32}")
            E(f"ds_read_b64_tr_b16 v[{q+2}:{q+3}], v14 offset:{ks*2048+ct*32+256}")
            cnt += 2
            if cnt % 14 == 0:
                E("s_waitcnt lgkmcnt(0)")
    E("s_mov_b32 s74, 0xffff0000")
    E("v_mov_b32 v16, 0")
    for i in range(4):
        E(f"""
        v_lshlrev_b32 v17, 16, v{56+i}
        v_lshlrev_b32 v18, 16, v{60+i}
        v_fmac_f32 v16, v17, v18
        v_and_b32 v17, s74, v{56+i}
        v_and_b32 v18, s74, v{60+i}
        v_fmac_f32 v16, v17, v18
        """)
    E("""
    v_cmp_gt_u32 vcc, 56, v0
    v_cndmask_b32 v16, 0, v16, vcc
    """)
    for ks in range(14):
        for ct in range(2):
            q = 128 + (ct * 14 + ks) * 4
            d = 48 + ct * 4
            c = "0" if ks == 0 else f"v[{d}:{d+3}]"
            E(f"v_mfma_f32_16x16x32_bf16 v[{d}:{d+3}], v[{q}:{q+3}], v[{64+4*ks}:{67+4*ks}], {c}")
    for r in (8, 4, 2, 1):
        E(f"v_add_f32_dpp v16, v16, v16 row_ror:{r} row_mask:0xf bank_mask:0xf")
    E("""
    v_mov_b32 v17, v16
    v_permlane16_swap_b32 v16, v17
    v_add_f32 v16, v16, v17
    v_mov_b32 v17, v16
    v_permlane32_swap_b32 v16, v17
    v_add_f32 v16, v16, v17
    v_mul_f32 v16, 0xbfb8aa3b, v16
    v_exp_f32 v16, v16
    v_add_f32 v16, 1.0, v16
    v_rcp_f32 v16, v16
    v_sub_f32 v17, 1.0, v16
    s_cmp_lt_u32 s58, 56
    s_cselect_b64 s[76:77], -1, 0
    """)
    E(f"""
    v_mov_b32 v15, {G_OFF}
    ds_write_b32 v15, v16
    """)
    for r in range(8):
        E(f"""
        v_max_f32 v{48+r}, 0, v{48+r}
        v_mul_f32 v{48+r}, v17, v{48+r}
        v_cndmask_b32 v{48+r}, 0, v{48+r}, s[76:77]
        """)
    E(f"""
    v_cvt_pk_bf16_f32 v56, v48, v49
    v_cvt_pk_bf16_f32 v57, v50, v51
    v_cvt_pk_bf16_f32 v58, v52, v53
    v_cvt_pk_bf16_f32 v59, v54, v55
    v_lshlrev_b32 v14, 3, v11
    v_add_u32 v14, {COEF_OFF + 128}, v14
    s_mov_b32 exec_lo, 0x00010001
    s_mov_b32 exec_hi, 0x00010001
    ds_write_b64 v14, v[56:57]
    ds_write_b64 v14, v[58:59] offset:32
    s_mov_b64 exec, -1
    s_setprio 0
    s_waitcnt lgkmcnt(0)
    s_barrier
    """)
    E.label("L_late")
    E.vm = base_vm
    ids2 = prologue()
    assert ids2 == ids and E.vm == vm_after_prologue
    E.branch("s_branch L_main")

    def main(w7):
        ids_ = dict(ids)
        E.vm = vm_after_prologue
        E.label("L_main")
        E(f"""
        v_mov_b32 v15, {TAG_OFF}
        ds_read_b64 v[8:9], v15
        v_bfe_u32 v14, v10, 2, 1
        v_lshlrev_b32 v14, 9, v14
        v_lshl_add_u32 v14, v11, 6, v14
        v_lshl_add_u32 v14, v13, 4, v14
        v_add_u32 v14, {Q_OFF}, v14
        ds_read_b128 v[16:19], v14
        ds_read_b128 v[20:23], v14 offset:256
        s_mov_b32 s40, s12
        s_mov_b32 s41, s13
        s_mov_b32 s42, 3670016
        s_mov_b32 s44, s18
        s_mov_b32 s45, s19
        s_mov_b32 s46, 1605632
        s_mov_b32 s81, 0x3db8aa3b
        s_waitcnt lgkmcnt(0)
        """)
        for n in range(8):
            r = slot(n)
            E.wait_vm(ids_[n])
            for t in range(2):
                for u in range(4):
                    d = 48 + 4 * u
                    q = r + (u * 2 + t) * 4
                    c = "0" if t == 0 else f"v[{d}:{d+3}]"
                    E(f"v_mfma_f32_16x16x32_bf16 v[{d}:{d+3}], v[{16+4*t}:{19+4*t}], v[{q}:{q+3}], {c}")
            ids_[n + NS] = issue(n + NS)
            if n == cfg.get("stage_at", 3):
                E(f"""
                s_mul_i32 s73, s52, 3584
                s_lshl_b32 s74, s53, 9
                s_lshl_b32 s75, s55, 5
                s_add_u32 s74, s74, s75
                s_mul_i32 s74, s74, 896
                s_add_u32 s74, s74, s73
                s_add_u32 s75, s74, {256*896}
                s_mul_i32 s82, s72, {32*896}
                s_add_u32 s82, s82, s73
                s_mov_b32 exec_hi, 0x00ffffff
                """)
                for blk in range(3):
                    E(f"s_add_u32 m0, s73, {W_OFF + blk * 28672}")
                    so = ["s74", "s75", "s82"][blk]
                    srd = "s[40:43]" if blk < 2 else "s[44:47]"
                    for k in range(4):
                        E(f"buffer_load_dwordx4 v3, {srd}, {so} offen offset:{k*896} lds")
                E("s_mov_b32 exec_hi, -1")
            for u in range(4):
                d = 48 + 4 * u
                E(f"v_cndmask_b32 v{32+u}, v{d}, v{d+1}, s[62:63]")
            for u in range(4):
                d = 48 + 4 * u
                E(f"v_cndmask_b32 v{32+u}, v{32+u}, v{d+2}, s[64:65]")
            for u in range(4):
                d = 48 + 4 * u
                E(f"v_cndmask_b32 v{32+u}, v{32+u}, v{d+3}, s[66:67]")
            for u in range(4):
                E(f"v_add_f32_dpp v{32+u}, v{32+u}, v{32+u} quad_perm:[1,0,3,2] row_mask:0xf bank_mask:0xf")
            for u in range(4):
                E(f"v_add_f32_dpp v{32+u}, v{32+u}, v{32+u} quad_perm:[2,3,0,1] row_mask:0xf bank_mask:0xf")
            E(f"""
            v_cndmask_b32 v{24+n}, v32, v33, s[62:63]
            v_cndmask_b32 v{24+n}, v{24+n}, v34, s[64:65]
            v_cndmask_b32 v{24+n}, v{24+n}, v35, s[66:67]
            """)
        E("""
        v_max3_f32 v32, v24, v25, v26
        v_max3_f32 v33, v27, v28, v29
        v_max3_f32 v32, v32, v30, v31
        v_max_f32 v32, v32, v33
        """)
        for r in (8, 4, 2, 1):
            E(f"v_max_f32_dpp v32, v32, v32 row_ror:{r} row_mask:0xf bank_mask:0xf")
        E("v_mul_f32 v36, s81, v32")
        for i in range(8):
            E(f"v_fma_f32 v{24+i}, v{24+i}, s81, -v36")
        for i in range(8):
            E(f"v_exp_f32 v{24+i}, v{24+i}")
        E("""
        v_add_f32 v32, v24, v25
        v_add_f32 v33, v26, v27
        v_add_f32 v34, v28, v29
        v_add_f32 v35, v30, v31
        v_add_f32 v32, v32, v33
        v_add_f32 v34, v34, v35
        v_add_f32 v37, v32, v34
        """)
        for i in range(0, 8, 2):
            E(f"v_cvt_pk_bf16_f32 v{40+i//2}, v{24+i}, v{25+i}")
        for r in (8, 4, 2, 1):
            E(f"v_add_f32_dpp v37, v37, v37 row_ror:{r} row_mask:0xf bank_mask:0xf")
        for i in range(0, 8, 2):
            E(f"ds_write_b16 v5, v{40+i//2} offset:{i*32}")
            E(f"ds_write_b16_d16_hi v5, v{40+i//2} offset:{(i+1)*32}")
        E(f"""
        s_lshl_b32 s73, s52, 3
        s_add_u32 s73, s73, {MLW_OFF}
        v_lshl_add_u32 v14, v0, 2, s73
        s_mov_b32 exec_lo, 0x00010001
        s_mov_b32 exec_hi, 0
        ds_write_b64 v14, v[36:37]
        s_mov_b64 exec, -1
        s_waitcnt lgkmcnt(0)
        ds_read_b128 v[12:15], v6
        """)
        ml_ids = None
        for n in range(8, 16):
            i = n - 8
            r = slot(n)
            pa = 12 if (i % 2 == 0) else 44
            pn = 44 if (i % 2 == 0) else 12
            E.wait_vm(ids_[n])
            E("s_waitcnt lgkmcnt(0)")
            for half in range(2):
                for ii in range(2):
                    sreg = half * 2 + ii
                    for e in range(2):
                        dloc = ii * 2 + e
                        for jp in range(4):
                            tq = 48 + dloc * 4 + jp
                            s1 = r + (2 * jp) * 4 + sreg
                            s0 = r + (2 * jp + 1) * 4 + sreg
                            E(f"v_perm_b32 v{tq}, v{s0}, v{s1}, s{68+e}")
                if half == 1 and n + NS < 16:
                    ids_[n + NS] = issue(n + NS)
                for dloc in range(4):
                    d = half * 4 + dloc
                    a = 16 + 4 * d
                    c = "0" if i == 0 else f"v[{a}:{a+3}]"
                    E(f"v_mfma_f32_16x16x32_bf16 v[{a}:{a+3}], v[12:15], v[{48+dloc*4}:{51+dloc*4}], {c}")
            if i < 7:
                E(f"ds_read_b128 v[12:15], v6 offset:{(i+1)*32}")
        E(f"""
        s_lshl_b32 s73, s52, 11
        s_add_u32 s73, s73, {MRG_OFF}
        v_lshlrev_b32 v14, 5, v0
        v_add_u32 v14, s73, v14
        """)
        for d in range(8):
            E(f"v_mov_b32 v{48+d}, v{16+4*d}")
        E("""
        ds_write_b128 v14, v[48:51]
        ds_write_b128 v14, v[52:55] offset:16
        s_waitcnt vmcnt(0) lgkmcnt(0)
        s_barrier
        """)

    main(False)
    E("s_cmp_eq_u32 s52, 7")
    E.branch("s_cbranch_scc1 L_w7tail")
    E("s_cmp_ge_u32 s52, 4")
    E.branch("s_cbranch_scc1 L_proj")
    E(f"""
    s_lshl_b32 s73, s52, 9
    s_add_u32 s73, s73, {MRG_OFF}
    v_lshl_add_u32 v14, v0, 3, s73
    s_lshr_b32 s74, s52, 1
    s_lshl_b32 s75, s74, 6
    s_add_u32 s75, s75, {MLW_OFF}
    v_mov_b32 v15, s75
    ds_read_b128 v[64:67], v15
    ds_read_b128 v[68:71], v15 offset:16
    ds_read_b128 v[72:75], v15 offset:32
    ds_read_b128 v[76:79], v15 offset:48
    """)
    for w in range(8):
        E(f"ds_read_b64 v[{24+2*w}:{25+2*w}], v14 offset:{w*2048}")
    E(f"""
    s_and_b32 s75, s52, 1
    s_lshl_b32 s75, s75, 14
    v_lshlrev_b32 v14, 12, v11
    v_lshl_add_u32 v14, v10, 4, v14
    s_lshl_b32 s73, s57, 15
    s_add_u32 s73, s73, s75
    s_lshl_b32 s75, s55, 9
    s_add_u32 s73, s73, s75
    s_lshl_b32 s75, s74, 8
    s_add_u32 s73, s73, s75
    s_add_u32 s73, s73, {H1BOX}
    v_mov_b32 v42, v8
    v_mov_b32 v43, v9
    v_mov_b32 v46, v8
    v_mov_b32 v47, v9
    s_lshl_b32 s82, s57, 11
    s_lshl_b32 s75, s55, 5
    s_add_u32 s82, s82, s75
    s_lshl_b32 s75, s74, 4
    s_add_u32 s82, s82, s75
    s_add_u32 s82, s82, {H1ML}
    v_lshlrev_b32 v15, 8, v0
    s_waitcnt lgkmcnt(8)
    v_max3_f32 v44, v64, v66, v68
    v_max3_f32 v45, v70, v72, v74
    v_max3_f32 v44, v44, v76, v78
    v_max_f32 v44, v44, v45
    """)
    for w in range(8):
        E(f"v_sub_f32 v{16+w}, v{64+2*w}, v44")
    for w in range(8):
        E(f"v_exp_f32 v{16+w}, v{16+w}")
    E("""
    s_waitcnt lgkmcnt(0)
    v_mul_f32 v40, v16, v24
    v_mul_f32 v41, v16, v25
    v_mul_f32 v45, v16, v65
    """)
    for w in range(1, 8):
        E(f"v_fmac_f32 v40, v{16+w}, v{24+2*w}")
        E(f"v_fmac_f32 v41, v{16+w}, v{25+2*w}")
        E(f"v_fmac_f32 v45, v{16+w}, v{65+2*w}")
    E("buffer_store_dwordx4 v[40:43], v14, s[36:39], s73 offen sc1")
    E("""
    s_mov_b64 exec, 0xff
    buffer_store_dwordx4 v[44:47], v15, s[36:39], s82 offen sc1
    s_mov_b64 exec, -1
    """)
    E.label("L_proj")
    E(f"""
    v_lshrrev_b32 v12, 2, v10
    v_and_b32 v13, 3, v10
    v_lshl_add_u32 v14, v11, 3, v12
    v_mul_u32_u24 v14, 896, v14
    v_lshl_add_u32 v14, v13, 3, v14
    s_lshl_b32 s73, s52, 7
    v_add_u32 v14, s73, v14
    v_lshlrev_b32 v15, 4, v11
    v_add_u32 v15, {COEF_OFF}, v15
    ds_read_b128 v[120:123], v15 offset:128
    """)
    cnt = 1
    for ks in (2, 0, 1):
        for ct in range(4):
            q = 64 + (ks * 4 + ct) * 4
            E(f"ds_read_b64_tr_b16 v[{q}:{q+1}], v14 offset:{ks*28672+ct*32}")
            E(f"ds_read_b64_tr_b16 v[{q+2}:{q+3}], v14 offset:{ks*28672+ct*32+3584}")
        E("s_waitcnt lgkmcnt(0)")
    for ct in range(4):
        q = 64 + (2 * 4 + ct) * 4
        E(f"v_mfma_f32_16x16x32_bf16 v[{128+4*ct}:{131+4*ct}], v[{q}:{q+3}], v[120:123], 0")
    E(f"""
    v_lshrrev_b32 v12, 1, v11
    v_lshlrev_b32 v12, 12, v12
    v_and_b32 v13, 1, v11
    v_lshl_add_u32 v12, v13, 5, v12
    v_lshl_add_u32 v12, v10, 4, v12
    s_mul_i32 s73, s54, {56*4096}
    s_lshl_b32 s74, s58, 6
    s_add_u32 s73, s73, s74
    s_lshl_b32 s74, s52, 15
    s_add_u32 s73, s73, s74
    s_add_u32 s73, s73, {H2BOX}
    s_mov_b32 s76, 0x00020002
    s_mov_b32 s77, 0x00020002
    """)
    for ct in range(4):
        E(f"v_mov_b32 v{146+4*ct}, v8")
        E(f"v_mov_b32 v{147+4*ct}, v9")
    E("s_barrier")
    E("""
    ds_read_b128 v[112:115], v15
    ds_read_b128 v[116:119], v15 offset:64
    s_waitcnt lgkmcnt(0)
    """)
    for ks in range(2):
        for ct in range(4):
            q = 64 + (ks * 4 + ct) * 4
            E(f"v_mfma_f32_16x16x32_bf16 v[{128+4*ct}:{131+4*ct}], v[{q}:{q+3}], v[{112+4*ks}:{115+4*ks}], v[{128+4*ct}:{131+4*ct}]")
    for ct in range(4):
        E(f"v_cndmask_b32 v{144+4*ct}, v{128+4*ct}, v{130+4*ct}, s[76:77]")
        E(f"v_cndmask_b32 v{145+4*ct}, v{129+4*ct}, v{131+4*ct}, s[76:77]")
    E("""
    s_mov_b32 exec_lo, 0x00030003
    s_mov_b32 exec_hi, 0x00030003
    """)
    for ct in range(4):
        E(f"s_add_u32 s74, s73, {ct*8192}")
        E(f"buffer_store_dwordx4 v[{144+4*ct}:{147+4*ct}], v12, s[36:39], s74 offen sc1")
    E.branch("s_branch L_end")

    E.label("L_w7tail")
    E(f"""
    s_lshl_b32 s73, s57, 3
    s_add_u32 s73, s73, s55
    s_lshl_b32 s82, s73, 8
    s_add_u32 s82, s82, {H1ML}
    s_lshl_b32 s73, s73, 12
    s_add_u32 s73, s73, {H1BOX}
    v_mov_b32 v15, {G_OFF}
    ds_read_b32 v40, v15
    v_and_b32 v14, 31, v0
    v_lshlrev_b32 v14, 2, v14
    v_add_u32 v14, {COEF_OFF}, v14
    v_lshlrev_b32 v13, 4, v11
    s_mov_b32 s80, 0
    """)
    E.label("L_h1")
    for i in range(4):
        E(f"buffer_load_dwordx4 v[{80+4*i}:{83+4*i}], v13, s[36:39], s82 offen offset:{i*64} sc1")
    for i in range(4):
        E(f"buffer_load_dwordx4 v[{64+4*i}:{67+4*i}], v3, s[36:39], s73 offen offset:{i*1024} sc1")
    E("s_add_u32 s80, s80, 1")
    E("s_waitcnt vmcnt(0)")
    E("v_cmp_eq_u64 s[76:77], v[66:67], v[8:9]")
    for i in range(1, 8):
        E(f"v_cmp_eq_u64 s[78:79], v[{66+4*i}:{67+4*i}], v[8:9]")
        E("s_and_b64 s[76:77], s[76:77], s[78:79]")
    E("s_cmp_eq_u64 s[76:77], exec")
    E.branch("s_cbranch_scc1 L_h1_got")
    E(f"s_cmp_lt_u32 s80, {SPIN}")
    E.branch("s_cbranch_scc1 L_h1")
    E.label("L_h1_got")
    E(f"""
    v_max3_f32 v96, v80, v84, v88
    v_max_f32 v96, v96, v92
    v_mov_b32 v97, v96
    v_permlane32_swap_b32 v96, v97
    v_max_f32 v96, v96, v97
    v_sub_f32 v80, v80, v96
    v_sub_f32 v84, v84, v96
    v_sub_f32 v88, v88, v96
    v_sub_f32 v92, v92, v96
    v_exp_f32 v80, v80
    v_exp_f32 v84, v84
    v_exp_f32 v88, v88
    v_exp_f32 v92, v92
    v_mul_f32 v98, v80, v81
    v_mul_f32 v64, v80, v64
    v_mul_f32 v65, v80, v65
    v_fmac_f32 v98, v84, v85
    v_fmac_f32 v64, v84, v68
    v_fmac_f32 v65, v84, v69
    v_fmac_f32 v98, v88, v89
    v_fmac_f32 v64, v88, v72
    v_fmac_f32 v65, v88, v73
    v_fmac_f32 v98, v92, v93
    v_fmac_f32 v64, v92, v76
    v_fmac_f32 v65, v92, v77
    v_mov_b32 v99, v98
    v_mov_b32 v66, v64
    v_mov_b32 v67, v65
    v_permlane32_swap_b32 v98, v99
    v_permlane32_swap_b32 v64, v66
    v_permlane32_swap_b32 v65, v67
    v_add_f32 v98, v98, v99
    v_add_f32 v64, v64, v66
    v_add_f32 v65, v65, v67
    v_rcp_f32 v98, v98
    s_waitcnt lgkmcnt(0)
    v_mul_f32 v98, v40, v98
    v_mul_f32 v64, v98, v64
    v_mul_f32 v65, v98, v65
    v_cvt_pk_bf16_f32 v64, v64, v65
    ds_write_b32 v14, v64
    s_waitcnt lgkmcnt(0)
    s_barrier
    s_cmp_ge_u32 s58, 56
    """)
    E.branch("s_cbranch_scc1 L_end")
    E(f"""
    s_mul_i32 s73, s54, 56
    s_add_u32 s73, s73, s58
    s_lshl_b32 s73, s73, 12
    s_add_u32 s73, s73, {H2BOX}
    s_mov_b32 s48, s22
    s_mov_b32 s49, s23
    s_mov_b32 s50, 3584
    s_mul_i32 s74, s54, 896
    s_lshl_b32 s75, s58, 4
    s_add_u32 s74, s74, s75
    v_lshlrev_b32 v14, 2, v0
    s_mov_b32 s80, 0
    """)
    def poll4(lbl, sreg):
        E.label(lbl)
        for i in range(4):
            E(f"buffer_load_dwordx4 v[{64+4*i}:{67+4*i}], v3, s[36:39], {sreg} offen offset:{i*1024} sc1")
        E(f"""
        s_add_u32 s80, s80, 1
        s_waitcnt vmcnt(0)
        v_cmp_eq_u64 s[76:77], v[66:67], v[8:9]
        v_cmp_eq_u64 s[78:79], v[70:71], v[8:9]
        v_cmp_eq_u64 s[84:85], v[74:75], v[8:9]
        v_cmp_eq_u64 s[86:87], v[78:79], v[8:9]
        s_and_b64 s[76:77], s[76:77], s[78:79]
        s_and_b64 s[84:85], s[84:85], s[86:87]
        s_and_b64 s[76:77], s[76:77], s[84:85]
        s_cmp_eq_u64 s[76:77], exec
        """)
        E.branch(f"s_cbranch_scc1 {lbl}_got")
        E(f"s_cmp_lt_u32 s80, {SPIN}")
        E.branch(f"s_cbranch_scc1 {lbl}")
        E.label(lbl + "_got")
        E("""
        v_add_f32 v64, v64, v68
        v_add_f32 v65, v65, v69
        v_add_f32 v72, v72, v76
        v_add_f32 v73, v73, v77
        v_add_f32 v64, v64, v72
        v_add_f32 v65, v65, v73
        """)
    poll4("L_h2", "s73")
    for rr in (4, 8):
        E(f"v_add_f32_dpp v64, v64, v64 row_ror:{rr} row_mask:0xf bank_mask:0xf")
        E(f"v_add_f32_dpp v65, v65, v65 row_ror:{rr} row_mask:0xf bank_mask:0xf")
    E(f"""
    v_mov_b32 v66, v64
    v_mov_b32 v67, v65
    v_permlane16_swap_b32 v64, v66
    v_permlane16_swap_b32 v65, v67
    v_add_f32 v64, v64, v66
    v_add_f32 v65, v65, v67
    v_mov_b32 v66, v64
    v_mov_b32 v67, v65
    v_permlane32_swap_b32 v64, v66
    v_permlane32_swap_b32 v65, v67
    v_add_f32 v64, v64, v66
    v_add_f32 v65, v65, v67
    v_cvt_pk_bf16_f32 v64, v64, v65
    s_mov_b64 exec, 15
    buffer_store_dword v64, v14, s[48:51], s74 offen
    s_cmp_lg_u32 s2, 0
    """)
    E.branch("s_cbranch_scc1 L_end")
    E("""
    s_mov_b64 exec, 1
    buffer_store_dwordx2 v[8:9], v14, s[36:39], 0 offen sc1
    """)
    E.label("L_end")
    E.raw("    s_endpgm")
    E.raw(f""".section .rodata,"a"
.p2align 6
.amdhsa_kernel {KNAME}
  .amdhsa_next_free_vgpr 256
  .amdhsa_next_free_sgpr 96
  .amdhsa_accum_offset 256
  .amdhsa_group_segment_fixed_size 0
  .amdhsa_kernarg_size 96
  .amdhsa_user_sgpr_count 2
  .amdhsa_user_sgpr_kernarg_segment_ptr 1
  .amdhsa_system_sgpr_workgroup_id_x 1
.end_amdhsa_kernel""")
    return E.text()

if __name__ == "__main__":
    out = sys.argv[1] if len(sys.argv) > 1 else "k1.s"
    cfg = {}
    for a in sys.argv[2:]:
        k, v = a.split("=")
        cfg[k] = int(v) if v.lstrip("-").isdigit() else v
    open(out, "w").write(gen(cfg))
```

```python
import sys, math
sys.path.insert(0, "gen")
from emit import Emit

KNAME = "gated_mix__gqa_block_cached__dense_activation_relu__decode_kernel"

W_OFF = 0
WQ_OFF = 86016
W1_OFF = 100352
MRG_OFF = 129024
P_OFF = 145408
Q_OFF = 151552
COEF_OFF = 152576
FAC_OFF = 152832
TAG_OFF = 152896
G_OFF = 152904
MLW_OFF = 152960
FLAG_OFF = 153088
XS_OFF = 153152
LDS_BYTES = 154112
QBOX = 0x1000
MLBOX = 0x20000
H1BOX = 0x40000
H2BOX = 0x140000
H1ML = 0x20000
WS_BYTES = 0x400000

NS = 6
RING = 64
SPIN = 400000

def slot(n): return RING + 32 * (n % NS)

def gen(cfg):
    E = Emit()
    POL = cfg.get("pol", "nt")
    PROF = cfg.get("prof", 0)
    def stamp(k):
        if PROF:
            E(f"""
            s_memrealtime s[98:99]
            s_waitcnt lgkmcnt(0)
            v_writelane_b32 v7, s98, {k}
            """)
    hdr = open("gated_mix__gqa_block_cached__dense_activation_relu__decode.s.ref").read().split("\n")
    for l in hdr:
        if l.startswith("; @launch"): break
        if l.startswith(";"): E.raw(l)
    E.raw(f"; @launch grid=(256,1,1) block=(512,1,1) lds={LDS_BYTES}")
    E.raw('.amdgcn_target "amdgcn-amd-amdhsa--gfx950"')
    E.raw(".text")
    E.raw(f".globl {KNAME}\n.p2align 8\n.type {KNAME},@function\n{KNAME}:")
    E("s_cmp_ge_u32 s2, 256")
    E.branch("s_cbranch_scc1 L_exit")
    if PROF:
        E("v_mov_b32 v7, 0")
    stamp(0)
    E("""
    s_load_dwordx16 s[4:19], s[0:1], 0
    s_load_dwordx8 s[20:27], s[0:1], 64
    v_lshrrev_b32 v1, 6, v0
    v_and_b32 v0, 63, v0
    v_readfirstlane_b32 s52, v1
    s_and_b32 s53, s2, 7
    s_lshr_b32 s54, s2, 6
    s_bfe_u32 s55, s2, 0x30003
    s_lshr_b32 s56, s2, 3
    s_lshl_b32 s57, s54, 3
    s_add_u32 s57, s57, s53
    s_lshl_b32 s58, s53, 3
    s_add_u32 s58, s58, s55
    v_and_b32 v10, 15, v0
    v_lshrrev_b32 v11, 4, v0
    v_lshrrev_b32 v12, 2, v10
    v_and_b32 v13, 3, v10
    v_lshlrev_b32 v1, 9, v12
    v_lshl_add_u32 v1, v11, 6, v1
    v_lshl_add_u32 v1, v13, 4, v1
    v_add_u32 v2, 0x1000, v1
    v_lshlrev_b32 v3, 4, v0
    v_add_u32 v4, 0x1000, v3
    s_lshl_b32 s59, s57, 22
    s_lshl_b32 s60, s55, 19
    s_add_u32 s59, s59, s60
    s_lshl_b32 s60, s52, 13
    s_add_u32 s59, s59, s60
    s_mov_b32 s62, 0x22222222
    s_mov_b32 s63, 0x22222222
    s_mov_b32 s64, 0x44444444
    s_mov_b32 s65, 0x44444444
    s_mov_b32 s66, 0x88888888
    s_mov_b32 s67, 0x88888888
    s_mov_b32 s68, 0x05040100
    s_mov_b32 s69, 0x07060302
    s_mov_b32 s30, 0x8000000
    s_mov_b32 s31, 0x20000
    s_mov_b32 s34, 0x8000000
    s_mov_b32 s35, 0x20000
    """)
    E(f"s_mov_b32 s38, {WS_BYTES}")
    E("""
    s_mov_b32 s39, 0x20000
    s_mov_b32 s43, 0x20000
    s_mov_b32 s47, 0x20000
    s_mov_b32 s51, 0x20000
    s_min_u32 s72, s58, 55
    s_waitcnt lgkmcnt(0)
    s_mov_b32 s28, s6
    s_mov_b32 s29, s7
    s_mov_b32 s32, s8
    s_mov_b32 s33, s9
    s_mov_b32 s36, s26
    s_mov_b32 s37, s27
    s_mov_b32 s44, s4
    s_mov_b32 s45, s5
    s_mov_b32 s46, 3584
    s_mov_b32 s40, s10
    s_mov_b32 s41, s11
    s_mov_b32 s42, 3670016
    s_mov_b32 s48, s20
    s_mov_b32 s49, s21
    s_mov_b32 s50, 896
    """)
    E(f"""
    s_mul_i32 s73, s52, 768
    s_add_u32 s73, s73, {P_OFF}
    v_and_b32 v5, 1, v11
    v_lshlrev_b32 v5, 8, v5
    v_and_b32 v14, 1, v12
    v_lshl_add_u32 v5, v14, 4, v5
    v_lshl_add_u32 v5, v13, 2, v5
    v_lshrrev_b32 v14, 1, v12
    v_lshl_add_u32 v5, v14, 1, v5
    v_add_u32 v5, s73, v5
    v_lshrrev_b32 v6, 3, v10
    v_lshlrev_b32 v6, 8, v6
    v_xor_b32 v14, v12, v11
    v_and_b32 v14, 1, v14
    v_cmp_eq_u32 vcc, 1, v14
    v_mov_b32 v15, 0x200
    v_cndmask_b32 v6, v6, v15, vcc
    v_lshrrev_b32 v14, 1, v11
    v_lshl_add_u32 v6, v14, 4, v6
    v_add_u32 v6, s73, v6
    v_lshl_add_u32 v14, v0, 2, s73
    v_mov_b32 v15, 0
    ds_write_b32 v14, v15 offset:512
    """)
    E(f"""
    v_mov_b32 v14, {FLAG_OFF}
    ds_write_b32 v14, v15
    """)
    if not cfg.get("nos0", 0):
        E("s_cmp_eq_u32 s52, 0")
        E.branch("s_cbranch_scc1 L_w0")

    def issue(n):
        r = slot(n)
        i = n & 7
        E(f"s_add_u32 s61, s59, {i * 65536}")
        last = None
        if n < 8:
            for u in range(4):
                for t in range(2):
                    va = "v1" if u < 2 else "v2"
                    off = (u & 1) * 2048 + t * 256
                    q = r + (u * 2 + t) * 4
                    if cfg.get("klin", 0):
                        j = u * 2 + t
                        va = "v3" if j < 4 else "v4"
                        off = (j & 3) * 1024
                    last = E.ins(f"buffer_load_dwordx4 v[{q}:{q+3}], {va}, s[28:31], s61 offen offset:{off} {POL}")
        else:
            for j in range(8):
                va = "v3" if j < 4 else "v4"
                off = (j & 3) * 1024
                q = r + j * 4
                last = E.ins(f"buffer_load_dwordx4 v[{q}:{q+3}], {va}, s[32:35], s61 offen offset:{off} {POL}")
        return last

    def prologue(pace=0, bar=False):
        ids = {}
        for n in range(NS):
            if pace and n >= pace:
                E.wait_vm(ids[n - pace])
            ids[n] = issue(n)
            if bar and n == 0:
                E("s_waitcnt lgkmcnt(0)")
                E("s_barrier")
        return ids

    SP = cfg.get("spol", "nt")
    E("s_cmp_lg_u32 s52, 1" if not cfg.get("nos0", 0) else "s_cmp_lg_u32 s52, 100")
    E.branch("s_cbranch_scc1 L_pro")
    E(f"""
    s_mov_b32 s40, s16
    s_mov_b32 s41, s17
    s_mov_b32 s42, 1605632
    v_lshrrev_b32 v14, 2, v0
    v_mul_u32_u24 v14, 3584, v14
    v_and_b32 v15, 3, v0
    v_lshl_add_u32 v14, v15, 4, v14
    s_lshl_b32 s73, s72, 6
    s_mul_i32 s75, s54, 896
    buffer_load_dwordx4 v[56:59], v3, s[44:47], s75 offen {SP}
    buffer_load_dwordx4 v[60:63], v3, s[48:51], 0 offen {SP}
    s_mov_b32 m0, {XS_OFF}
    s_mov_b32 exec_hi, 0x00ffffff
    buffer_load_dwordx4 v3, s[44:47], s75 offen {SP} lds
    s_mov_b32 exec_hi, -1
    """)
    for i in range(28):
        E(f"s_mov_b32 m0, {W1_OFF + i * 1024}")
        E(f"s_add_u32 s74, s73, {i * 57344}")
        E(f"buffer_load_dwordx4 v14, s[40:43], s74 offen {SP} lds")
    E.label("L_pro")
    if cfg.get("dprio", 0): E("s_setprio 3")
    base_vm = E.vm
    ids = prologue(cfg.get('pace', 0), bar=True)
    vm_after_prologue = E.vm
    stamp(1)
    E("s_cmp_eq_u32 s52, 1" if not cfg.get("nos0", 0) else "s_cmp_eq_u32 s52, 100")
    E.branch("s_cbranch_scc1 L_w1")
    E.label("L_flag")
    if cfg.get("noflag", 0): E.branch("s_branch L_main")
    E(f"v_mov_b32 v14, {FLAG_OFF}")
    E.label("L_flag_loop")
    E("""
    ds_read_b32 v15, v14
    s_waitcnt lgkmcnt(0)
    v_readfirstlane_b32 s73, v15
    s_cmp_lg_u32 s73, 0
    """)
    E.branch("s_cbranch_scc1 L_main")
    E("s_sleep 2")
    E.branch("s_branch L_flag_loop")

    E.label("L_w0")
    E("s_setprio 3")
    E("s_load_dwordx2 s[70:71], s[26:27], 0")
    E(f"""
    v_lshrrev_b32 v14, 1, v0
    v_lshlrev_b32 v14, 13, v14
    v_and_b32 v15, 1, v0
    v_lshl_add_u32 v14, v15, 4, v14
    s_lshl_b32 s73, s53, 10
    s_lshl_b32 s74, s56, 5
    s_add_u32 s73, s73, s74
    """)
    for i in range(14):
        E(f"s_mov_b32 m0, {WQ_OFF + i * 1024}")
        E(f"s_add_u32 s74, s73, {i * 262144}")
        E(f"buffer_load_dwordx4 v14, s[40:43], s74 offen {SP} lds")
    E(f"""
    v_mul_u32_u24 v15, 896, v13
    v_lshl_add_u32 v15, v11, 4, v15
    """)
    for ks in range(14):
        E(f"buffer_load_dwordx4 v[{64+4*ks}:{67+4*ks}], v15, s[44:47], 0 offen offset:{ks*64} {SP}")
    E(f"""
    v_lshl_add_u32 v14, v11, 3, v12
    v_lshlrev_b32 v14, 5, v14
    v_lshl_add_u32 v14, v13, 3, v14
    v_add_u32 v14, {WQ_OFF}, v14
    s_waitcnt lgkmcnt(0)
    s_barrier
    s_add_u32 s70, s70, 1
    s_addc_u32 s71, s71, 0
    v_mov_b32 v8, s70
    v_mov_b32 v9, s71
    s_waitcnt vmcnt(0)
    """)
    stamp(1)
    for ks in range(14):
        E(f"ds_read_b64_tr_b16 v[{128+4*ks}:{129+4*ks}], v14 offset:{ks*1024}")
        E(f"ds_read_b64_tr_b16 v[{130+4*ks}:{131+4*ks}], v14 offset:{ks*1024+128}")
        if ks % 7 == 6:
            E("s_waitcnt lgkmcnt(0)")
    for ks in range(14):
        c = "0" if ks == 0 else "v[48:51]"
        E(f"v_mfma_f32_16x16x32_bf16 v[48:51], v[{128+4*ks}:{131+4*ks}], v[{64+4*ks}:{67+4*ks}], {c}")
    E(f"""
    v_lshlrev_b32 v14, 14, v10
    v_lshl_add_u32 v14, v11, 4, v14
    s_lshl_b32 s73, s53, 11
    s_lshl_b32 s74, s56, 6
    s_add_u32 s73, s73, s74
    s_add_u32 s73, s73, {QBOX}
    v_mov_b32 v54, v8
    v_mov_b32 v55, v9
    v_cvt_pk_bf16_f32 v52, v48, v49
    v_cvt_pk_bf16_f32 v53, v50, v51
    s_mov_b32 exec_lo, 0x000f000f
    s_mov_b32 exec_hi, 0x000f000f
    buffer_store_dwordx4 v[52:55], v14, s[36:39], s73 offen sc1
    s_mov_b64 exec, -1
    s_lshl_b32 s73, s57, 11
    s_add_u32 s73, s73, {QBOX}
    s_mov_b32 s80, 0
    """)
    stamp(2)
    E.label("L_w0_poll")
    E(f"""
    buffer_load_dwordx4 v[56:59], v3, s[36:39], s73 offen sc1
    buffer_load_dwordx4 v[60:63], v3, s[36:39], s73 offen offset:1024 sc1
    s_add_u32 s80, s80, 1
    s_waitcnt vmcnt(0)
    v_cmp_eq_u64 s[76:77], v[58:59], v[8:9]
    v_cmp_eq_u64 s[78:79], v[62:63], v[8:9]
    s_and_b64 s[76:77], s[76:77], s[78:79]
    s_cmp_eq_u64 s[76:77], exec
    """)
    E.branch("s_cbranch_scc1 L_w0_got")
    E(f"s_cmp_lt_u32 s80, {SPIN}")
    E.branch("s_cbranch_scc1 L_w0_poll")
    E.label("L_w0_got")
    stamp(11)
    if PROF:
        E("v_writelane_b32 v7, s80, 12")
    E(f"""
    v_lshlrev_b32 v14, 3, v0
    v_add_u32 v14, {Q_OFF}, v14
    ds_write_b64 v14, v[56:57]
    ds_write_b64 v14, v[60:61] offset:512
    v_mov_b32 v15, {TAG_OFF}
    ds_write_b64 v15, v[8:9]
    v_mov_b32 v15, {FLAG_OFF}
    v_mov_b32 v14, 1
    s_waitcnt lgkmcnt(0)
    ds_write_b32 v15, v14
    """)
    if not cfg.get("dprio", 0): E("s_setprio 0")
    E.vm = base_vm
    ids2 = prologue()
    assert ids2 == ids and E.vm == vm_after_prologue
    E.branch("s_branch L_main")

    E.label("L_w1")
    E(f"""
    v_lshl_add_u32 v14, v11, 3, v12
    v_lshlrev_b32 v14, 6, v14
    v_lshl_add_u32 v14, v13, 3, v14
    v_add_u32 v14, {W1_OFF}, v14
    v_lshlrev_b32 v15, 4, v11
    v_add_u32 v15, {XS_OFF}, v15
    s_waitcnt vmcnt({8*NS})
    """)
    def ffn_rd(ks):
        xb = 16 + 4 * (ks & 1)
        tb = 24 + 8 * (ks & 1)
        E(f"ds_read_b128 v[{xb}:{xb+3}], v15 offset:{ks*64}")
        for ct in range(2):
            q = tb + 4 * ct
            E(f"ds_read_b64_tr_b16 v[{q}:{q+1}], v14 offset:{ks*2048+ct*32}")
            E(f"ds_read_b64_tr_b16 v[{q+2}:{q+3}], v14 offset:{ks*2048+ct*32+256}")
    ffn_rd(0)
    E("s_mov_b32 s74, 0xffff0000")
    E("v_mov_b32 v40, 0")
    for i in range(4):
        E(f"""
        v_lshlrev_b32 v41, 16, v{56+i}
        v_lshlrev_b32 v42, 16, v{60+i}
        v_fmac_f32 v40, v41, v42
        v_and_b32 v41, s74, v{56+i}
        v_and_b32 v42, s74, v{60+i}
        v_fmac_f32 v40, v41, v42
        """)
    E("""
    v_cmp_gt_u32 vcc, 56, v0
    v_cndmask_b32 v40, 0, v40, vcc
    """)
    for ks in range(14):
        if ks + 1 < 14:
            ffn_rd(ks + 1)
            E("s_waitcnt lgkmcnt(5)")
        else:
            E("s_waitcnt lgkmcnt(0)")
        xb = 16 + 4 * (ks & 1)
        tb = 24 + 8 * (ks & 1)
        for ct in range(2):
            d = 48 + ct * 4
            c = "0" if ks == 0 else f"v[{d}:{d+3}]"
            E(f"v_mfma_f32_16x16x32_bf16 v[{d}:{d+3}], v[{tb+4*ct}:{tb+4*ct+3}], v[{xb}:{xb+3}], {c}")
    for r in (8, 4, 2, 1):
        E(f"v_add_f32_dpp v40, v40, v40 row_ror:{r} row_mask:0xf bank_mask:0xf")
    E("""
    v_mov_b32 v41, v40
    v_permlane16_swap_b32 v40, v41
    v_add_f32 v40, v40, v41
    v_mov_b32 v41, v40
    v_permlane32_swap_b32 v40, v41
    v_add_f32 v40, v40, v41
    v_mul_f32 v40, 0xbfb8aa3b, v40
    v_exp_f32 v40, v40
    v_add_f32 v40, 1.0, v40
    v_rcp_f32 v40, v40
    v_sub_f32 v41, 1.0, v40
    s_cmp_lt_u32 s58, 56
    s_cselect_b64 s[76:77], -1, 0
    """)
    E(f"""
    v_mov_b32 v15, {G_OFF}
    ds_write_b32 v15, v40
    """)
    for r in range(8):
        E(f"""
        v_max_f32 v{48+r}, 0, v{48+r}
        v_mul_f32 v{48+r}, v41, v{48+r}
        v_cndmask_b32 v{48+r}, 0, v{48+r}, s[76:77]
        """)
    E(f"""
    v_cvt_pk_bf16_f32 v56, v48, v49
    v_cvt_pk_bf16_f32 v57, v50, v51
    v_cvt_pk_bf16_f32 v58, v52, v53
    v_cvt_pk_bf16_f32 v59, v54, v55
    v_lshlrev_b32 v14, 3, v11
    v_add_u32 v14, {COEF_OFF + 128}, v14
    s_mov_b32 exec_lo, 0x00010001
    s_mov_b32 exec_hi, 0x00010001
    ds_write_b64 v14, v[56:57]
    ds_write_b64 v14, v[58:59] offset:32
    s_mov_b64 exec, -1
    """)
    stamp(2)
    E.branch("s_branch L_flag")

    LA = cfg.get("la", NS)
    def sched(n):
        if n < LA: k = NS + n
        elif n < NS: return None
        else: k = n + LA
        return k if k < 16 else None
    def main(w7):
        ids_ = dict(ids)
        E.vm = vm_after_prologue
        E.label("L_main")
        stamp(3)
        E(f"""
        v_mov_b32 v15, {TAG_OFF}
        ds_read_b64 v[8:9], v15
        v_bfe_u32 v14, v10, 2, 1
        v_lshlrev_b32 v14, 9, v14
        v_lshl_add_u32 v14, v11, 6, v14
        v_lshl_add_u32 v14, v13, 4, v14
        v_add_u32 v14, {Q_OFF}, v14
        ds_read_b128 v[16:19], v14
        ds_read_b128 v[20:23], v14 offset:256
        s_mov_b32 s40, s12
        s_mov_b32 s41, s13
        s_mov_b32 s42, 3670016
        s_mov_b32 s44, s18
        s_mov_b32 s45, s19
        s_mov_b32 s46, 1605632
        s_mov_b32 s81, 0x3db8aa3b
        s_waitcnt lgkmcnt(0)
        """)
        DP = cfg.get("dprio", 0)
        for n in range(8):
            r = slot(n)
            if DP and n % 4 == 0: E(f"s_setprio {3 - n // 4}")
            E.wait_vm(ids_[n])
            for t in range(2):
                for u in range(4):
                    d = 48 + 4 * u
                    q = r + (u * 2 + t) * 4
                    c = "0" if t == 0 else f"v[{d}:{d+3}]"
                    if not cfg.get("nocomp", 0): E(f"v_mfma_f32_16x16x32_bf16 v[{d}:{d+3}], v[{16+4*t}:{19+4*t}], v[{q}:{q+3}], {c}")
            if sched(n) is not None:
                ids_[sched(n)] = issue(sched(n))
            if n == cfg.get("stage_at", 3) and not cfg.get("nostage", 0):
                E(f"""
                s_mul_i32 s73, s52, 3584
                s_lshl_b32 s74, s53, 9
                s_lshl_b32 s75, s55, 5
                s_add_u32 s74, s74, s75
                s_mul_i32 s74, s74, 896
                s_add_u32 s74, s74, s73
                s_add_u32 s75, s74, {256*896}
                s_mul_i32 s82, s72, {32*896}
                s_add_u32 s82, s82, s73
                s_mov_b32 exec_hi, 0x00ffffff
                """)
                for blk in range(3):
                    E(f"s_add_u32 m0, s73, {W_OFF + blk * 28672}")
                    so = ["s74", "s75", "s82"][blk]
                    srd = "s[40:43]" if blk < 2 else "s[44:47]"
                    for k in range(4):
                        E(f"buffer_load_dwordx4 v3, {srd}, {so} offen offset:{k*896} {SP} lds")
                E("s_mov_b32 exec_hi, -1")
            for u in range(4):
                d = 48 + 4 * u
                E(f"v_cndmask_b32 v{32+u}, v{d}, v{d+1}, s[62:63]")
            for u in range(4):
                d = 48 + 4 * u
                E(f"v_cndmask_b32 v{32+u}, v{32+u}, v{d+2}, s[64:65]")
            for u in range(4):
                d = 48 + 4 * u
                E(f"v_cndmask_b32 v{32+u}, v{32+u}, v{d+3}, s[66:67]")
            for u in range(4):
                E(f"v_add_f32_dpp v{32+u}, v{32+u}, v{32+u} quad_perm:[1,0,3,2] row_mask:0xf bank_mask:0xf")
            for u in range(4):
                E(f"v_add_f32_dpp v{32+u}, v{32+u}, v{32+u} quad_perm:[2,3,0,1] row_mask:0xf bank_mask:0xf")
            E(f"""
            v_cndmask_b32 v{24+n}, v32, v33, s[62:63]
            v_cndmask_b32 v{24+n}, v{24+n}, v34, s[64:65]
            v_cndmask_b32 v{24+n}, v{24+n}, v35, s[66:67]
            """)
        stamp(4)
        E("""
        v_max3_f32 v32, v24, v25, v26
        v_max3_f32 v33, v27, v28, v29
        v_max3_f32 v32, v32, v30, v31
        v_max_f32 v32, v32, v33
        """)
        for r in (8, 4, 2, 1):
            E(f"v_max_f32_dpp v32, v32, v32 row_ror:{r} row_mask:0xf bank_mask:0xf")
        E("v_mul_f32 v36, s81, v32")
        for i in range(8):
            E(f"v_fma_f32 v{24+i}, v{24+i}, s81, -v36")
        for i in range(8):
            E(f"v_exp_f32 v{24+i}, v{24+i}")
        E("""
        v_add_f32 v32, v24, v25
        v_add_f32 v33, v26, v27
        v_add_f32 v34, v28, v29
        v_add_f32 v35, v30, v31
        v_add_f32 v32, v32, v33
        v_add_f32 v34, v34, v35
        v_add_f32 v37, v32, v34
        """)
        for i in range(0, 8, 2):
            E(f"v_cvt_pk_bf16_f32 v{40+i//2}, v{24+i}, v{25+i}")
        for r in (8, 4, 2, 1):
            E(f"v_add_f32_dpp v37, v37, v37 row_ror:{r} row_mask:0xf bank_mask:0xf")
        for i in range(0, 8, 2):
            E(f"ds_write_b16 v5, v{40+i//2} offset:{i*32}")
            E(f"ds_write_b16_d16_hi v5, v{40+i//2} offset:{(i+1)*32}")
        E(f"""
        s_lshl_b32 s73, s52, 3
        s_add_u32 s73, s73, {MLW_OFF}
        v_lshl_add_u32 v14, v0, 2, s73
        s_mov_b32 exec_lo, 0x00010001
        s_mov_b32 exec_hi, 0
        ds_write_b64 v14, v[36:37]
        s_mov_b64 exec, -1
        s_waitcnt lgkmcnt(0)
        ds_read_b128 v[12:15], v6
        """)
        ml_ids = None
        for n in range(8, 16):
            i = n - 8
            r = slot(n)
            pa = 12 if (i % 2 == 0) else 44
            pn = 44 if (i % 2 == 0) else 12
            if DP and n % 4 == 0: E(f"s_setprio {3 - n // 4}")
            E.wait_vm(ids_[n])
            E("s_waitcnt lgkmcnt(0)")
            for half in range(2):
                for ii in range(2):
                    sreg = half * 2 + ii
                    for e in range(2):
                        dloc = ii * 2 + e
                        for jp in range(4):
                            tq = 48 + dloc * 4 + jp
                            s1 = r + (2 * jp) * 4 + sreg
                            s0 = r + (2 * jp + 1) * 4 + sreg
                            if not cfg.get("nocomp", 0): E(f"v_perm_b32 v{tq}, v{s0}, v{s1}, s{68+e}")
                if half == 1 and sched(n) is not None:
                    ids_[sched(n)] = issue(sched(n))
                for dloc in range(4):
                    d = half * 4 + dloc
                    a = 16 + 4 * d
                    c = "0" if i == 0 else f"v[{a}:{a+3}]"
                    if not cfg.get("nocomp", 0): E(f"v_mfma_f32_16x16x32_bf16 v[{a}:{a+3}], v[12:15], v[{48+dloc*4}:{51+dloc*4}], {c}")
            if i < 7:
                E(f"ds_read_b128 v[12:15], v6 offset:{(i+1)*32}")
        stamp(5)
        E(f"""
        s_lshl_b32 s73, s52, 11
        s_add_u32 s73, s73, {MRG_OFF}
        v_lshlrev_b32 v14, 5, v0
        v_add_u32 v14, s73, v14
        """)
        for d in range(8):
            E(f"v_mov_b32 v{48+d}, v{16+4*d}")
        E("""
        ds_write_b128 v14, v[48:51]
        ds_write_b128 v14, v[52:55] offset:16
        s_waitcnt vmcnt(0) lgkmcnt(0)
        s_barrier
        """)

    main(False)
    stamp(6)
    if cfg.get("notail", 0): E.branch("s_branch L_end")
    E("s_cmp_eq_u32 s52, 7")
    E.branch("s_cbranch_scc1 L_w7tail")
    E("s_cmp_ge_u32 s52, 4")
    E.branch("s_cbranch_scc1 L_proj")
    E(f"""
    s_lshl_b32 s73, s52, 9
    s_add_u32 s73, s73, {MRG_OFF}
    v_lshl_add_u32 v14, v0, 3, s73
    s_lshr_b32 s74, s52, 1
    s_lshl_b32 s75, s74, 6
    s_add_u32 s75, s75, {MLW_OFF}
    v_mov_b32 v15, s75
    ds_read_b128 v[64:67], v15
    ds_read_b128 v[68:71], v15 offset:16
    ds_read_b128 v[72:75], v15 offset:32
    ds_read_b128 v[76:79], v15 offset:48
    """)
    for w in range(8):
        E(f"ds_read_b64 v[{24+2*w}:{25+2*w}], v14 offset:{w*2048}")
    E(f"""
    s_and_b32 s75, s52, 1
    s_lshl_b32 s75, s75, 14
    v_lshlrev_b32 v14, 12, v11
    v_lshl_add_u32 v14, v10, 4, v14
    s_lshl_b32 s73, s57, 15
    s_add_u32 s73, s73, s75
    s_lshl_b32 s75, s55, 9
    s_add_u32 s73, s73, s75
    s_lshl_b32 s75, s74, 8
    s_add_u32 s73, s73, s75
    s_add_u32 s73, s73, {H1BOX}
    v_mov_b32 v42, v8
    v_mov_b32 v43, v9
    v_mov_b32 v46, v8
    v_mov_b32 v47, v9
    s_lshl_b32 s82, s57, 11
    s_lshl_b32 s75, s55, 5
    s_add_u32 s82, s82, s75
    s_lshl_b32 s75, s74, 4
    s_add_u32 s82, s82, s75
    s_add_u32 s82, s82, {H1ML}
    v_lshlrev_b32 v15, 8, v0
    s_waitcnt lgkmcnt(8)
    v_max3_f32 v44, v64, v66, v68
    v_max3_f32 v45, v70, v72, v74
    v_max3_f32 v44, v44, v76, v78
    v_max_f32 v44, v44, v45
    """)
    for w in range(8):
        E(f"v_sub_f32 v{16+w}, v{64+2*w}, v44")
    for w in range(8):
        E(f"v_exp_f32 v{16+w}, v{16+w}")
    E("""
    s_waitcnt lgkmcnt(0)
    v_mul_f32 v40, v16, v24
    v_mul_f32 v41, v16, v25
    v_mul_f32 v45, v16, v65
    """)
    for w in range(1, 8):
        E(f"v_fmac_f32 v40, v{16+w}, v{24+2*w}")
        E(f"v_fmac_f32 v41, v{16+w}, v{25+2*w}")
        E(f"v_fmac_f32 v45, v{16+w}, v{65+2*w}")
    E("buffer_store_dwordx4 v[40:43], v14, s[36:39], s73 offen sc1")
    E("""
    s_mov_b64 exec, 0xff
    buffer_store_dwordx4 v[44:47], v15, s[36:39], s82 offen sc1
    s_mov_b64 exec, -1
    """)
    E.label("L_proj")
    E(f"""
    v_lshrrev_b32 v12, 2, v10
    v_and_b32 v13, 3, v10
    v_lshl_add_u32 v14, v11, 3, v12
    v_mul_u32_u24 v14, 896, v14
    v_lshl_add_u32 v14, v13, 3, v14
    s_lshl_b32 s73, s52, 7
    v_add_u32 v14, s73, v14
    v_lshlrev_b32 v15, 4, v11
    v_add_u32 v15, {COEF_OFF}, v15
    ds_read_b128 v[120:123], v15 offset:128
    """)
    cnt = 1
    for ks in (2, 0, 1):
        for ct in range(4):
            q = 64 + (ks * 4 + ct) * 4
            E(f"ds_read_b64_tr_b16 v[{q}:{q+1}], v14 offset:{ks*28672+ct*32}")
            E(f"ds_read_b64_tr_b16 v[{q+2}:{q+3}], v14 offset:{ks*28672+ct*32+3584}")
        E("s_waitcnt lgkmcnt(0)")
    for ct in range(4):
        q = 64 + (2 * 4 + ct) * 4
        E(f"v_mfma_f32_16x16x32_bf16 v[{128+4*ct}:{131+4*ct}], v[{q}:{q+3}], v[120:123], 0")
    E(f"""
    v_lshrrev_b32 v12, 1, v11
    v_lshlrev_b32 v12, 12, v12
    v_and_b32 v13, 1, v11
    v_lshl_add_u32 v12, v13, 5, v12
    v_lshl_add_u32 v12, v10, 4, v12
    s_mul_i32 s73, s54, {56*4096}
    s_lshl_b32 s74, s58, 6
    s_add_u32 s73, s73, s74
    s_lshl_b32 s74, s52, 15
    s_add_u32 s73, s73, s74
    s_add_u32 s73, s73, {H2BOX}
    s_mov_b32 s76, 0x00020002
    s_mov_b32 s77, 0x00020002
    """)
    for ct in range(4):
        E(f"v_mov_b32 v{146+4*ct}, v8")
        E(f"v_mov_b32 v{147+4*ct}, v9")
    E("s_barrier")
    stamp(8)
    E("""
    ds_read_b128 v[112:115], v15
    ds_read_b128 v[116:119], v15 offset:64
    s_waitcnt lgkmcnt(0)
    """)
    for ks in range(2):
        for ct in range(4):
            q = 64 + (ks * 4 + ct) * 4
            E(f"v_mfma_f32_16x16x32_bf16 v[{128+4*ct}:{131+4*ct}], v[{q}:{q+3}], v[{112+4*ks}:{115+4*ks}], v[{128+4*ct}:{131+4*ct}]")
    for ct in range(4):
        E(f"v_cndmask_b32 v{144+4*ct}, v{128+4*ct}, v{130+4*ct}, s[76:77]")
        E(f"v_cndmask_b32 v{145+4*ct}, v{129+4*ct}, v{131+4*ct}, s[76:77]")
    E("""
    s_mov_b32 exec_lo, 0x00030003
    s_mov_b32 exec_hi, 0x00030003
    """)
    for ct in range(4):
        E(f"s_add_u32 s74, s73, {ct*8192}")
        E(f"buffer_store_dwordx4 v[{144+4*ct}:{147+4*ct}], v12, s[36:39], s74 offen sc1")
    E.branch("s_branch L_end")

    E.label("L_w7tail")
    E(f"""
    s_lshl_b32 s73, s57, 3
    s_add_u32 s73, s73, s55
    s_lshl_b32 s82, s73, 8
    s_add_u32 s82, s82, {H1ML}
    s_lshl_b32 s73, s73, 12
    s_add_u32 s73, s73, {H1BOX}
    v_mov_b32 v15, {G_OFF}
    ds_read_b32 v40, v15
    v_and_b32 v14, 31, v0
    v_lshlrev_b32 v14, 2, v14
    v_add_u32 v14, {COEF_OFF}, v14
    v_lshlrev_b32 v13, 4, v11
    s_mov_b32 s80, 0
    """)
    E.label("L_h1")
    for i in range(4):
        E(f"buffer_load_dwordx4 v[{80+4*i}:{83+4*i}], v13, s[36:39], s82 offen offset:{i*64} sc1")
    for i in range(4):
        E(f"buffer_load_dwordx4 v[{64+4*i}:{67+4*i}], v3, s[36:39], s73 offen offset:{i*1024} sc1")
    E("s_add_u32 s80, s80, 1")
    E("s_waitcnt vmcnt(0)")
    E("v_cmp_eq_u64 s[76:77], v[66:67], v[8:9]")
    for i in range(1, 8):
        E(f"v_cmp_eq_u64 s[78:79], v[{66+4*i}:{67+4*i}], v[8:9]")
        E("s_and_b64 s[76:77], s[76:77], s[78:79]")
    E("s_cmp_eq_u64 s[76:77], exec")
    E.branch("s_cbranch_scc1 L_h1_got")
    E(f"s_cmp_lt_u32 s80, {SPIN}")
    E.branch("s_cbranch_scc1 L_h1")
    E.label("L_h1_got")
    stamp(7)
    if PROF:
        E("v_writelane_b32 v7, s80, 13")
    E(f"""
    v_max3_f32 v96, v80, v84, v88
    v_max_f32 v96, v96, v92
    v_mov_b32 v97, v96
    v_permlane32_swap_b32 v96, v97
    v_max_f32 v96, v96, v97
    v_sub_f32 v80, v80, v96
    v_sub_f32 v84, v84, v96
    v_sub_f32 v88, v88, v96
    v_sub_f32 v92, v92, v96
    v_exp_f32 v80, v80
    v_exp_f32 v84, v84
    v_exp_f32 v88, v88
    v_exp_f32 v92, v92
    v_mul_f32 v98, v80, v81
    v_mul_f32 v64, v80, v64
    v_mul_f32 v65, v80, v65
    v_fmac_f32 v98, v84, v85
    v_fmac_f32 v64, v84, v68
    v_fmac_f32 v65, v84, v69
    v_fmac_f32 v98, v88, v89
    v_fmac_f32 v64, v88, v72
    v_fmac_f32 v65, v88, v73
    v_fmac_f32 v98, v92, v93
    v_fmac_f32 v64, v92, v76
    v_fmac_f32 v65, v92, v77
    v_mov_b32 v99, v98
    v_mov_b32 v66, v64
    v_mov_b32 v67, v65
    v_permlane32_swap_b32 v98, v99
    v_permlane32_swap_b32 v64, v66
    v_permlane32_swap_b32 v65, v67
    v_add_f32 v98, v98, v99
    v_add_f32 v64, v64, v66
    v_add_f32 v65, v65, v67
    v_rcp_f32 v98, v98
    s_waitcnt lgkmcnt(0)
    v_mul_f32 v98, v40, v98
    v_mul_f32 v64, v98, v64
    v_mul_f32 v65, v98, v65
    v_cvt_pk_bf16_f32 v64, v64, v65
    ds_write_b32 v14, v64
    s_waitcnt lgkmcnt(0)
    s_barrier
    s_cmp_ge_u32 s58, 56
    """)
    E.branch("s_cbranch_scc1 L_end")
    E(f"""
    s_mul_i32 s73, s54, 56
    s_add_u32 s73, s73, s58
    s_lshl_b32 s73, s73, 12
    s_add_u32 s73, s73, {H2BOX}
    s_mov_b32 s48, s22
    s_mov_b32 s49, s23
    s_mov_b32 s50, 3584
    s_mul_i32 s74, s54, 896
    s_lshl_b32 s75, s58, 4
    s_add_u32 s74, s74, s75
    v_lshlrev_b32 v14, 2, v0
    s_mov_b32 s80, 0
    """)
    def poll4(lbl, sreg):
        E.label(lbl)
        for i in range(4):
            E(f"buffer_load_dwordx4 v[{64+4*i}:{67+4*i}], v3, s[36:39], {sreg} offen offset:{i*1024} sc1")
        E(f"""
        s_add_u32 s80, s80, 1
        s_waitcnt vmcnt(0)
        v_cmp_eq_u64 s[76:77], v[66:67], v[8:9]
        v_cmp_eq_u64 s[78:79], v[70:71], v[8:9]
        v_cmp_eq_u64 s[84:85], v[74:75], v[8:9]
        v_cmp_eq_u64 s[86:87], v[78:79], v[8:9]
        s_and_b64 s[76:77], s[76:77], s[78:79]
        s_and_b64 s[84:85], s[84:85], s[86:87]
        s_and_b64 s[76:77], s[76:77], s[84:85]
        s_cmp_eq_u64 s[76:77], exec
        """)
        E.branch(f"s_cbranch_scc1 {lbl}_got")
        E(f"s_cmp_lt_u32 s80, {SPIN}")
        E.branch(f"s_cbranch_scc1 {lbl}")
        E.label(lbl + "_got")
        E("""
        v_add_f32 v64, v64, v68
        v_add_f32 v65, v65, v69
        v_add_f32 v72, v72, v76
        v_add_f32 v73, v73, v77
        v_add_f32 v64, v64, v72
        v_add_f32 v65, v65, v73
        """)
    poll4("L_h2", "s73")
    stamp(9)
    if PROF:
        E("v_writelane_b32 v7, s80, 14")
    for rr in (4, 8):
        E(f"v_add_f32_dpp v64, v64, v64 row_ror:{rr} row_mask:0xf bank_mask:0xf")
        E(f"v_add_f32_dpp v65, v65, v65 row_ror:{rr} row_mask:0xf bank_mask:0xf")
    E(f"""
    v_mov_b32 v66, v64
    v_mov_b32 v67, v65
    v_permlane16_swap_b32 v64, v66
    v_permlane16_swap_b32 v65, v67
    v_add_f32 v64, v64, v66
    v_add_f32 v65, v65, v67
    v_mov_b32 v66, v64
    v_mov_b32 v67, v65
    v_permlane32_swap_b32 v64, v66
    v_permlane32_swap_b32 v65, v67
    v_add_f32 v64, v64, v66
    v_add_f32 v65, v65, v67
    v_cvt_pk_bf16_f32 v64, v64, v65
    s_mov_b64 exec, 15
    buffer_store_dword v64, v14, s[48:51], s74 offen
    s_cmp_lg_u32 s2, 0
    """)
    E.branch("s_cbranch_scc1 L_end")
    E("""
    s_mov_b64 exec, 1
    buffer_store_dwordx2 v[8:9], v14, s[36:39], 0 offen sc1
    """)
    E.label("L_end")
    if PROF:
        stamp(10)
        E(f"""
        s_mov_b64 exec, 0xffff
        s_lshl_b32 s73, s2, 3
        s_add_u32 s73, s73, s52
        s_lshl_b32 s73, s73, 6
        s_add_u32 s73, s73, 0x300000
        v_lshlrev_b32 v14, 2, v0
        buffer_store_dword v7, v14, s[36:39], s73 offen
        """)
    E.label("L_exit")
    E.raw("    s_endpgm")
    E.raw(f""".section .rodata,"a"
.p2align 6
.amdhsa_kernel {KNAME}
  .amdhsa_next_free_vgpr 256
  .amdhsa_next_free_sgpr 102
  .amdhsa_accum_offset 256
  .amdhsa_group_segment_fixed_size 0
  .amdhsa_kernarg_size 96
  .amdhsa_user_sgpr_count 2
  .amdhsa_user_sgpr_kernarg_segment_ptr 1
  .amdhsa_system_sgpr_workgroup_id_x 1
.end_amdhsa_kernel""")
    return E.text()

if __name__ == "__main__":
    out = sys.argv[1] if len(sys.argv) > 1 else "k1.s"
    cfg = {}
    for a in sys.argv[2:]:
        k, v = a.split("=")
        cfg[k] = int(v) if v.lstrip("-").isdigit() else v
    open(out, "w").write(gen(cfg))
```

```python
import sys, math
sys.path.insert(0, "gen")
from emit import Emit

KNAME = "gated_mix__gqa_block_cached__dense_activation_relu__decode_kernel"

W_OFF = 0
WQ_OFF = 86016
W1_OFF = 100352
MRG_OFF = 129024
P_OFF = 145408
Q_OFF = 151552
COEF_OFF = 152576
FAC_OFF = 152832
TAG_OFF = 152896
G_OFF = 152904
MLW_OFF = 152960
FLAG_OFF = 153088
XS_OFF = 153152
LDS_BYTES = 154112
QBOX = 0x1000
MLBOX = 0x20000
H1BOX = 0x40000
H2BOX = 0x140000
H1ML = 0x20000
WS_BYTES = 0x400000

NS = 6
RING = 64
SPIN = 400000

def slot(n): return RING + 32 * (n % NS)

def gen(cfg):
    E = Emit()
    POL = cfg.get("pol", "nt")
    PROF = cfg.get("prof", 0)
    def stamp(k):
        if PROF:
            E(f"""
            s_memrealtime s[98:99]
            s_waitcnt lgkmcnt(0)
            v_writelane_b32 v7, s98, {k}
            """)
    hdr = open("gated_mix__gqa_block_cached__dense_activation_relu__decode.s.ref").read().split("\n")
    for l in hdr:
        if l.startswith("; @launch"): break
        if l.startswith(";"): E.raw(l)
    E.raw(f"; @launch grid=(256,1,1) block=(512,1,1) lds={LDS_BYTES}")
    E.raw('.amdgcn_target "amdgcn-amd-amdhsa--gfx950"')
    E.raw(".text")
    E.raw(f".globl {KNAME}\n.p2align 8\n.type {KNAME},@function\n{KNAME}:")
    E("s_cmp_ge_u32 s2, 256")
    E.branch("s_cbranch_scc1 L_exit")
    if PROF:
        E("v_mov_b32 v7, 0")
    stamp(0)
    E("""
    s_load_dwordx16 s[4:19], s[0:1], 0
    s_load_dwordx8 s[20:27], s[0:1], 64
    v_lshrrev_b32 v1, 6, v0
    v_and_b32 v0, 63, v0
    v_readfirstlane_b32 s52, v1
    s_and_b32 s53, s2, 7
    s_lshr_b32 s54, s2, 6
    s_bfe_u32 s55, s2, 0x30003
    s_lshr_b32 s56, s2, 3
    s_lshl_b32 s57, s54, 3
    s_add_u32 s57, s57, s53
    s_lshl_b32 s58, s53, 3
    s_add_u32 s58, s58, s55
    v_and_b32 v10, 15, v0
    v_lshrrev_b32 v11, 4, v0
    v_lshrrev_b32 v12, 2, v10
    v_and_b32 v13, 3, v10
    v_lshlrev_b32 v1, 9, v12
    v_lshl_add_u32 v1, v11, 6, v1
    v_lshl_add_u32 v1, v13, 4, v1
    v_add_u32 v2, 0x1000, v1
    v_lshlrev_b32 v3, 4, v0
    v_add_u32 v4, 0x1000, v3
    s_lshl_b32 s59, s57, 22
    s_lshl_b32 s60, s55, 19
    s_add_u32 s59, s59, s60
    s_lshl_b32 s60, s52, 13
    s_add_u32 s59, s59, s60
    s_mov_b32 s62, 0x22222222
    s_mov_b32 s63, 0x22222222
    s_mov_b32 s64, 0x44444444
    s_mov_b32 s65, 0x44444444
    s_mov_b32 s66, 0x88888888
    s_mov_b32 s67, 0x88888888
    s_mov_b32 s68, 0x05040100
    s_mov_b32 s69, 0x07060302
    s_mov_b32 s30, 0x8000000
    s_mov_b32 s31, 0x20000
    s_mov_b32 s34, 0x8000000
    s_mov_b32 s35, 0x20000
    """)
    E(f"s_mov_b32 s38, {WS_BYTES}")
    E("""
    s_mov_b32 s39, 0x20000
    s_mov_b32 s43, 0x20000
    s_mov_b32 s47, 0x20000
    s_mov_b32 s51, 0x20000
    s_min_u32 s72, s58, 55
    s_waitcnt lgkmcnt(0)
    s_mov_b32 s28, s6
    s_mov_b32 s29, s7
    s_mov_b32 s32, s8
    s_mov_b32 s33, s9
    s_mov_b32 s36, s26
    s_mov_b32 s37, s27
    s_mov_b32 s44, s4
    s_mov_b32 s45, s5
    s_mov_b32 s46, 3584
    s_mov_b32 s40, s10
    s_mov_b32 s41, s11
    s_mov_b32 s42, 3670016
    s_mov_b32 s48, s20
    s_mov_b32 s49, s21
    s_mov_b32 s50, 896
    """)
    E(f"""
    s_mul_i32 s73, s52, 768
    s_add_u32 s73, s73, {P_OFF}
    v_and_b32 v5, 1, v11
    v_lshlrev_b32 v5, 8, v5
    v_and_b32 v14, 1, v12
    v_lshl_add_u32 v5, v14, 4, v5
    v_lshl_add_u32 v5, v13, 2, v5
    v_lshrrev_b32 v14, 1, v12
    v_lshl_add_u32 v5, v14, 1, v5
    v_add_u32 v5, s73, v5
    v_lshrrev_b32 v6, 3, v10
    v_lshlrev_b32 v6, 8, v6
    v_xor_b32 v14, v12, v11
    v_and_b32 v14, 1, v14
    v_cmp_eq_u32 vcc, 1, v14
    v_mov_b32 v15, 0x200
    v_cndmask_b32 v6, v6, v15, vcc
    v_lshrrev_b32 v14, 1, v11
    v_lshl_add_u32 v6, v14, 4, v6
    v_add_u32 v6, s73, v6
    v_lshl_add_u32 v14, v0, 2, s73
    v_mov_b32 v15, 0
    ds_write_b32 v14, v15 offset:512
    """)
    E(f"""
    v_mov_b32 v14, {FLAG_OFF}
    ds_write_b32 v14, v15
    """)
    if not cfg.get("nos0", 0):
        E("s_cmp_eq_u32 s52, 0")
        E.branch("s_cbranch_scc1 L_w0")

    def issue(n):
        r = slot(n)
        i = n & 7
        E(f"s_add_u32 s61, s59, {i * 65536}")
        last = None
        if n < 8:
            for u in range(4):
                for t in range(2):
                    va = "v1" if u < 2 else "v2"
                    off = (u & 1) * 2048 + t * 256
                    q = r + (u * 2 + t) * 4
                    if cfg.get("klin", 0):
                        j = u * 2 + t
                        va = "v3" if j < 4 else "v4"
                        off = (j & 3) * 1024
                    last = E.ins(f"buffer_load_dwordx4 v[{q}:{q+3}], {va}, s[28:31], s61 offen offset:{off} {POL}")
        else:
            for j in range(8):
                va = "v3" if j < 4 else "v4"
                off = (j & 3) * 1024
                q = r + j * 4
                last = E.ins(f"buffer_load_dwordx4 v[{q}:{q+3}], {va}, s[32:35], s61 offen offset:{off} {cfg.get('polv', POL)}")
        return last

    def prologue(pace=0, bar=False):
        ids = {}
        for n in range(NS):
            if pace and n >= pace:
                E.wait_vm(ids[n - pace])
            ids[n] = issue(n)
            if bar and n == 0:
                E("s_waitcnt lgkmcnt(0)")
                E("s_barrier")
        return ids

    SP = cfg.get("spol", "nt")
    E("s_cmp_lg_u32 s52, 1" if not cfg.get("nos0", 0) else "s_cmp_lg_u32 s52, 100")
    E.branch("s_cbranch_scc1 L_pro")
    E(f"""
    s_mov_b32 s40, s16
    s_mov_b32 s41, s17
    s_mov_b32 s42, 1605632
    v_lshrrev_b32 v14, 2, v0
    v_mul_u32_u24 v14, 3584, v14
    v_and_b32 v15, 3, v0
    v_lshl_add_u32 v14, v15, 4, v14
    s_lshl_b32 s73, s72, 6
    s_mul_i32 s75, s54, 896
    buffer_load_dwordx4 v[56:59], v3, s[44:47], s75 offen {SP}
    buffer_load_dwordx4 v[60:63], v3, s[48:51], 0 offen {SP}
    s_mov_b32 m0, {XS_OFF}
    s_mov_b32 exec_hi, 0x00ffffff
    buffer_load_dwordx4 v3, s[44:47], s75 offen {SP} lds
    s_mov_b32 exec_hi, -1
    """)
    for i in range(28):
        E(f"s_mov_b32 m0, {W1_OFF + i * 1024}")
        E(f"s_add_u32 s74, s73, {i * 57344}")
        E(f"buffer_load_dwordx4 v14, s[40:43], s74 offen {SP} lds")
    E.label("L_pro")
    if cfg.get("dprio", 0): E("s_setprio 3")
    base_vm = E.vm
    ids = prologue(cfg.get('pace', 0), bar=True)
    vm_after_prologue = E.vm
    stamp(1)
    E("s_cmp_eq_u32 s52, 1" if not cfg.get("nos0", 0) else "s_cmp_eq_u32 s52, 100")
    E.branch("s_cbranch_scc1 L_w1")
    E.label("L_flag")
    if cfg.get("noflag", 0): E.branch("s_branch L_main")
    E(f"v_mov_b32 v14, {FLAG_OFF}")
    E.label("L_flag_loop")
    E("""
    ds_read_b32 v15, v14
    s_waitcnt lgkmcnt(0)
    v_readfirstlane_b32 s73, v15
    s_cmp_lg_u32 s73, 0
    """)
    E.branch("s_cbranch_scc1 L_main")
    E("s_sleep 2")
    E.branch("s_branch L_flag_loop")

    E.label("L_w0")
    E("s_setprio 3")
    E("s_load_dwordx2 s[70:71], s[26:27], 0")
    E(f"""
    v_lshrrev_b32 v14, 1, v0
    v_lshlrev_b32 v14, 13, v14
    v_and_b32 v15, 1, v0
    v_lshl_add_u32 v14, v15, 4, v14
    s_lshl_b32 s73, s53, 10
    s_lshl_b32 s74, s56, 5
    s_add_u32 s73, s73, s74
    """)
    for i in range(14):
        E(f"s_mov_b32 m0, {WQ_OFF + i * 1024}")
        E(f"s_add_u32 s74, s73, {i * 262144}")
        E(f"buffer_load_dwordx4 v14, s[40:43], s74 offen {SP} lds")
    E(f"""
    v_mul_u32_u24 v15, 896, v13
    v_lshl_add_u32 v15, v11, 4, v15
    """)
    for ks in range(14):
        E(f"buffer_load_dwordx4 v[{64+4*ks}:{67+4*ks}], v15, s[44:47], 0 offen offset:{ks*64} {SP}")
    E(f"""
    v_lshl_add_u32 v14, v11, 3, v12
    v_lshlrev_b32 v14, 5, v14
    v_lshl_add_u32 v14, v13, 3, v14
    v_add_u32 v14, {WQ_OFF}, v14
    s_waitcnt lgkmcnt(0)
    s_barrier
    s_add_u32 s70, s70, 1
    s_addc_u32 s71, s71, 0
    v_mov_b32 v8, s70
    v_mov_b32 v9, s71
    s_waitcnt vmcnt(0)
    """)
    stamp(1)
    for ks in range(14):
        E(f"ds_read_b64_tr_b16 v[{128+4*ks}:{129+4*ks}], v14 offset:{ks*1024}")
        E(f"ds_read_b64_tr_b16 v[{130+4*ks}:{131+4*ks}], v14 offset:{ks*1024+128}")
        if ks % 7 == 6:
            E("s_waitcnt lgkmcnt(0)")
    for ks in range(14):
        c = "0" if ks == 0 else "v[48:51]"
        E(f"v_mfma_f32_16x16x32_bf16 v[48:51], v[{128+4*ks}:{131+4*ks}], v[{64+4*ks}:{67+4*ks}], {c}")
    E(f"""
    v_lshlrev_b32 v14, 14, v10
    v_lshl_add_u32 v14, v11, 4, v14
    s_lshl_b32 s73, s53, 11
    s_lshl_b32 s74, s56, 6
    s_add_u32 s73, s73, s74
    s_add_u32 s73, s73, {QBOX}
    v_mov_b32 v54, v8
    v_mov_b32 v55, v9
    v_cvt_pk_bf16_f32 v52, v48, v49
    v_cvt_pk_bf16_f32 v53, v50, v51
    s_mov_b32 exec_lo, 0x000f000f
    s_mov_b32 exec_hi, 0x000f000f
    buffer_store_dwordx4 v[52:55], v14, s[36:39], s73 offen sc1
    s_mov_b64 exec, -1
    s_lshl_b32 s73, s57, 11
    s_add_u32 s73, s73, {QBOX}
    s_mov_b32 s80, 0
    """)
    stamp(2)
    E.label("L_w0_poll")
    E(f"""
    buffer_load_dwordx4 v[56:59], v3, s[36:39], s73 offen sc1
    buffer_load_dwordx4 v[60:63], v3, s[36:39], s73 offen offset:1024 sc1
    s_add_u32 s80, s80, 1
    s_waitcnt vmcnt(0)
    v_cmp_eq_u64 s[76:77], v[58:59], v[8:9]
    v_cmp_eq_u64 s[78:79], v[62:63], v[8:9]
    s_and_b64 s[76:77], s[76:77], s[78:79]
    s_cmp_eq_u64 s[76:77], exec
    """)
    E.branch("s_cbranch_scc1 L_w0_got")
    E(f"s_cmp_lt_u32 s80, {SPIN}")
    E.branch("s_cbranch_scc1 L_w0_poll")
    E.label("L_w0_got")
    stamp(11)
    if PROF:
        E("v_writelane_b32 v7, s80, 12")
    E(f"""
    v_lshlrev_b32 v14, 3, v0
    v_add_u32 v14, {Q_OFF}, v14
    ds_write_b64 v14, v[56:57]
    ds_write_b64 v14, v[60:61] offset:512
    v_mov_b32 v15, {TAG_OFF}
    ds_write_b64 v15, v[8:9]
    v_mov_b32 v15, {FLAG_OFF}
    v_mov_b32 v14, 1
    s_waitcnt lgkmcnt(0)
    ds_write_b32 v15, v14
    """)
    if not cfg.get("dprio", 0): E("s_setprio 0")
    E.vm = base_vm
    ids2 = prologue()
    assert ids2 == ids and E.vm == vm_after_prologue
    E.branch("s_branch L_main")

    E.label("L_w1")
    E(f"""
    v_lshl_add_u32 v14, v11, 3, v12
    v_lshlrev_b32 v14, 6, v14
    v_lshl_add_u32 v14, v13, 3, v14
    v_add_u32 v14, {W1_OFF}, v14
    v_lshlrev_b32 v15, 4, v11
    v_add_u32 v15, {XS_OFF}, v15
    s_waitcnt vmcnt({8*NS})
    """)
    def ffn_rd(ks):
        xb = 16 + 4 * (ks & 1)
        tb = 24 + 8 * (ks & 1)
        E(f"ds_read_b128 v[{xb}:{xb+3}], v15 offset:{ks*64}")
        for ct in range(2):
            q = tb + 4 * ct
            E(f"ds_read_b64_tr_b16 v[{q}:{q+1}], v14 offset:{ks*2048+ct*32}")
            E(f"ds_read_b64_tr_b16 v[{q+2}:{q+3}], v14 offset:{ks*2048+ct*32+256}")
    ffn_rd(0)
    E("s_mov_b32 s74, 0xffff0000")
    E("v_mov_b32 v40, 0")
    for i in range(4):
        E(f"""
        v_lshlrev_b32 v41, 16, v{56+i}
        v_lshlrev_b32 v42, 16, v{60+i}
        v_fmac_f32 v40, v41, v42
        v_and_b32 v41, s74, v{56+i}
        v_and_b32 v42, s74, v{60+i}
        v_fmac_f32 v40, v41, v42
        """)
    E("""
    v_cmp_gt_u32 vcc, 56, v0
    v_cndmask_b32 v40, 0, v40, vcc
    """)
    for ks in range(14):
        if ks + 1 < 14:
            ffn_rd(ks + 1)
            E("s_waitcnt lgkmcnt(5)")
        else:
            E("s_waitcnt lgkmcnt(0)")
        xb = 16 + 4 * (ks & 1)
        tb = 24 + 8 * (ks & 1)
        for ct in range(2):
            d = 48 + ct * 4
            c = "0" if ks == 0 else f"v[{d}:{d+3}]"
            E(f"v_mfma_f32_16x16x32_bf16 v[{d}:{d+3}], v[{tb+4*ct}:{tb+4*ct+3}], v[{xb}:{xb+3}], {c}")
    for r in (8, 4, 2, 1):
        E(f"v_add_f32_dpp v40, v40, v40 row_ror:{r} row_mask:0xf bank_mask:0xf")
    E("""
    v_mov_b32 v41, v40
    v_permlane16_swap_b32 v40, v41
    v_add_f32 v40, v40, v41
    v_mov_b32 v41, v40
    v_permlane32_swap_b32 v40, v41
    v_add_f32 v40, v40, v41
    v_mul_f32 v40, 0xbfb8aa3b, v40
    v_exp_f32 v40, v40
    v_add_f32 v40, 1.0, v40
    v_rcp_f32 v40, v40
    v_sub_f32 v41, 1.0, v40
    s_cmp_lt_u32 s58, 56
    s_cselect_b64 s[76:77], -1, 0
    """)
    E(f"""
    v_mov_b32 v15, {G_OFF}
    ds_write_b32 v15, v40
    """)
    for r in range(8):
        E(f"""
        v_max_f32 v{48+r}, 0, v{48+r}
        v_mul_f32 v{48+r}, v41, v{48+r}
        v_cndmask_b32 v{48+r}, 0, v{48+r}, s[76:77]
        """)
    E(f"""
    v_cvt_pk_bf16_f32 v56, v48, v49
    v_cvt_pk_bf16_f32 v57, v50, v51
    v_cvt_pk_bf16_f32 v58, v52, v53
    v_cvt_pk_bf16_f32 v59, v54, v55
    v_lshlrev_b32 v14, 3, v11
    v_add_u32 v14, {COEF_OFF + 128}, v14
    s_mov_b32 exec_lo, 0x00010001
    s_mov_b32 exec_hi, 0x00010001
    ds_write_b64 v14, v[56:57]
    ds_write_b64 v14, v[58:59] offset:32
    s_mov_b64 exec, -1
    """)
    stamp(2)
    E.branch("s_branch L_flag")

    LA = cfg.get("la", NS)
    def sched(n):
        if n < LA: k = NS + n
        elif n < NS: return None
        else: k = n + LA
        return k if k < 16 else None
    def main(w7):
        ids_ = dict(ids)
        E.vm = vm_after_prologue
        E.label("L_main")
        stamp(3)
        E(f"""
        v_mov_b32 v15, {TAG_OFF}
        ds_read_b64 v[8:9], v15
        v_bfe_u32 v14, v10, 2, 1
        v_lshlrev_b32 v14, 9, v14
        v_lshl_add_u32 v14, v11, 6, v14
        v_lshl_add_u32 v14, v13, 4, v14
        v_add_u32 v14, {Q_OFF}, v14
        ds_read_b128 v[16:19], v14
        ds_read_b128 v[20:23], v14 offset:256
        s_mov_b32 s40, s12
        s_mov_b32 s41, s13
        s_mov_b32 s42, 3670016
        s_mov_b32 s44, s18
        s_mov_b32 s45, s19
        s_mov_b32 s46, 1605632
        s_mov_b32 s81, 0x3db8aa3b
        s_waitcnt lgkmcnt(0)
        """)
        DP = cfg.get("dprio", 0)
        for n in range(8):
            r = slot(n)
            if DP and n % 4 == 0: E(f"s_setprio {3 - n // 4}")
            E.wait_vm(ids_[n])
            for t in range(2):
                for u in range(4):
                    d = 48 + 4 * u
                    q = r + (u * 2 + t) * 4
                    c = "0" if t == 0 else f"v[{d}:{d+3}]"
                    if not cfg.get("nocomp", 0): E(f"v_mfma_f32_16x16x32_bf16 v[{d}:{d+3}], v[{16+4*t}:{19+4*t}], v[{q}:{q+3}], {c}")
            if sched(n) is not None:
                ids_[sched(n)] = issue(sched(n))
            if n == cfg.get("stage_at", 3) and not cfg.get("nostage", 0):
                E(f"""
                s_mul_i32 s73, s52, 3584
                s_lshl_b32 s74, s53, 9
                s_lshl_b32 s75, s55, 5
                s_add_u32 s74, s74, s75
                s_mul_i32 s74, s74, 896
                s_add_u32 s74, s74, s73
                s_add_u32 s75, s74, {256*896}
                s_mul_i32 s82, s72, {32*896}
                s_add_u32 s82, s82, s73
                s_mov_b32 exec_hi, 0x00ffffff
                """)
                for blk in range(3):
                    E(f"s_add_u32 m0, s73, {W_OFF + blk * 28672}")
                    so = ["s74", "s75", "s82"][blk]
                    srd = "s[40:43]" if blk < 2 else "s[44:47]"
                    for k in range(4):
                        E(f"buffer_load_dwordx4 v3, {srd}, {so} offen offset:{k*896} {SP} lds")
                E("s_mov_b32 exec_hi, -1")
            for u in range(4):
                d = 48 + 4 * u
                E(f"v_cndmask_b32 v{32+u}, v{d}, v{d+1}, s[62:63]")
            for u in range(4):
                d = 48 + 4 * u
                E(f"v_cndmask_b32 v{32+u}, v{32+u}, v{d+2}, s[64:65]")
            for u in range(4):
                d = 48 + 4 * u
                E(f"v_cndmask_b32 v{32+u}, v{32+u}, v{d+3}, s[66:67]")
            for u in range(4):
                E(f"v_add_f32_dpp v{32+u}, v{32+u}, v{32+u} quad_perm:[1,0,3,2] row_mask:0xf bank_mask:0xf")
            for u in range(4):
                E(f"v_add_f32_dpp v{32+u}, v{32+u}, v{32+u} quad_perm:[2,3,0,1] row_mask:0xf bank_mask:0xf")
            E(f"""
            v_cndmask_b32 v{24+n}, v32, v33, s[62:63]
            v_cndmask_b32 v{24+n}, v{24+n}, v34, s[64:65]
            v_cndmask_b32 v{24+n}, v{24+n}, v35, s[66:67]
            """)
        stamp(4)
        E("""
        v_max3_f32 v32, v24, v25, v26
        v_max3_f32 v33, v27, v28, v29
        v_max3_f32 v32, v32, v30, v31
        v_max_f32 v32, v32, v33
        """)
        for r in (8, 4, 2, 1):
            E(f"v_max_f32_dpp v32, v32, v32 row_ror:{r} row_mask:0xf bank_mask:0xf")
        E("v_mul_f32 v36, s81, v32")
        for i in range(8):
            E(f"v_fma_f32 v{24+i}, v{24+i}, s81, -v36")
        for i in range(8):
            E(f"v_exp_f32 v{24+i}, v{24+i}")
        E("""
        v_add_f32 v32, v24, v25
        v_add_f32 v33, v26, v27
        v_add_f32 v34, v28, v29
        v_add_f32 v35, v30, v31
        v_add_f32 v32, v32, v33
        v_add_f32 v34, v34, v35
        v_add_f32 v37, v32, v34
        """)
        for i in range(0, 8, 2):
            E(f"v_cvt_pk_bf16_f32 v{40+i//2}, v{24+i}, v{25+i}")
        for r in (8, 4, 2, 1):
            E(f"v_add_f32_dpp v37, v37, v37 row_ror:{r} row_mask:0xf bank_mask:0xf")
        for i in range(0, 8, 2):
            E(f"ds_write_b16 v5, v{40+i//2} offset:{i*32}")
            E(f"ds_write_b16_d16_hi v5, v{40+i//2} offset:{(i+1)*32}")
        E(f"""
        s_lshl_b32 s73, s52, 3
        s_add_u32 s73, s73, {MLW_OFF}
        v_lshl_add_u32 v14, v0, 2, s73
        s_mov_b32 exec_lo, 0x00010001
        s_mov_b32 exec_hi, 0
        ds_write_b64 v14, v[36:37]
        s_mov_b64 exec, -1
        s_waitcnt lgkmcnt(0)
        ds_read_b128 v[12:15], v6
        """)
        ml_ids = None
        for n in range(8, 16):
            i = n - 8
            r = slot(n)
            pa = 12 if (i % 2 == 0) else 44
            pn = 44 if (i % 2 == 0) else 12
            if DP and n % 4 == 0: E(f"s_setprio {3 - n // 4}")
            E.wait_vm(ids_[n])
            E("s_waitcnt lgkmcnt(0)")
            for half in range(2):
                for ii in range(2):
                    sreg = half * 2 + ii
                    for e in range(2):
                        dloc = ii * 2 + e
                        for jp in range(4):
                            tq = 48 + dloc * 4 + jp
                            s1 = r + (2 * jp) * 4 + sreg
                            s0 = r + (2 * jp + 1) * 4 + sreg
                            if not cfg.get("nocomp", 0): E(f"v_perm_b32 v{tq}, v{s0}, v{s1}, s{68+e}")
                if half == 1 and sched(n) is not None:
                    ids_[sched(n)] = issue(sched(n))
                for dloc in range(4):
                    d = half * 4 + dloc
                    a = 16 + 4 * d
                    c = "0" if i == 0 else f"v[{a}:{a+3}]"
                    if not cfg.get("nocomp", 0): E(f"v_mfma_f32_16x16x32_bf16 v[{a}:{a+3}], v[12:15], v[{48+dloc*4}:{51+dloc*4}], {c}")
            if i < 7:
                E(f"ds_read_b128 v[12:15], v6 offset:{(i+1)*32}")
        stamp(5)
        E(f"""
        s_lshl_b32 s73, s52, 11
        s_add_u32 s73, s73, {MRG_OFF}
        v_lshlrev_b32 v14, 5, v0
        v_add_u32 v14, s73, v14
        """)
        for d in range(8):
            E(f"v_mov_b32 v{48+d}, v{16+4*d}")
        E("""
        ds_write_b128 v14, v[48:51]
        ds_write_b128 v14, v[52:55] offset:16
        s_waitcnt vmcnt(0) lgkmcnt(0)
        s_barrier
        """)

    main(False)
    stamp(6)
    if cfg.get("notail", 0): E.branch("s_branch L_end")
    E("s_cmp_eq_u32 s52, 7")
    E.branch("s_cbranch_scc1 L_w7tail")
    E("s_cmp_ge_u32 s52, 4")
    E.branch("s_cbranch_scc1 L_proj")
    E(f"""
    s_lshl_b32 s73, s52, 9
    s_add_u32 s73, s73, {MRG_OFF}
    v_lshl_add_u32 v14, v0, 3, s73
    s_lshr_b32 s74, s52, 1
    s_lshl_b32 s75, s74, 6
    s_add_u32 s75, s75, {MLW_OFF}
    v_mov_b32 v15, s75
    ds_read_b128 v[64:67], v15
    ds_read_b128 v[68:71], v15 offset:16
    ds_read_b128 v[72:75], v15 offset:32
    ds_read_b128 v[76:79], v15 offset:48
    """)
    for w in range(8):
        E(f"ds_read_b64 v[{24+2*w}:{25+2*w}], v14 offset:{w*2048}")
    E(f"""
    s_and_b32 s75, s52, 1
    s_lshl_b32 s75, s75, 14
    v_lshlrev_b32 v14, 12, v11
    v_lshl_add_u32 v14, v10, 4, v14
    s_lshl_b32 s73, s57, 15
    s_add_u32 s73, s73, s75
    s_lshl_b32 s75, s55, 9
    s_add_u32 s73, s73, s75
    s_lshl_b32 s75, s74, 8
    s_add_u32 s73, s73, s75
    s_add_u32 s73, s73, {H1BOX}
    v_mov_b32 v42, v8
    v_mov_b32 v43, v9
    v_mov_b32 v46, v8
    v_mov_b32 v47, v9
    s_lshl_b32 s82, s57, 11
    s_lshl_b32 s75, s55, 5
    s_add_u32 s82, s82, s75
    s_lshl_b32 s75, s74, 4
    s_add_u32 s82, s82, s75
    s_add_u32 s82, s82, {H1ML}
    v_lshlrev_b32 v15, 8, v0
    s_waitcnt lgkmcnt(8)
    v_max3_f32 v44, v64, v66, v68
    v_max3_f32 v45, v70, v72, v74
    v_max3_f32 v44, v44, v76, v78
    v_max_f32 v44, v44, v45
    """)
    for w in range(8):
        E(f"v_sub_f32 v{16+w}, v{64+2*w}, v44")
    for w in range(8):
        E(f"v_exp_f32 v{16+w}, v{16+w}")
    E("""
    s_waitcnt lgkmcnt(0)
    v_mul_f32 v40, v16, v24
    v_mul_f32 v41, v16, v25
    v_mul_f32 v45, v16, v65
    """)
    for w in range(1, 8):
        E(f"v_fmac_f32 v40, v{16+w}, v{24+2*w}")
        E(f"v_fmac_f32 v41, v{16+w}, v{25+2*w}")
        E(f"v_fmac_f32 v45, v{16+w}, v{65+2*w}")
    E("buffer_store_dwordx4 v[40:43], v14, s[36:39], s73 offen sc1")
    E("""
    s_mov_b64 exec, 0xff
    buffer_store_dwordx4 v[44:47], v15, s[36:39], s82 offen sc1
    s_mov_b64 exec, -1
    """)
    E.label("L_proj")
    E(f"""
    v_lshrrev_b32 v12, 2, v10
    v_and_b32 v13, 3, v10
    v_lshl_add_u32 v14, v11, 3, v12
    v_mul_u32_u24 v14, 896, v14
    v_lshl_add_u32 v14, v13, 3, v14
    s_lshl_b32 s73, s52, 7
    v_add_u32 v14, s73, v14
    v_lshlrev_b32 v15, 4, v11
    v_add_u32 v15, {COEF_OFF}, v15
    ds_read_b128 v[120:123], v15 offset:128
    """)
    cnt = 1
    for ks in (2, 0, 1):
        for ct in range(4):
            q = 64 + (ks * 4 + ct) * 4
            E(f"ds_read_b64_tr_b16 v[{q}:{q+1}], v14 offset:{ks*28672+ct*32}")
            E(f"ds_read_b64_tr_b16 v[{q+2}:{q+3}], v14 offset:{ks*28672+ct*32+3584}")
        E("s_waitcnt lgkmcnt(0)")
    for ct in range(4):
        q = 64 + (2 * 4 + ct) * 4
        E(f"v_mfma_f32_16x16x32_bf16 v[{128+4*ct}:{131+4*ct}], v[{q}:{q+3}], v[120:123], 0")
    E(f"""
    v_lshrrev_b32 v12, 1, v11
    v_lshlrev_b32 v12, 12, v12
    v_and_b32 v13, 1, v11
    v_lshl_add_u32 v12, v13, 5, v12
    v_lshl_add_u32 v12, v10, 4, v12
    s_mul_i32 s73, s54, {56*4096}
    s_lshl_b32 s74, s58, 6
    s_add_u32 s73, s73, s74
    s_lshl_b32 s74, s52, 15
    s_add_u32 s73, s73, s74
    s_add_u32 s73, s73, {H2BOX}
    s_mov_b32 s76, 0x00020002
    s_mov_b32 s77, 0x00020002
    """)
    for ct in range(4):
        E(f"v_mov_b32 v{146+4*ct}, v8")
        E(f"v_mov_b32 v{147+4*ct}, v9")
    E("s_barrier")
    stamp(8)
    E("""
    ds_read_b128 v[112:115], v15
    ds_read_b128 v[116:119], v15 offset:64
    s_waitcnt lgkmcnt(0)
    """)
    for ks in range(2):
        for ct in range(4):
            q = 64 + (ks * 4 + ct) * 4
            E(f"v_mfma_f32_16x16x32_bf16 v[{128+4*ct}:{131+4*ct}], v[{q}:{q+3}], v[{112+4*ks}:{115+4*ks}], v[{128+4*ct}:{131+4*ct}]")
    for ct in range(4):
        E(f"v_cndmask_b32 v{144+4*ct}, v{128+4*ct}, v{130+4*ct}, s[76:77]")
        E(f"v_cndmask_b32 v{145+4*ct}, v{129+4*ct}, v{131+4*ct}, s[76:77]")
    E("""
    s_mov_b32 exec_lo, 0x00030003
    s_mov_b32 exec_hi, 0x00030003
    """)
    for ct in range(4):
        E(f"s_add_u32 s74, s73, {ct*8192}")
        E(f"buffer_store_dwordx4 v[{144+4*ct}:{147+4*ct}], v12, s[36:39], s74 offen sc1")
    E.branch("s_branch L_end")

    E.label("L_w7tail")
    E(f"""
    s_lshl_b32 s73, s57, 3
    s_add_u32 s73, s73, s55
    s_lshl_b32 s82, s73, 8
    s_add_u32 s82, s82, {H1ML}
    s_lshl_b32 s73, s73, 12
    s_add_u32 s73, s73, {H1BOX}
    v_mov_b32 v15, {G_OFF}
    ds_read_b32 v40, v15
    v_and_b32 v14, 31, v0
    v_lshlrev_b32 v14, 2, v14
    v_add_u32 v14, {COEF_OFF}, v14
    v_lshlrev_b32 v13, 4, v11
    s_mov_b32 s80, 0
    """)
    E.label("L_h1")
    for i in range(4):
        E(f"buffer_load_dwordx4 v[{80+4*i}:{83+4*i}], v13, s[36:39], s82 offen offset:{i*64} sc1")
    for i in range(4):
        E(f"buffer_load_dwordx4 v[{64+4*i}:{67+4*i}], v3, s[36:39], s73 offen offset:{i*1024} sc1")
    E("s_add_u32 s80, s80, 1")
    E("s_waitcnt vmcnt(0)")
    E("v_cmp_eq_u64 s[76:77], v[66:67], v[8:9]")
    for i in range(1, 8):
        E(f"v_cmp_eq_u64 s[78:79], v[{66+4*i}:{67+4*i}], v[8:9]")
        E("s_and_b64 s[76:77], s[76:77], s[78:79]")
    E("s_cmp_eq_u64 s[76:77], exec")
    E.branch("s_cbranch_scc1 L_h1_got")
    E(f"s_cmp_lt_u32 s80, {SPIN}")
    E.branch("s_cbranch_scc1 L_h1")
    E.label("L_h1_got")
    stamp(7)
    if PROF:
        E("v_writelane_b32 v7, s80, 13")
    E(f"""
    v_max3_f32 v96, v80, v84, v88
    v_max_f32 v96, v96, v92
    v_mov_b32 v97, v96
    v_permlane32_swap_b32 v96, v97
    v_max_f32 v96, v96, v97
    v_sub_f32 v80, v80, v96
    v_sub_f32 v84, v84, v96
    v_sub_f32 v88, v88, v96
    v_sub_f32 v92, v92, v96
    v_exp_f32 v80, v80
    v_exp_f32 v84, v84
    v_exp_f32 v88, v88
    v_exp_f32 v92, v92
    v_mul_f32 v98, v80, v81
    v_mul_f32 v64, v80, v64
    v_mul_f32 v65, v80, v65
    v_fmac_f32 v98, v84, v85
    v_fmac_f32 v64, v84, v68
    v_fmac_f32 v65, v84, v69
    v_fmac_f32 v98, v88, v89
    v_fmac_f32 v64, v88, v72
    v_fmac_f32 v65, v88, v73
    v_fmac_f32 v98, v92, v93
    v_fmac_f32 v64, v92, v76
    v_fmac_f32 v65, v92, v77
    v_mov_b32 v99, v98
    v_mov_b32 v66, v64
    v_mov_b32 v67, v65
    v_permlane32_swap_b32 v98, v99
    v_permlane32_swap_b32 v64, v66
    v_permlane32_swap_b32 v65, v67
    v_add_f32 v98, v98, v99
    v_add_f32 v64, v64, v66
    v_add_f32 v65, v65, v67
    v_rcp_f32 v98, v98
    s_waitcnt lgkmcnt(0)
    v_mul_f32 v98, v40, v98
    v_mul_f32 v64, v98, v64
    v_mul_f32 v65, v98, v65
    v_cvt_pk_bf16_f32 v64, v64, v65
    ds_write_b32 v14, v64
    s_waitcnt lgkmcnt(0)
    s_barrier
    s_cmp_ge_u32 s58, 56
    """)
    E.branch("s_cbranch_scc1 L_end")
    E(f"""
    s_mul_i32 s73, s54, 56
    s_add_u32 s73, s73, s58
    s_lshl_b32 s73, s73, 12
    s_add_u32 s73, s73, {H2BOX}
    s_mov_b32 s48, s22
    s_mov_b32 s49, s23
    s_mov_b32 s50, 3584
    s_mul_i32 s74, s54, 896
    s_lshl_b32 s75, s58, 4
    s_add_u32 s74, s74, s75
    v_lshlrev_b32 v14, 2, v0
    s_mov_b32 s80, 0
    """)
    def poll4(lbl, sreg):
        E.label(lbl)
        for i in range(4):
            E(f"buffer_load_dwordx4 v[{64+4*i}:{67+4*i}], v3, s[36:39], {sreg} offen offset:{i*1024} sc1")
        E(f"""
        s_add_u32 s80, s80, 1
        s_waitcnt vmcnt(0)
        v_cmp_eq_u64 s[76:77], v[66:67], v[8:9]
        v_cmp_eq_u64 s[78:79], v[70:71], v[8:9]
        v_cmp_eq_u64 s[84:85], v[74:75], v[8:9]
        v_cmp_eq_u64 s[86:87], v[78:79], v[8:9]
        s_and_b64 s[76:77], s[76:77], s[78:79]
        s_and_b64 s[84:85], s[84:85], s[86:87]
        s_and_b64 s[76:77], s[76:77], s[84:85]
        s_cmp_eq_u64 s[76:77], exec
        """)
        E.branch(f"s_cbranch_scc1 {lbl}_got")
        E(f"s_cmp_lt_u32 s80, {SPIN}")
        E.branch(f"s_cbranch_scc1 {lbl}")
        E.label(lbl + "_got")
        E("""
        v_add_f32 v64, v64, v68
        v_add_f32 v65, v65, v69
        v_add_f32 v72, v72, v76
        v_add_f32 v73, v73, v77
        v_add_f32 v64, v64, v72
        v_add_f32 v65, v65, v73
        """)
    poll4("L_h2", "s73")
    stamp(9)
    if PROF:
        E("v_writelane_b32 v7, s80, 14")
    for rr in (4, 8):
        E(f"v_add_f32_dpp v64, v64, v64 row_ror:{rr} row_mask:0xf bank_mask:0xf")
        E(f"v_add_f32_dpp v65, v65, v65 row_ror:{rr} row_mask:0xf bank_mask:0xf")
    E(f"""
    v_mov_b32 v66, v64
    v_mov_b32 v67, v65
    v_permlane16_swap_b32 v64, v66
    v_permlane16_swap_b32 v65, v67
    v_add_f32 v64, v64, v66
    v_add_f32 v65, v65, v67
    v_mov_b32 v66, v64
    v_mov_b32 v67, v65
    v_permlane32_swap_b32 v64, v66
    v_permlane32_swap_b32 v65, v67
    v_add_f32 v64, v64, v66
    v_add_f32 v65, v65, v67
    v_cvt_pk_bf16_f32 v64, v64, v65
    s_mov_b64 exec, 15
    buffer_store_dword v64, v14, s[48:51], s74 offen
    s_cmp_lg_u32 s2, 0
    """)
    E.branch("s_cbranch_scc1 L_end")
    E("""
    s_mov_b64 exec, 1
    buffer_store_dwordx2 v[8:9], v14, s[36:39], 0 offen sc1
    """)
    E.label("L_end")
    if PROF:
        stamp(10)
        E(f"""
        s_mov_b64 exec, 0xffff
        s_lshl_b32 s73, s2, 3
        s_add_u32 s73, s73, s52
        s_lshl_b32 s73, s73, 6
        s_add_u32 s73, s73, 0x300000
        v_lshlrev_b32 v14, 2, v0
        buffer_store_dword v7, v14, s[36:39], s73 offen
        """)
        if PROF == 2:
            E("""
            v_readlane_b32 s73, v7, 0
            s_not_b32 s73, s73
            v_writelane_b32 v7, s73, 0
            s_mov_b32 s48, s24
            s_mov_b32 s49, s25
            s_mov_b32 s50, 64
            s_mov_b32 s51, 0x20000
            buffer_atomic_umax v7, v14, s[48:51], 0 offen
            """)
    E.label("L_exit")
    E.raw("    s_endpgm")
    E.raw(f""".section .rodata,"a"
.p2align 6
.amdhsa_kernel {KNAME}
  .amdhsa_next_free_vgpr 256
  .amdhsa_next_free_sgpr 102
  .amdhsa_accum_offset 256
  .amdhsa_group_segment_fixed_size 0
  .amdhsa_kernarg_size 96
  .amdhsa_user_sgpr_count 2
  .amdhsa_user_sgpr_kernarg_segment_ptr 1
  .amdhsa_system_sgpr_workgroup_id_x 1
.end_amdhsa_kernel""")
    return E.text()

if __name__ == "__main__":
    out = sys.argv[1] if len(sys.argv) > 1 else "k1.s"
    cfg = {}
    for a in sys.argv[2:]:
        k, v = a.split("=")
        cfg[k] = int(v) if v.lstrip("-").isdigit() else v
    open(out, "w").write(gen(cfg))
```

```python
import sys, math
sys.path.insert(0, "gen")
from emit import Emit

KNAME = "gated_mix__gqa_block_cached__dense_activation_relu__decode_kernel"

W_OFF = 0
WQ_OFF = 86016
W1_OFF = 100352
MRG_OFF = 129024
P_OFF = 145408
Q_OFF = 151552
COEF_OFF = 152576
FAC_OFF = 152832
TAG_OFF = 152896
G_OFF = 152904
MLW_OFF = 152960
FLAG_OFF = 153088
XS_OFF = 153152
LDS_BYTES = 154112
QBOX = 0x1000
MLBOX = 0x20000
H1BOX = 0x40000
H2BOX = 0x140000
H1ML = 0x20000
WS_BYTES = 0x400000

NS = 6
RING = 64
SPIN = 400000

def slot(n): return RING + 32 * (n % NS)

def gen(cfg):
    E = Emit()
    POL = cfg.get("pol", "nt")
    PROF = cfg.get("prof", 0)
    def stamp(k):
        if PROF:
            E(f"""
            s_memrealtime s[98:99]
            s_waitcnt lgkmcnt(0)
            v_writelane_b32 v7, s98, {k}
            """)
    hdr = open("gated_mix__gqa_block_cached__dense_activation_relu__decode.s.ref").read().split("\n")
    for l in hdr:
        if l.startswith("; @launch"): break
        if l.startswith(";"): E.raw(l)
    E.raw(f"; @launch grid=(256,1,1) block=(512,1,1) lds={LDS_BYTES}")
    E.raw('.amdgcn_target "amdgcn-amd-amdhsa--gfx950"')
    E.raw(".text")
    E.raw(f".globl {KNAME}\n.p2align 8\n.type {KNAME},@function\n{KNAME}:")
    E("s_cmp_ge_u32 s2, 256")
    E.branch("s_cbranch_scc1 L_exit")
    if PROF:
        E("v_mov_b32 v7, 0")
    stamp(0)
    E("""
    s_load_dwordx16 s[4:19], s[0:1], 0
    s_load_dwordx8 s[20:27], s[0:1], 64
    v_lshrrev_b32 v1, 6, v0
    v_and_b32 v0, 63, v0
    v_readfirstlane_b32 s52, v1
    s_and_b32 s53, s2, 7
    s_lshr_b32 s54, s2, 6
    s_bfe_u32 s55, s2, 0x30003
    s_lshr_b32 s56, s2, 3
    s_lshl_b32 s57, s54, 3
    s_add_u32 s57, s57, s53
    s_lshl_b32 s58, s53, 3
    s_add_u32 s58, s58, s55
    v_and_b32 v10, 15, v0
    v_lshrrev_b32 v11, 4, v0
    v_lshrrev_b32 v12, 2, v10
    v_and_b32 v13, 3, v10
    v_lshlrev_b32 v1, 9, v12
    v_lshl_add_u32 v1, v11, 6, v1
    v_lshl_add_u32 v1, v13, 4, v1
    v_add_u32 v2, 0x1000, v1
    v_lshlrev_b32 v3, 4, v0
    v_add_u32 v4, 0x1000, v3
    s_lshl_b32 s59, s57, 22
    s_lshl_b32 s60, s55, 19
    s_add_u32 s59, s59, s60
    s_lshl_b32 s60, s52, 13
    s_add_u32 s59, s59, s60
    s_mov_b32 s62, 0x22222222
    s_mov_b32 s63, 0x22222222
    s_mov_b32 s64, 0x44444444
    s_mov_b32 s65, 0x44444444
    s_mov_b32 s66, 0x88888888
    s_mov_b32 s67, 0x88888888
    s_mov_b32 s68, 0x05040100
    s_mov_b32 s69, 0x07060302
    s_mov_b32 s30, 0x8000000
    s_mov_b32 s31, 0x20000
    s_mov_b32 s34, 0x8000000
    s_mov_b32 s35, 0x20000
    """)
    E(f"s_mov_b32 s38, {WS_BYTES}")
    E("""
    s_mov_b32 s39, 0x20000
    s_mov_b32 s43, 0x20000
    s_mov_b32 s47, 0x20000
    s_mov_b32 s51, 0x20000
    s_min_u32 s72, s58, 55
    s_waitcnt lgkmcnt(0)
    s_mov_b32 s28, s6
    s_mov_b32 s29, s7
    s_mov_b32 s32, s8
    s_mov_b32 s33, s9
    s_mov_b32 s36, s26
    s_mov_b32 s37, s27
    s_mov_b32 s44, s4
    s_mov_b32 s45, s5
    s_mov_b32 s46, 3584
    s_mov_b32 s40, s10
    s_mov_b32 s41, s11
    s_mov_b32 s42, 3670016
    s_mov_b32 s48, s20
    s_mov_b32 s49, s21
    s_mov_b32 s50, 896
    """)
    E(f"""
    s_mul_i32 s73, s52, 768
    s_add_u32 s73, s73, {P_OFF}
    v_and_b32 v5, 1, v11
    v_lshlrev_b32 v5, 8, v5
    v_and_b32 v14, 1, v12
    v_lshl_add_u32 v5, v14, 4, v5
    v_lshl_add_u32 v5, v13, 2, v5
    v_lshrrev_b32 v14, 1, v12
    v_lshl_add_u32 v5, v14, 1, v5
    v_add_u32 v5, s73, v5
    v_lshrrev_b32 v6, 3, v10
    v_lshlrev_b32 v6, 8, v6
    v_xor_b32 v14, v12, v11
    v_and_b32 v14, 1, v14
    v_cmp_eq_u32 vcc, 1, v14
    v_mov_b32 v15, 0x200
    v_cndmask_b32 v6, v6, v15, vcc
    v_lshrrev_b32 v14, 1, v11
    v_lshl_add_u32 v6, v14, 4, v6
    v_add_u32 v6, s73, v6
    v_lshl_add_u32 v14, v0, 2, s73
    v_mov_b32 v15, 0
    ds_write_b32 v14, v15 offset:512
    """)
    E(f"""
    v_mov_b32 v14, {FLAG_OFF}
    ds_write_b32 v14, v15
    """)
    if not cfg.get("nos0", 0):
        E("s_cmp_eq_u32 s52, 0")
        E.branch("s_cbranch_scc1 L_w0")

    def issue(n):
        r = slot(n)
        i = n & 7
        E(f"s_add_u32 s61, s59, {i * 65536}")
        last = None
        if n < 8:
            for u in range(4):
                for t in range(2):
                    va = "v1" if u < 2 else "v2"
                    off = (u & 1) * 2048 + t * 256
                    q = r + (u * 2 + t) * 4
                    if cfg.get("klin", 0):
                        j = u * 2 + t
                        va = "v3" if j < 4 else "v4"
                        off = (j & 3) * 1024
                    last = E.ins(f"buffer_load_dwordx4 v[{q}:{q+3}], {va}, s[28:31], s61 offen offset:{off} {POL}")
        else:
            for j in range(8):
                va = "v3" if j < 4 else "v4"
                off = (j & 3) * 1024
                q = r + j * 4
                last = E.ins(f"buffer_load_dwordx4 v[{q}:{q+3}], {va}, s[32:35], s61 offen offset:{off} {cfg.get('polv', POL)}")
        return last

    def prologue(pace=0, bar=False):
        ids = {}
        for n in range(NS):
            if pace and n >= pace:
                E.wait_vm(ids[n - pace])
            ids[n] = issue(n)
            if bar and n == 0:
                E("s_waitcnt lgkmcnt(0)")
                E("s_barrier")
        return ids

    SP = cfg.get("spol", "nt")
    E("s_cmp_lg_u32 s52, 1" if not cfg.get("nos0", 0) else "s_cmp_lg_u32 s52, 100")
    E.branch("s_cbranch_scc1 L_pro")
    E(f"""
    s_mov_b32 s40, s16
    s_mov_b32 s41, s17
    s_mov_b32 s42, 1605632
    v_lshrrev_b32 v14, 2, v0
    v_mul_u32_u24 v14, 3584, v14
    v_and_b32 v15, 3, v0
    v_lshl_add_u32 v14, v15, 4, v14
    s_lshl_b32 s73, s72, 6
    s_mul_i32 s75, s54, 896
    buffer_load_dwordx4 v[56:59], v3, s[44:47], s75 offen {SP}
    buffer_load_dwordx4 v[60:63], v3, s[48:51], 0 offen {SP}
    s_mov_b32 m0, {XS_OFF}
    s_mov_b32 exec_hi, 0x00ffffff
    buffer_load_dwordx4 v3, s[44:47], s75 offen {SP} lds
    s_mov_b32 exec_hi, -1
    """)
    for i in range(28):
        E(f"s_mov_b32 m0, {W1_OFF + i * 1024}")
        E(f"s_add_u32 s74, s73, {i * 57344}")
        E(f"buffer_load_dwordx4 v14, s[40:43], s74 offen {SP} lds")
    E.label("L_pro")
    if cfg.get("dprio", 0): E("s_setprio 3")
    base_vm = E.vm
    ids = prologue(cfg.get('pace', 0), bar=True)
    vm_after_prologue = E.vm
    stamp(1)
    E("s_cmp_eq_u32 s52, 1" if not cfg.get("nos0", 0) else "s_cmp_eq_u32 s52, 100")
    E.branch("s_cbranch_scc1 L_w1")
    E.label("L_flag")
    if cfg.get("noflag", 0): E.branch("s_branch L_main")
    E(f"v_mov_b32 v14, {FLAG_OFF}")
    E.label("L_flag_loop")
    E("""
    ds_read_b32 v15, v14
    s_waitcnt lgkmcnt(0)
    v_readfirstlane_b32 s73, v15
    s_cmp_lg_u32 s73, 0
    """)
    E.branch("s_cbranch_scc1 L_main")
    E("s_sleep 2")
    E.branch("s_branch L_flag_loop")

    E.label("L_w0")
    E("s_setprio 3")
    E("s_load_dwordx2 s[70:71], s[26:27], 0")
    E(f"""
    v_lshrrev_b32 v14, 1, v0
    v_lshlrev_b32 v14, 13, v14
    v_and_b32 v15, 1, v0
    v_lshl_add_u32 v14, v15, 4, v14
    s_lshl_b32 s73, s53, 10
    s_lshl_b32 s74, s56, 5
    s_add_u32 s73, s73, s74
    """)
    for i in range(14):
        E(f"s_mov_b32 m0, {WQ_OFF + i * 1024}")
        E(f"s_add_u32 s74, s73, {i * 262144}")
        E(f"buffer_load_dwordx4 v14, s[40:43], s74 offen {SP} lds")
    E(f"""
    v_mul_u32_u24 v15, 896, v13
    v_lshl_add_u32 v15, v11, 4, v15
    """)
    for ks in range(14):
        E(f"buffer_load_dwordx4 v[{64+4*ks}:{67+4*ks}], v15, s[44:47], 0 offen offset:{ks*64} {SP}")
    E(f"""
    v_lshl_add_u32 v14, v11, 3, v12
    v_lshlrev_b32 v14, 5, v14
    v_lshl_add_u32 v14, v13, 3, v14
    v_add_u32 v14, {WQ_OFF}, v14
    s_waitcnt lgkmcnt(0)
    s_barrier
    s_add_u32 s70, s70, 1
    s_addc_u32 s71, s71, 0
    v_mov_b32 v8, s70
    v_mov_b32 v9, s71
    s_waitcnt vmcnt(0)
    """)
    stamp(1)
    for ks in range(14):
        E(f"ds_read_b64_tr_b16 v[{128+4*ks}:{129+4*ks}], v14 offset:{ks*1024}")
        E(f"ds_read_b64_tr_b16 v[{130+4*ks}:{131+4*ks}], v14 offset:{ks*1024+128}")
        if ks % 7 == 6:
            E("s_waitcnt lgkmcnt(0)")
    for ks in range(14):
        c = "0" if ks == 0 else "v[48:51]"
        E(f"v_mfma_f32_16x16x32_bf16 v[48:51], v[{128+4*ks}:{131+4*ks}], v[{64+4*ks}:{67+4*ks}], {c}")
    E(f"""
    v_lshlrev_b32 v14, 14, v10
    v_lshl_add_u32 v14, v11, 4, v14
    s_lshl_b32 s73, s53, 11
    s_lshl_b32 s74, s56, 6
    s_add_u32 s73, s73, s74
    s_add_u32 s73, s73, {QBOX}
    v_mov_b32 v54, v8
    v_mov_b32 v55, v9
    v_cvt_pk_bf16_f32 v52, v48, v49
    v_cvt_pk_bf16_f32 v53, v50, v51
    s_mov_b32 exec_lo, 0x000f000f
    s_mov_b32 exec_hi, 0x000f000f
    buffer_store_dwordx4 v[52:55], v14, s[36:39], s73 offen sc1
    s_mov_b64 exec, -1
    s_lshl_b32 s73, s57, 11
    s_add_u32 s73, s73, {QBOX}
    s_mov_b32 s80, 0
    """)
    stamp(2)
    E.label("L_w0_poll")
    E(f"""
    buffer_load_dwordx4 v[56:59], v3, s[36:39], s73 offen sc1
    buffer_load_dwordx4 v[60:63], v3, s[36:39], s73 offen offset:1024 sc1
    s_add_u32 s80, s80, 1
    s_waitcnt vmcnt(0)
    v_cmp_eq_u64 s[76:77], v[58:59], v[8:9]
    v_cmp_eq_u64 s[78:79], v[62:63], v[8:9]
    s_and_b64 s[76:77], s[76:77], s[78:79]
    s_cmp_eq_u64 s[76:77], exec
    """)
    E.branch("s_cbranch_scc1 L_w0_got")
    E(f"s_cmp_lt_u32 s80, {SPIN}")
    E.branch("s_cbranch_scc1 L_w0_poll")
    E.label("L_w0_got")
    stamp(11)
    if PROF:
        E("v_writelane_b32 v7, s80, 12")
    E(f"""
    v_lshlrev_b32 v14, 3, v0
    v_add_u32 v14, {Q_OFF}, v14
    ds_write_b64 v14, v[56:57]
    ds_write_b64 v14, v[60:61] offset:512
    v_mov_b32 v15, {TAG_OFF}
    ds_write_b64 v15, v[8:9]
    v_mov_b32 v15, {FLAG_OFF}
    v_mov_b32 v14, 1
    s_waitcnt lgkmcnt(0)
    ds_write_b32 v15, v14
    """)
    if not cfg.get("dprio", 0): E("s_setprio 0")
    E.vm = base_vm
    ids2 = prologue()
    assert ids2 == ids and E.vm == vm_after_prologue
    E.branch("s_branch L_main")

    E.label("L_w1")
    E(f"""
    v_lshl_add_u32 v14, v11, 3, v12
    v_lshlrev_b32 v14, 6, v14
    v_lshl_add_u32 v14, v13, 3, v14
    v_add_u32 v14, {W1_OFF}, v14
    v_lshlrev_b32 v15, 4, v11
    v_add_u32 v15, {XS_OFF}, v15
    s_waitcnt vmcnt({8*NS})
    """)
    def ffn_rd(ks):
        xb = 16 + 4 * (ks & 1)
        tb = 24 + 8 * (ks & 1)
        E(f"ds_read_b128 v[{xb}:{xb+3}], v15 offset:{ks*64}")
        for ct in range(2):
            q = tb + 4 * ct
            E(f"ds_read_b64_tr_b16 v[{q}:{q+1}], v14 offset:{ks*2048+ct*32}")
            E(f"ds_read_b64_tr_b16 v[{q+2}:{q+3}], v14 offset:{ks*2048+ct*32+256}")
    ffn_rd(0)
    E("s_mov_b32 s74, 0xffff0000")
    E("v_mov_b32 v40, 0")
    for i in range(4):
        E(f"""
        v_lshlrev_b32 v41, 16, v{56+i}
        v_lshlrev_b32 v42, 16, v{60+i}
        v_fmac_f32 v40, v41, v42
        v_and_b32 v41, s74, v{56+i}
        v_and_b32 v42, s74, v{60+i}
        v_fmac_f32 v40, v41, v42
        """)
    E("""
    v_cmp_gt_u32 vcc, 56, v0
    v_cndmask_b32 v40, 0, v40, vcc
    """)
    for ks in range(14):
        if ks + 1 < 14:
            ffn_rd(ks + 1)
            E("s_waitcnt lgkmcnt(5)")
        else:
            E("s_waitcnt lgkmcnt(0)")
        xb = 16 + 4 * (ks & 1)
        tb = 24 + 8 * (ks & 1)
        for ct in range(2):
            d = 48 + ct * 4
            c = "0" if ks == 0 else f"v[{d}:{d+3}]"
            E(f"v_mfma_f32_16x16x32_bf16 v[{d}:{d+3}], v[{tb+4*ct}:{tb+4*ct+3}], v[{xb}:{xb+3}], {c}")
    for r in (8, 4, 2, 1):
        E(f"v_add_f32_dpp v40, v40, v40 row_ror:{r} row_mask:0xf bank_mask:0xf")
    E("""
    v_mov_b32 v41, v40
    v_permlane16_swap_b32 v40, v41
    v_add_f32 v40, v40, v41
    v_mov_b32 v41, v40
    v_permlane32_swap_b32 v40, v41
    v_add_f32 v40, v40, v41
    v_mul_f32 v40, 0xbfb8aa3b, v40
    v_exp_f32 v40, v40
    v_add_f32 v40, 1.0, v40
    v_rcp_f32 v40, v40
    v_sub_f32 v41, 1.0, v40
    s_cmp_lt_u32 s58, 56
    s_cselect_b64 s[76:77], -1, 0
    """)
    E(f"""
    v_mov_b32 v15, {G_OFF}
    ds_write_b32 v15, v40
    """)
    for r in range(8):
        E(f"""
        v_max_f32 v{48+r}, 0, v{48+r}
        v_mul_f32 v{48+r}, v41, v{48+r}
        v_cndmask_b32 v{48+r}, 0, v{48+r}, s[76:77]
        """)
    E(f"""
    v_cvt_pk_bf16_f32 v56, v48, v49
    v_cvt_pk_bf16_f32 v57, v50, v51
    v_cvt_pk_bf16_f32 v58, v52, v53
    v_cvt_pk_bf16_f32 v59, v54, v55
    v_lshlrev_b32 v14, 3, v11
    v_add_u32 v14, {COEF_OFF + 128}, v14
    s_mov_b32 exec_lo, 0x00010001
    s_mov_b32 exec_hi, 0x00010001
    ds_write_b64 v14, v[56:57]
    ds_write_b64 v14, v[58:59] offset:32
    s_mov_b64 exec, -1
    """)
    stamp(2)
    E.branch("s_branch L_flag")

    LA = cfg.get("la", NS)
    def sched(n):
        if n < LA: k = NS + n
        elif n < NS: return None
        else: k = n + LA
        return k if k < 16 else None
    def main(w7):
        ids_ = dict(ids)
        E.vm = vm_after_prologue
        E.label("L_main")
        stamp(3)
        E(f"""
        v_mov_b32 v15, {TAG_OFF}
        ds_read_b64 v[8:9], v15
        v_bfe_u32 v14, v10, 2, 1
        v_lshlrev_b32 v14, 9, v14
        v_lshl_add_u32 v14, v11, 6, v14
        v_lshl_add_u32 v14, v13, 4, v14
        v_add_u32 v14, {Q_OFF}, v14
        ds_read_b128 v[16:19], v14
        ds_read_b128 v[20:23], v14 offset:256
        s_mov_b32 s40, s12
        s_mov_b32 s41, s13
        s_mov_b32 s42, 3670016
        s_mov_b32 s44, s18
        s_mov_b32 s45, s19
        s_mov_b32 s46, 1605632
        s_mov_b32 s81, 0x3db8aa3b
        s_waitcnt lgkmcnt(0)
        """)
        DP = cfg.get("dprio", 0)
        for n in range(8):
            r = slot(n)
            if DP and n % 4 == 0: E(f"s_setprio {3 - n // 4}")
            E.wait_vm(ids_[n])
            for t in range(2):
                for u in range(4):
                    d = 48 + 4 * u
                    q = r + (u * 2 + t) * 4
                    c = "0" if t == 0 else f"v[{d}:{d+3}]"
                    if not cfg.get("nocomp", 0): E(f"v_mfma_f32_16x16x32_bf16 v[{d}:{d+3}], v[{16+4*t}:{19+4*t}], v[{q}:{q+3}], {c}")
            if sched(n) is not None:
                ids_[sched(n)] = issue(sched(n))
            if n == cfg.get("stage_at", 3) and not cfg.get("nostage", 0):
                E(f"""
                s_mul_i32 s73, s52, 3584
                s_lshl_b32 s74, s53, 9
                s_lshl_b32 s75, s55, 5
                s_add_u32 s74, s74, s75
                s_mul_i32 s74, s74, 896
                s_add_u32 s74, s74, s73
                s_add_u32 s75, s74, {256*896}
                s_mul_i32 s82, s72, {32*896}
                s_add_u32 s82, s82, s73
                s_mov_b32 exec_hi, 0x00ffffff
                """)
                for blk in range(3):
                    E(f"s_add_u32 m0, s73, {W_OFF + blk * 28672}")
                    so = ["s74", "s75", "s82"][blk]
                    srd = "s[40:43]" if blk < 2 else "s[44:47]"
                    for k in range(4):
                        E(f"buffer_load_dwordx4 v3, {srd}, {so} offen offset:{k*896} {SP} lds")
                E("s_mov_b32 exec_hi, -1")
            for u in range(4):
                d = 48 + 4 * u
                E(f"v_cndmask_b32 v{32+u}, v{d}, v{d+1}, s[62:63]")
            for u in range(4):
                d = 48 + 4 * u
                E(f"v_cndmask_b32 v{32+u}, v{32+u}, v{d+2}, s[64:65]")
            for u in range(4):
                d = 48 + 4 * u
                E(f"v_cndmask_b32 v{32+u}, v{32+u}, v{d+3}, s[66:67]")
            for u in range(4):
                E(f"v_add_f32_dpp v{32+u}, v{32+u}, v{32+u} quad_perm:[1,0,3,2] row_mask:0xf bank_mask:0xf")
            for u in range(4):
                E(f"v_add_f32_dpp v{32+u}, v{32+u}, v{32+u} quad_perm:[2,3,0,1] row_mask:0xf bank_mask:0xf")
            E(f"""
            v_cndmask_b32 v{24+n}, v32, v33, s[62:63]
            v_cndmask_b32 v{24+n}, v{24+n}, v34, s[64:65]
            v_cndmask_b32 v{24+n}, v{24+n}, v35, s[66:67]
            """)
        stamp(4)
        E("""
        v_max3_f32 v32, v24, v25, v26
        v_max3_f32 v33, v27, v28, v29
        v_max3_f32 v32, v32, v30, v31
        v_max_f32 v32, v32, v33
        """)
        for r in (8, 4, 2, 1):
            E(f"v_max_f32_dpp v32, v32, v32 row_ror:{r} row_mask:0xf bank_mask:0xf")
        E("v_mul_f32 v36, s81, v32")
        for i in range(8):
            E(f"v_fma_f32 v{24+i}, v{24+i}, s81, -v36")
        for i in range(8):
            E(f"v_exp_f32 v{24+i}, v{24+i}")
        E("""
        v_add_f32 v32, v24, v25
        v_add_f32 v33, v26, v27
        v_add_f32 v34, v28, v29
        v_add_f32 v35, v30, v31
        v_add_f32 v32, v32, v33
        v_add_f32 v34, v34, v35
        v_add_f32 v37, v32, v34
        """)
        for i in range(0, 8, 2):
            E(f"v_cvt_pk_bf16_f32 v{40+i//2}, v{24+i}, v{25+i}")
        for r in (8, 4, 2, 1):
            E(f"v_add_f32_dpp v37, v37, v37 row_ror:{r} row_mask:0xf bank_mask:0xf")
        for i in range(0, 8, 2):
            E(f"ds_write_b16 v5, v{40+i//2} offset:{i*32}")
            E(f"ds_write_b16_d16_hi v5, v{40+i//2} offset:{(i+1)*32}")
        E(f"""
        s_lshl_b32 s73, s52, 3
        s_add_u32 s73, s73, {MLW_OFF}
        v_lshl_add_u32 v14, v0, 2, s73
        s_mov_b32 exec_lo, 0x00010001
        s_mov_b32 exec_hi, 0
        ds_write_b64 v14, v[36:37]
        s_mov_b64 exec, -1
        s_waitcnt lgkmcnt(0)
        ds_read_b128 v[12:15], v6
        """)
        ml_ids = None
        for n in range(8, 16):
            i = n - 8
            r = slot(n)
            pa = 12 if (i % 2 == 0) else 44
            pn = 44 if (i % 2 == 0) else 12
            if DP and n % 4 == 0: E(f"s_setprio {3 - n // 4}")
            E.wait_vm(ids_[n])
            E("s_waitcnt lgkmcnt(0)")
            for half in range(2):
                for ii in range(2):
                    sreg = half * 2 + ii
                    for e in range(2):
                        dloc = ii * 2 + e
                        for jp in range(4):
                            tq = 48 + dloc * 4 + jp
                            s1 = r + (2 * jp) * 4 + sreg
                            s0 = r + (2 * jp + 1) * 4 + sreg
                            if not cfg.get("nocomp", 0): E(f"v_perm_b32 v{tq}, v{s0}, v{s1}, s{68+e}")
                if half == 1 and sched(n) is not None:
                    ids_[sched(n)] = issue(sched(n))
                for dloc in range(4):
                    d = half * 4 + dloc
                    a = 16 + 4 * d
                    c = "0" if i == 0 else f"v[{a}:{a+3}]"
                    if not cfg.get("nocomp", 0): E(f"v_mfma_f32_16x16x32_bf16 v[{a}:{a+3}], v[12:15], v[{48+dloc*4}:{51+dloc*4}], {c}")
            if i < 7:
                E(f"ds_read_b128 v[12:15], v6 offset:{(i+1)*32}")
        stamp(5)
        E(f"""
        s_lshl_b32 s73, s52, 11
        s_add_u32 s73, s73, {MRG_OFF}
        v_lshlrev_b32 v14, 5, v0
        v_add_u32 v14, s73, v14
        """)
        for d in range(8):
            E(f"v_mov_b32 v{48+d}, v{16+4*d}")
        E("""
        ds_write_b128 v14, v[48:51]
        ds_write_b128 v14, v[52:55] offset:16
        s_waitcnt vmcnt(0) lgkmcnt(0)
        s_barrier
        """)

    main(False)
    stamp(6)
    if cfg.get("notail", 0): E.branch("s_branch L_end")
    E("s_cmp_eq_u32 s52, 7")
    E.branch("s_cbranch_scc1 L_w7tail")
    E("s_cmp_ge_u32 s52, 4")
    E.branch("s_cbranch_scc1 L_proj")
    E(f"""
    s_lshl_b32 s73, s52, 9
    s_add_u32 s73, s73, {MRG_OFF}
    v_lshl_add_u32 v14, v0, 3, s73
    s_lshr_b32 s74, s52, 1
    s_lshl_b32 s75, s74, 6
    s_add_u32 s75, s75, {MLW_OFF}
    v_mov_b32 v15, s75
    ds_read_b128 v[64:67], v15
    ds_read_b128 v[68:71], v15 offset:16
    ds_read_b128 v[72:75], v15 offset:32
    ds_read_b128 v[76:79], v15 offset:48
    """)
    for w in range(8):
        E(f"ds_read_b64 v[{24+2*w}:{25+2*w}], v14 offset:{w*2048}")
    E(f"""
    s_and_b32 s75, s52, 1
    s_lshl_b32 s75, s75, 14
    v_lshlrev_b32 v14, 12, v11
    v_lshl_add_u32 v14, v10, 4, v14
    s_lshl_b32 s73, s57, 15
    s_add_u32 s73, s73, s75
    s_lshl_b32 s75, s55, 9
    s_add_u32 s73, s73, s75
    s_lshl_b32 s75, s74, 8
    s_add_u32 s73, s73, s75
    s_add_u32 s73, s73, {H1BOX}
    v_mov_b32 v42, v8
    v_mov_b32 v43, v9
    v_mov_b32 v46, v8
    v_mov_b32 v47, v9
    s_lshl_b32 s82, s57, 11
    s_lshl_b32 s75, s55, 5
    s_add_u32 s82, s82, s75
    s_lshl_b32 s75, s74, 4
    s_add_u32 s82, s82, s75
    s_add_u32 s82, s82, {H1ML}
    v_lshlrev_b32 v15, 8, v0
    s_waitcnt lgkmcnt(8)
    v_max3_f32 v44, v64, v66, v68
    v_max3_f32 v45, v70, v72, v74
    v_max3_f32 v44, v44, v76, v78
    v_max_f32 v44, v44, v45
    """)
    for w in range(8):
        E(f"v_sub_f32 v{16+w}, v{64+2*w}, v44")
    for w in range(8):
        E(f"v_exp_f32 v{16+w}, v{16+w}")
    E("""
    s_waitcnt lgkmcnt(0)
    v_mul_f32 v40, v16, v24
    v_mul_f32 v41, v16, v25
    v_mul_f32 v45, v16, v65
    """)
    for w in range(1, 8):
        E(f"v_fmac_f32 v40, v{16+w}, v{24+2*w}")
        E(f"v_fmac_f32 v41, v{16+w}, v{25+2*w}")
        E(f"v_fmac_f32 v45, v{16+w}, v{65+2*w}")
    E("buffer_store_dwordx4 v[40:43], v14, s[36:39], s73 offen sc1")
    E("""
    s_mov_b64 exec, 0xff
    buffer_store_dwordx4 v[44:47], v15, s[36:39], s82 offen sc1
    s_mov_b64 exec, -1
    """)
    E.label("L_proj")
    E(f"""
    v_lshrrev_b32 v12, 2, v10
    v_and_b32 v13, 3, v10
    v_lshl_add_u32 v14, v11, 3, v12
    v_mul_u32_u24 v14, 896, v14
    v_lshl_add_u32 v14, v13, 3, v14
    s_lshl_b32 s73, s52, 7
    v_add_u32 v14, s73, v14
    v_lshlrev_b32 v15, 4, v11
    v_add_u32 v15, {COEF_OFF}, v15
    ds_read_b128 v[120:123], v15 offset:128
    """)
    cnt = 1
    for ks in (2, 0, 1):
        for ct in range(4):
            q = 64 + (ks * 4 + ct) * 4
            E(f"ds_read_b64_tr_b16 v[{q}:{q+1}], v14 offset:{ks*28672+ct*32}")
            E(f"ds_read_b64_tr_b16 v[{q+2}:{q+3}], v14 offset:{ks*28672+ct*32+3584}")
        E("s_waitcnt lgkmcnt(0)")
    for ct in range(4):
        q = 64 + (2 * 4 + ct) * 4
        E(f"v_mfma_f32_16x16x32_bf16 v[{128+4*ct}:{131+4*ct}], v[{q}:{q+3}], v[120:123], 0")
    E(f"""
    v_lshrrev_b32 v12, 1, v11
    v_lshlrev_b32 v12, 12, v12
    v_and_b32 v13, 1, v11
    v_lshl_add_u32 v12, v13, 5, v12
    v_lshl_add_u32 v12, v10, 4, v12
    s_mul_i32 s73, s54, {56*4096}
    s_lshl_b32 s74, s58, 6
    s_add_u32 s73, s73, s74
    s_lshl_b32 s74, s52, 15
    s_add_u32 s73, s73, s74
    s_add_u32 s73, s73, {H2BOX}
    s_mov_b32 s76, 0x00020002
    s_mov_b32 s77, 0x00020002
    """)
    for ct in range(4):
        E(f"v_mov_b32 v{146+4*ct}, v8")
        E(f"v_mov_b32 v{147+4*ct}, v9")
    E("s_barrier")
    stamp(8)
    E("""
    ds_read_b128 v[112:115], v15
    ds_read_b128 v[116:119], v15 offset:64
    s_waitcnt lgkmcnt(0)
    """)
    for ks in range(2):
        for ct in range(4):
            q = 64 + (ks * 4 + ct) * 4
            E(f"v_mfma_f32_16x16x32_bf16 v[{128+4*ct}:{131+4*ct}], v[{q}:{q+3}], v[{112+4*ks}:{115+4*ks}], v[{128+4*ct}:{131+4*ct}]")
    for ct in range(4):
        E(f"v_cndmask_b32 v{144+4*ct}, v{128+4*ct}, v{130+4*ct}, s[76:77]")
        E(f"v_cndmask_b32 v{145+4*ct}, v{129+4*ct}, v{131+4*ct}, s[76:77]")
    E("""
    s_mov_b32 exec_lo, 0x00030003
    s_mov_b32 exec_hi, 0x00030003
    """)
    for ct in range(4):
        E(f"s_add_u32 s74, s73, {ct*8192}")
        E(f"buffer_store_dwordx4 v[{144+4*ct}:{147+4*ct}], v12, s[36:39], s74 offen sc1")
    E.branch("s_branch L_end")

    E.label("L_w7tail")
    E(f"""
    s_lshl_b32 s73, s57, 3
    s_add_u32 s73, s73, s55
    s_lshl_b32 s82, s73, 8
    s_add_u32 s82, s82, {H1ML}
    s_lshl_b32 s73, s73, 12
    s_add_u32 s73, s73, {H1BOX}
    v_mov_b32 v15, {G_OFF}
    ds_read_b32 v40, v15
    v_and_b32 v14, 31, v0
    v_lshlrev_b32 v14, 2, v14
    v_add_u32 v14, {COEF_OFF}, v14
    v_lshlrev_b32 v13, 4, v11
    s_mov_b32 s80, 0
    """)
    E.label("L_h1")
    for i in range(4):
        E(f"buffer_load_dwordx4 v[{80+4*i}:{83+4*i}], v13, s[36:39], s82 offen offset:{i*64} sc1")
    for i in range(4):
        E(f"buffer_load_dwordx4 v[{64+4*i}:{67+4*i}], v3, s[36:39], s73 offen offset:{i*1024} sc1")
    E("s_add_u32 s80, s80, 1")
    E("s_waitcnt vmcnt(0)")
    E("v_cmp_eq_u64 s[76:77], v[66:67], v[8:9]")
    for i in range(1, 8):
        E(f"v_cmp_eq_u64 s[78:79], v[{66+4*i}:{67+4*i}], v[8:9]")
        E("s_and_b64 s[76:77], s[76:77], s[78:79]")
    E("s_cmp_eq_u64 s[76:77], exec")
    E.branch("s_cbranch_scc1 L_h1_got")
    E(f"s_cmp_lt_u32 s80, {SPIN}")
    E.branch("s_cbranch_scc1 L_h1")
    E.label("L_h1_got")
    stamp(7)
    if PROF:
        E("v_writelane_b32 v7, s80, 13")
    E(f"""
    v_max3_f32 v96, v80, v84, v88
    v_max_f32 v96, v96, v92
    v_mov_b32 v97, v96
    v_permlane32_swap_b32 v96, v97
    v_max_f32 v96, v96, v97
    v_sub_f32 v80, v80, v96
    v_sub_f32 v84, v84, v96
    v_sub_f32 v88, v88, v96
    v_sub_f32 v92, v92, v96
    v_exp_f32 v80, v80
    v_exp_f32 v84, v84
    v_exp_f32 v88, v88
    v_exp_f32 v92, v92
    v_mul_f32 v98, v80, v81
    v_mul_f32 v64, v80, v64
    v_mul_f32 v65, v80, v65
    v_fmac_f32 v98, v84, v85
    v_fmac_f32 v64, v84, v68
    v_fmac_f32 v65, v84, v69
    v_fmac_f32 v98, v88, v89
    v_fmac_f32 v64, v88, v72
    v_fmac_f32 v65, v88, v73
    v_fmac_f32 v98, v92, v93
    v_fmac_f32 v64, v92, v76
    v_fmac_f32 v65, v92, v77
    v_mov_b32 v99, v98
    v_mov_b32 v66, v64
    v_mov_b32 v67, v65
    v_permlane32_swap_b32 v98, v99
    v_permlane32_swap_b32 v64, v66
    v_permlane32_swap_b32 v65, v67
    v_add_f32 v98, v98, v99
    v_add_f32 v64, v64, v66
    v_add_f32 v65, v65, v67
    v_rcp_f32 v98, v98
    s_waitcnt lgkmcnt(0)
    v_mul_f32 v98, v40, v98
    v_mul_f32 v64, v98, v64
    v_mul_f32 v65, v98, v65
    v_cvt_pk_bf16_f32 v64, v64, v65
    ds_write_b32 v14, v64
    s_waitcnt lgkmcnt(0)
    s_barrier
    s_cmp_ge_u32 s58, 56
    """)
    E.branch("s_cbranch_scc1 L_end")
    E(f"""
    s_mul_i32 s73, s54, 56
    s_add_u32 s73, s73, s58
    s_lshl_b32 s73, s73, 12
    s_add_u32 s73, s73, {H2BOX}
    s_mov_b32 s48, s22
    s_mov_b32 s49, s23
    s_mov_b32 s50, 3584
    s_mul_i32 s74, s54, 896
    s_lshl_b32 s75, s58, 4
    s_add_u32 s74, s74, s75
    v_lshlrev_b32 v14, 2, v0
    s_mov_b32 s80, 0
    """)
    def poll4(lbl, sreg):
        E.label(lbl)
        for i in range(4):
            E(f"buffer_load_dwordx4 v[{64+4*i}:{67+4*i}], v3, s[36:39], {sreg} offen offset:{i*1024} sc1")
        E(f"""
        s_add_u32 s80, s80, 1
        s_waitcnt vmcnt(0)
        v_cmp_eq_u64 s[76:77], v[66:67], v[8:9]
        v_cmp_eq_u64 s[78:79], v[70:71], v[8:9]
        v_cmp_eq_u64 s[84:85], v[74:75], v[8:9]
        v_cmp_eq_u64 s[86:87], v[78:79], v[8:9]
        s_and_b64 s[76:77], s[76:77], s[78:79]
        s_and_b64 s[84:85], s[84:85], s[86:87]
        s_and_b64 s[76:77], s[76:77], s[84:85]
        s_cmp_eq_u64 s[76:77], exec
        """)
        E.branch(f"s_cbranch_scc1 {lbl}_got")
        E(f"s_cmp_lt_u32 s80, {SPIN}")
        E.branch(f"s_cbranch_scc1 {lbl}")
        E.label(lbl + "_got")
        E("""
        v_add_f32 v64, v64, v68
        v_add_f32 v65, v65, v69
        v_add_f32 v72, v72, v76
        v_add_f32 v73, v73, v77
        v_add_f32 v64, v64, v72
        v_add_f32 v65, v65, v73
        """)
    poll4("L_h2", "s73")
    stamp(9)
    if PROF:
        E("v_writelane_b32 v7, s80, 14")
    for rr in (4, 8):
        E(f"v_add_f32_dpp v64, v64, v64 row_ror:{rr} row_mask:0xf bank_mask:0xf")
        E(f"v_add_f32_dpp v65, v65, v65 row_ror:{rr} row_mask:0xf bank_mask:0xf")
    E(f"""
    v_mov_b32 v66, v64
    v_mov_b32 v67, v65
    v_permlane16_swap_b32 v64, v66
    v_permlane16_swap_b32 v65, v67
    v_add_f32 v64, v64, v66
    v_add_f32 v65, v65, v67
    v_mov_b32 v66, v64
    v_mov_b32 v67, v65
    v_permlane32_swap_b32 v64, v66
    v_permlane32_swap_b32 v65, v67
    v_add_f32 v64, v64, v66
    v_add_f32 v65, v65, v67
    v_cvt_pk_bf16_f32 v64, v64, v65
    s_mov_b64 exec, 15
    buffer_store_dword v64, v14, s[48:51], s74 offen
    s_cmp_lg_u32 s2, 0
    """)
    E.branch("s_cbranch_scc1 L_end")
    E("""
    s_mov_b64 exec, 1
    buffer_store_dwordx2 v[8:9], v14, s[36:39], 0 offen sc1
    """)
    E.label("L_end")
    if PROF:
        stamp(10)
        E(f"""
        s_mov_b64 exec, 0xffff
        s_lshl_b32 s73, s2, 3
        s_add_u32 s73, s73, s52
        s_lshl_b32 s73, s73, 6
        s_add_u32 s73, s73, 0x300000
        v_lshlrev_b32 v14, 2, v0
        buffer_store_dword v7, v14, s[36:39], s73 offen
        """)
        if PROF == 2:
            E("""
            v_readlane_b32 s73, v7, 0
            s_not_b32 s73, s73
            v_writelane_b32 v7, s73, 0
            s_mov_b32 s48, s24
            s_mov_b32 s49, s25
            s_mov_b32 s50, 64
            s_mov_b32 s51, 0x20000
            s_cmp_lg_u32 s52, 7
            """)
            E.branch("s_cbranch_scc1 L_exit")
            E("""
            s_mov_b64 exec, 0x6e1
            buffer_atomic_umax v7, v14, s[48:51], 0 offen
            """)
    E.label("L_exit")
    E.raw("    s_endpgm")
    E.raw(f""".section .rodata,"a"
.p2align 6
.amdhsa_kernel {KNAME}
  .amdhsa_next_free_vgpr 256
  .amdhsa_next_free_sgpr 102
  .amdhsa_accum_offset 256
  .amdhsa_group_segment_fixed_size 0
  .amdhsa_kernarg_size 96
  .amdhsa_user_sgpr_count 2
  .amdhsa_user_sgpr_kernarg_segment_ptr 1
  .amdhsa_system_sgpr_workgroup_id_x 1
.end_amdhsa_kernel""")
    return E.text()

if __name__ == "__main__":
    out = sys.argv[1] if len(sys.argv) > 1 else "k1.s"
    cfg = {}
    for a in sys.argv[2:]:
        k, v = a.split("=")
        cfg[k] = int(v) if v.lstrip("-").isdigit() else v
    open(out, "w").write(gen(cfg))
```

```python
import sys, math
sys.path.insert(0, "gen")
from emit import Emit

KNAME = "gated_mix__gqa_block_cached__dense_activation_relu__decode_kernel"

W_OFF = 0
WQ_OFF = 86016
W1_OFF = 100352
MRG_OFF = 129024
P_OFF = 145408
Q_OFF = 151552
COEF_OFF = 152576
FAC_OFF = 152832
TAG_OFF = 152896
G_OFF = 152904
MLW_OFF = 152960
FLAG_OFF = 153088
XS_OFF = 153152
LDS_BYTES = 154112
QBOX = 0x1000
MLBOX = 0x20000
H1BOX = 0x40000
H2BOX = 0x140000
H1ML = 0x20000
WS_BYTES = 0x400000

NS = 6
RING = 64
SPIN = 400000


def gen(cfg):
    E = Emit()
    POL = cfg.get("pol", "nt")
    PROF = cfg.get("prof", 0)
    def stamp(k):
        if PROF:
            E(f"""
            s_memrealtime s[98:99]
            s_waitcnt lgkmcnt(0)
            v_writelane_b32 v7, s98, {k}
            """)
    hdr = open("gated_mix__gqa_block_cached__dense_activation_relu__decode.s.ref").read().split("\n")
    for l in hdr:
        if l.startswith("; @launch"): break
        if l.startswith(";"): E.raw(l)
    E.raw(f"; @launch grid=(256,1,1) block=(512,1,1) lds={LDS_BYTES}")
    E.raw('.amdgcn_target "amdgcn-amd-amdhsa--gfx950"')
    E.raw(".text")
    E.raw(f".globl {KNAME}\n.p2align 8\n.type {KNAME},@function\n{KNAME}:")
    E("s_cmp_ge_u32 s2, 256")
    E.branch("s_cbranch_scc1 L_exit")
    if PROF:
        E("v_mov_b32 v7, 0")
    stamp(0)
    E("""
    s_load_dwordx16 s[4:19], s[0:1], 0
    s_load_dwordx8 s[20:27], s[0:1], 64
    v_lshrrev_b32 v1, 6, v0
    v_and_b32 v0, 63, v0
    v_readfirstlane_b32 s52, v1
    s_and_b32 s53, s2, 7
    s_lshr_b32 s54, s2, 6
    s_bfe_u32 s55, s2, 0x30003
    s_lshr_b32 s56, s2, 3
    s_lshl_b32 s57, s54, 3
    s_add_u32 s57, s57, s53
    s_lshl_b32 s58, s53, 3
    s_add_u32 s58, s58, s55
    v_and_b32 v10, 15, v0
    v_lshrrev_b32 v11, 4, v0
    v_lshrrev_b32 v12, 2, v10
    v_and_b32 v13, 3, v10
    v_lshlrev_b32 v1, 9, v12
    v_lshl_add_u32 v1, v11, 6, v1
    v_lshl_add_u32 v1, v13, 4, v1
    v_add_u32 v2, 0x1000, v1
    v_lshlrev_b32 v3, 4, v0
    v_add_u32 v4, 0x1000, v3
    s_lshl_b32 s59, s57, 22
    s_lshl_b32 s60, s55, 19
    s_add_u32 s59, s59, s60
    s_lshl_b32 s60, s52, 13
    s_add_u32 s59, s59, s60
    s_mov_b32 s62, 0x22222222
    s_mov_b32 s63, 0x22222222
    s_mov_b32 s64, 0x44444444
    s_mov_b32 s65, 0x44444444
    s_mov_b32 s66, 0x88888888
    s_mov_b32 s67, 0x88888888
    s_mov_b32 s68, 0x05040100
    s_mov_b32 s69, 0x07060302
    s_mov_b32 s30, 0x8000000
    s_mov_b32 s31, 0x20000
    s_mov_b32 s34, 0x8000000
    s_mov_b32 s35, 0x20000
    """)
    E(f"s_mov_b32 s38, {WS_BYTES}")
    E("""
    s_mov_b32 s39, 0x20000
    s_mov_b32 s43, 0x20000
    s_mov_b32 s47, 0x20000
    s_mov_b32 s51, 0x20000
    s_min_u32 s72, s58, 55
    v_mov_b32 v14, 153088
    v_mov_b32 v15, 0
    ds_write_b32 v14, v15
    s_waitcnt lgkmcnt(0)
    s_barrier
    s_mov_b32 s28, s6
    s_mov_b32 s29, s7
    s_mov_b32 s32, s8
    s_mov_b32 s33, s9
    s_mov_b32 s36, s26
    s_mov_b32 s37, s27
    s_mov_b32 s44, s4
    s_mov_b32 s45, s5
    s_mov_b32 s46, 3584
    s_mov_b32 s40, s10
    s_mov_b32 s41, s11
    s_mov_b32 s42, 3670016
    s_mov_b32 s48, s20
    s_mov_b32 s49, s21
    s_mov_b32 s50, 896
    """)
    E(f"""
    s_mul_i32 s73, s52, 768
    s_add_u32 s73, s73, {P_OFF}
    v_and_b32 v5, 1, v11
    v_lshlrev_b32 v5, 8, v5
    v_and_b32 v14, 1, v12
    v_lshl_add_u32 v5, v14, 4, v5
    v_lshl_add_u32 v5, v13, 2, v5
    v_lshrrev_b32 v14, 1, v12
    v_lshl_add_u32 v5, v14, 1, v5
    v_add_u32 v5, s73, v5
    v_lshrrev_b32 v6, 3, v10
    v_lshlrev_b32 v6, 8, v6
    v_xor_b32 v14, v12, v11
    v_and_b32 v14, 1, v14
    v_cmp_eq_u32 vcc, 1, v14
    v_mov_b32 v15, 0x200
    v_cndmask_b32 v6, v6, v15, vcc
    v_lshrrev_b32 v14, 1, v11
    v_lshl_add_u32 v6, v14, 4, v6
    v_add_u32 v6, s73, v6
    v_lshl_add_u32 v14, v0, 2, s73
    v_mov_b32 v15, 0
    ds_write_b32 v14, v15 offset:512
    """)
    if not cfg.get("nos0", 0):
        E("s_cmp_eq_u32 s52, 0")
        E.branch("s_cbranch_scc1 L_w0")

    def poll_pipe(lbl, nload, mk_load, tagregs, base, dst, nsets=2, sleep=0):
        sz = 4 * nload
        def issue_set(k):
            for i in range(nload):
                E(mk_load(i, base + k * sz + 4 * i))
        sv = E.vm
        E("s_mov_b32 s80, 0")
        for k in range(nsets - 1):
            issue_set(k)
            if sleep: E(f"s_sleep {sleep}")
        E.label(lbl)
        for k in range(nsets):
            issue_set((k + nsets - 1) % nsets)
            E(f"s_waitcnt vmcnt({(nsets - 1) * nload})")
            b = base + k * sz
            E(f"v_cmp_eq_u64 s[76:77], v[{b+2}:{b+3}], v[8:9]")
            for i in range(1, nload):
                E(f"v_cmp_eq_u64 s[78:79], v[{b+4*i+2}:{b+4*i+3}], v[8:9]")
                E("s_and_b64 s[76:77], s[76:77], s[78:79]")
            E("s_cmp_eq_u64 s[76:77], exec")
            E.branch(f"s_cbranch_scc1 {lbl}_g{k}")
        if cfg.get("lsl", 0): E(f"s_sleep {cfg.get('lsl')}")
        E("s_add_u32 s80, s80, 1")
        E(f"s_cmp_lt_u32 s80, {SPIN // nsets}")
        E.branch(f"s_cbranch_scc1 {lbl}")
        for k in reversed(range(nsets)):
            E.label(f"{lbl}_g{k}")
            b = base + k * sz
            if b != dst:
                for i in range(nload):
                    E(f"v_mov_b32 v{dst+4*i}, v{b+4*i}")
                    E(f"v_mov_b32 v{dst+4*i+1}, v{b+4*i+1}")
            if k: E.branch(f"s_branch {lbl}_got")
        E.label(f"{lbl}_got")
        E.vm = sv

    OVF = cfg.get("ovf", 0)
    PL = cfg.get("pacel", 0)
    SL = {n: n % NS for n in range(16)}
    if OVF:
        SL = {n: n for n in range(6)}
        SL[6] = 5
        nxt = 7
        ACT = {}
        for st in range(16):
            if st == 5: ACT[st] = 6
            elif nxt < 16:
                ACT[st] = nxt; SL[nxt] = SL[st]; nxt += 1
    def slot(n): return RING + 32 * SL[n]
    def issue(n, lds=False, pl=0):
        r = slot(n)
        i = n & 7
        E(f"s_add_u32 s61, s59, {i * 65536}")
        last = None
        if n < 8:
            for u in range(4):
                for t in range(2):
                    va = "v1" if u < 2 else "v2"
                    off = (u & 1) * 2048 + t * 256
                    q = r + (u * 2 + t) * 4
                    if cfg.get("klin", 0):
                        j = u * 2 + t
                        va = "v3" if j < 4 else "v4"
                        off = (j & 3) * 1024
                    if pl: E(f"s_waitcnt vmcnt({pl-1})")
                    if lds:
                        j = u * 2 + t
                        E(f"s_add_u32 m0, s83, {W_OFF + (j // 3) * 28672 + (j % 3) * 1024 - off}")
                        last = E.ins(f"buffer_load_dwordx4 {va}, s[28:31], s61 offen offset:{off} {POL} lds")
                    else:
                        last = E.ins(f"buffer_load_dwordx4 v[{q}:{q+3}], {va}, s[28:31], s61 offen offset:{off} {POL}")
        else:
            for j in range(8):
                va = "v3" if j < 4 else "v4"
                off = (j & 3) * 1024
                q = r + j * 4
                last = E.ins(f"buffer_load_dwordx4 v[{q}:{q+3}], {va}, s[32:35], s61 offen offset:{off} {cfg.get('polv', POL)}")
        return last

    def prologue(pace=0, bar=False):
        ids = {}
        for n in range(NS):
            if pace and n >= pace and not PL:
                E.wait_vm(ids[n - pace])
            ids[n] = issue(n, pl=(PL if pace else 0))
        if OVF:
            E("s_mul_i32 s83, s52, 3584")
            if pace and not PL: E.wait_vm(ids[NS - pace])
            ids[6] = issue(6, lds=True, pl=(PL if pace else 0))
        return ids

    SP = cfg.get("spol", "nt")
    E("s_cmp_lg_u32 s52, 1" if not cfg.get("nos0", 0) else "s_cmp_lg_u32 s52, 100")
    E.branch("s_cbranch_scc1 L_pro")
    E(f"""
    s_mov_b32 s40, s16
    s_mov_b32 s41, s17
    s_mov_b32 s42, 1605632
    v_lshrrev_b32 v14, 2, v0
    v_mul_u32_u24 v14, 3584, v14
    v_and_b32 v15, 3, v0
    v_lshl_add_u32 v14, v15, 4, v14
    s_lshl_b32 s73, s72, 6
    s_mul_i32 s75, s54, 896
    buffer_load_dwordx4 v[56:59], v3, s[44:47], s75 offen {SP}
    buffer_load_dwordx4 v[60:63], v3, s[48:51], 0 offen {SP}
    s_mov_b32 m0, {XS_OFF}
    s_mov_b32 exec_hi, 0x00ffffff
    buffer_load_dwordx4 v3, s[44:47], s75 offen {SP} lds
    s_mov_b32 exec_hi, -1
    """)
    for i in range(28):
        E(f"s_mov_b32 m0, {W1_OFF + i * 1024}")
        if cfg.get("fakesc", 0):
            E(f"s_mul_i32 s74, s72, 28672")
            E(f"s_add_u32 s74, s74, {i * 1024}")
            E(f"buffer_load_dwordx4 v3, s[40:43], s74 offen {SP} lds")
        elif not cfg.get("noffn", 0):
            E(f"s_add_u32 s74, s73, {i * 57344}")
            E(f"buffer_load_dwordx4 v14, s[40:43], s74 offen {SP} lds")
    E.label("L_pro")
    if cfg.get("cpf", 0):
        E("s_cmp_lg_u32 s52, 2")
        E.branch("s_cbranch_scc1 L_nocpf")
        E.raw("    s_getpc_b64 s[74:75]")
        E.raw("L_pcref:")
        E.raw(f"    s_sub_u32 s74, s74, L_pcref-{KNAME}")
        E.raw("    s_subb_u32 s75, s75, 0")
        E("v_lshlrev_b32 v14, 6, v0")
        for i in range(cfg.get("cpf")):
            E.raw(f"    v_min_u32 v16, L_exit-{KNAME}, v14")
            E(f"global_load_dword v15, v16, s[74:75] offset:0")
            E.ins("v_add_u32 v14, 0x1000, v14")
        E.label("L_nocpf")
    if cfg.get("dprio", 0): E("s_setprio 3")
    base_vm = E.vm
    ids = prologue(cfg.get('pace', 0), bar=False)
    vm_after_prologue = E.vm
    stamp(1)
    E("s_cmp_eq_u32 s52, 1" if not cfg.get("nos0", 0) else "s_cmp_eq_u32 s52, 100")
    E.branch("s_cbranch_scc1 L_w1")
    E.label("L_flag")
    if cfg.get("noflag", 0): E.branch("s_branch L_main")
    E(f"v_mov_b32 v14, {FLAG_OFF}")
    E.label("L_flag_loop")
    E("""
    ds_read_b32 v15, v14
    s_waitcnt lgkmcnt(0)
    v_readfirstlane_b32 s73, v15
    s_cmp_lg_u32 s73, 0
    """)
    E.branch("s_cbranch_scc1 L_main")
    E("s_sleep 2")
    E.branch("s_branch L_flag_loop")

    E.label("L_w0")
    E("s_setprio 3")
    stamp(13)
    E(f"""
    buffer_load_dwordx2 v[8:9], v15, s[36:39], 0 offen
    v_lshrrev_b32 v14, 1, v0
    v_lshlrev_b32 v14, 13, v14
    v_and_b32 v15, 1, v0
    v_lshl_add_u32 v14, v15, 4, v14
    s_lshl_b32 s73, s53, 10
    s_lshl_b32 s74, s56, 5
    s_add_u32 s73, s73, s74
    """)
    for i in range(14):
        E(f"s_mov_b32 m0, {WQ_OFF + i * 1024}")
        if cfg.get("fakesc", 0):
            E(f"s_mul_i32 s74, s2, 14336")
            E(f"s_add_u32 s74, s74, {i * 1024}")
            E(f"buffer_load_dwordx4 v3, s[40:43], s74 offen {SP} lds")
        else:
            E(f"s_add_u32 s74, s73, {i * 262144}")
            E(f"buffer_load_dwordx4 v14, s[40:43], s74 offen {SP} lds")
    E(f"""
    v_mul_u32_u24 v15, 896, v13
    v_lshl_add_u32 v15, v11, 4, v15
    """)
    for ks in range(14):
        E(f"buffer_load_dwordx4 v[{64+4*ks}:{67+4*ks}], v15, s[44:47], 0 offen offset:{ks*64} {SP}")
    E(f"""
    v_lshl_add_u32 v14, v11, 3, v12
    v_lshlrev_b32 v14, 5, v14
    v_lshl_add_u32 v14, v13, 3, v14
    v_add_u32 v14, {WQ_OFF}, v14
    s_waitcnt lgkmcnt(0)
    """)
    stamp(14)
    E(f"""
    s_waitcnt vmcnt(0)
    v_add_co_u32 v8, vcc, 1, v8
    v_addc_co_u32 v9, vcc, 0, v9, vcc
    """)
    stamp(1)
    for ks in range(14):
        E(f"ds_read_b64_tr_b16 v[{128+4*ks}:{129+4*ks}], v14 offset:{ks*1024}")
        E(f"ds_read_b64_tr_b16 v[{130+4*ks}:{131+4*ks}], v14 offset:{ks*1024+128}")
        if ks % 7 == 6:
            E("s_waitcnt lgkmcnt(0)")
    for ks in range(14):
        c = "0" if ks == 0 else "v[48:51]"
        E(f"v_mfma_f32_16x16x32_bf16 v[48:51], v[{128+4*ks}:{131+4*ks}], v[{64+4*ks}:{67+4*ks}], {c}")
    E(f"""
    v_lshlrev_b32 v14, 14, v10
    v_lshl_add_u32 v14, v11, 4, v14
    s_lshl_b32 s73, s53, 11
    s_lshl_b32 s74, s56, 6
    s_add_u32 s73, s73, s74
    s_add_u32 s73, s73, {QBOX}
    v_mov_b32 v54, v8
    v_mov_b32 v55, v9
    v_cvt_pk_bf16_f32 v52, v48, v49
    v_cvt_pk_bf16_f32 v53, v50, v51
    s_mov_b32 exec_lo, 0x000f000f
    s_mov_b32 exec_hi, 0x000f000f
    buffer_store_dwordx4 v[52:55], v14, s[36:39], s73 offen sc1
    s_mov_b64 exec, -1
    s_lshl_b32 s73, s57, 11
    s_add_u32 s73, s73, {QBOX}
    s_mov_b32 s80, 0
    """)
    stamp(2)
    if PROF:
        E("s_waitcnt vmcnt(0)")
    stamp(15)
    NPS = cfg.get("nps", 2)
    poll_pipe("L_w0_poll", 2, lambda i, r: f"buffer_load_dwordx4 v[{r}:{r+3}], v3, s[36:39], s73 offen offset:{i*1024} sc1",
              None, 200, 56, nsets=NPS, sleep=cfg.get("psl", 4))
    stamp(11)
    if PROF:
        E("v_writelane_b32 v7, s80, 12")
    E(f"""
    v_lshlrev_b32 v14, 3, v0
    v_add_u32 v14, {Q_OFF}, v14
    ds_write_b64 v14, v[56:57]
    ds_write_b64 v14, v[60:61] offset:512
    v_mov_b32 v15, {TAG_OFF}
    ds_write_b64 v15, v[8:9]
    v_mov_b32 v15, {FLAG_OFF}
    v_mov_b32 v14, 1
    s_waitcnt lgkmcnt(0)
    ds_write_b32 v15, v14
    """)
    if not cfg.get("dprio", 0): E("s_setprio 0")
    E.vm = base_vm
    ids2 = prologue()
    assert ids2 == ids and E.vm == vm_after_prologue
    E.branch("s_branch L_main")

    E.label("L_w1")
    E(f"""
    v_lshl_add_u32 v14, v11, 3, v12
    v_lshlrev_b32 v14, 6, v14
    v_lshl_add_u32 v14, v13, 3, v14
    v_add_u32 v14, {W1_OFF}, v14
    v_lshlrev_b32 v15, 4, v11
    v_add_u32 v15, {XS_OFF}, v15
    s_waitcnt vmcnt({8*(NS+OVF)})
    """)
    def ffn_rd(ks):
        xb = 16 + 4 * (ks & 1)
        tb = 24 + 8 * (ks & 1)
        E(f"ds_read_b128 v[{xb}:{xb+3}], v15 offset:{ks*64}")
        for ct in range(2):
            q = tb + 4 * ct
            E(f"ds_read_b64_tr_b16 v[{q}:{q+1}], v14 offset:{ks*2048+ct*32}")
            E(f"ds_read_b64_tr_b16 v[{q+2}:{q+3}], v14 offset:{ks*2048+ct*32+256}")
    ffn_rd(0)
    E("s_mov_b32 s74, 0xffff0000")
    E("v_mov_b32 v40, 0")
    for i in range(4):
        E(f"""
        v_lshlrev_b32 v41, 16, v{56+i}
        v_lshlrev_b32 v42, 16, v{60+i}
        v_fmac_f32 v40, v41, v42
        v_and_b32 v41, s74, v{56+i}
        v_and_b32 v42, s74, v{60+i}
        v_fmac_f32 v40, v41, v42
        """)
    E("""
    v_cmp_gt_u32 vcc, 56, v0
    v_cndmask_b32 v40, 0, v40, vcc
    """)
    for ks in range(14):
        if ks + 1 < 14:
            ffn_rd(ks + 1)
            E("s_waitcnt lgkmcnt(5)")
        else:
            E("s_waitcnt lgkmcnt(0)")
        xb = 16 + 4 * (ks & 1)
        tb = 24 + 8 * (ks & 1)
        for ct in range(2):
            d = 48 + ct * 4
            c = "0" if ks == 0 else f"v[{d}:{d+3}]"
            E(f"v_mfma_f32_16x16x32_bf16 v[{d}:{d+3}], v[{tb+4*ct}:{tb+4*ct+3}], v[{xb}:{xb+3}], {c}")
    for r in (8, 4, 2, 1):
        E(f"v_add_f32_dpp v40, v40, v40 row_ror:{r} row_mask:0xf bank_mask:0xf")
    E("""
    v_mov_b32 v41, v40
    v_permlane16_swap_b32 v40, v41
    v_add_f32 v40, v40, v41
    v_mov_b32 v41, v40
    v_permlane32_swap_b32 v40, v41
    v_add_f32 v40, v40, v41
    v_mul_f32 v40, 0xbfb8aa3b, v40
    v_exp_f32 v40, v40
    v_add_f32 v40, 1.0, v40
    v_rcp_f32 v40, v40
    v_sub_f32 v41, 1.0, v40
    s_cmp_lt_u32 s58, 56
    s_cselect_b64 s[76:77], -1, 0
    """)
    E(f"""
    v_mov_b32 v15, {G_OFF}
    ds_write_b32 v15, v40
    """)
    for r in range(8):
        E(f"""
        v_max_f32 v{48+r}, 0, v{48+r}
        v_mul_f32 v{48+r}, v41, v{48+r}
        v_cndmask_b32 v{48+r}, 0, v{48+r}, s[76:77]
        """)
    E(f"""
    v_cvt_pk_bf16_f32 v56, v48, v49
    v_cvt_pk_bf16_f32 v57, v50, v51
    v_cvt_pk_bf16_f32 v58, v52, v53
    v_cvt_pk_bf16_f32 v59, v54, v55
    v_lshlrev_b32 v14, 3, v11
    v_add_u32 v14, {COEF_OFF + 128}, v14
    s_mov_b32 exec_lo, 0x00010001
    s_mov_b32 exec_hi, 0x00010001
    ds_write_b64 v14, v[56:57]
    ds_write_b64 v14, v[58:59] offset:32
    s_mov_b64 exec, -1
    """)
    stamp(2)
    E.branch("s_branch L_flag")

    LA = cfg.get("la", NS)
    def sched(n):
        if OVF: return ACT.get(n)
        if n < LA: k = NS + n
        elif n < NS: return None
        else: k = n + LA
        return k if k < 16 else None
    def main(w7):
        ids_ = dict(ids)
        E.vm = vm_after_prologue
        E.label("L_main")
        stamp(3)
        E(f"""
        v_mov_b32 v15, {TAG_OFF}
        ds_read_b64 v[8:9], v15
        v_bfe_u32 v14, v10, 2, 1
        v_lshlrev_b32 v14, 9, v14
        v_lshl_add_u32 v14, v11, 6, v14
        v_lshl_add_u32 v14, v13, 4, v14
        v_add_u32 v14, {Q_OFF}, v14
        ds_read_b128 v[16:19], v14
        ds_read_b128 v[20:23], v14 offset:256
        s_mov_b32 s40, s12
        s_mov_b32 s41, s13
        s_mov_b32 s42, 3670016
        s_mov_b32 s44, s18
        s_mov_b32 s45, s19
        s_mov_b32 s46, 1605632
        s_mov_b32 s81, 0x3db8aa3b
        s_waitcnt lgkmcnt(0)
        """)
        DP = cfg.get("dprio", 0)
        TH = [int(x) for x in str(cfg.get("dth", "4.8.12")).split(".")]
        def setp(n):
            if DP and n in TH: E(f"s_setprio {2 - TH.index(n)}")
        for n in range(8):
            r = slot(n)
            setp(n)
            if OVF and n == 6: E("s_waitcnt lgkmcnt(0)")
            else: E.wait_vm(ids_[n])
            for t in range(2):
                for u in range(4):
                    d = 48 + 4 * u
                    q = r + (u * 2 + t) * 4
                    c = "0" if t == 0 else f"v[{d}:{d+3}]"
                    if not cfg.get("nocomp", 0): E(f"v_mfma_f32_16x16x32_bf16 v[{d}:{d+3}], v[{16+4*t}:{19+4*t}], v[{q}:{q+3}], {c}")
            if OVF and n == 5:
                E.wait_vm(ids_[6])
                E("v_add_u32 v14, s83, v3")
                for j in range(8):
                    E(f"ds_read_b128 v[{r+4*j}:{r+4*j+3}], v14 offset:{W_OFF + (j // 3) * 28672 + (j % 3) * 1024}")
            elif sched(n) is not None:
                ids_[sched(n)] = issue(sched(n))
            if n == cfg.get("stage_at", 6 if OVF else 3) and not cfg.get("nostage", 0):
                E(f"""
                s_mul_i32 s73, s52, 3584
                s_lshl_b32 s74, s53, 9
                s_lshl_b32 s75, s55, 5
                s_add_u32 s74, s74, s75
                s_mul_i32 s74, s74, 896
                s_add_u32 s74, s74, s73
                s_add_u32 s75, s74, {256*896}
                s_mul_i32 s82, s72, {32*896}
                s_add_u32 s82, s82, s73
                s_mov_b32 exec_hi, 0x00ffffff
                """)
                for blk in range(3):
                    E(f"s_add_u32 m0, s73, {W_OFF + blk * 28672}")
                    so = ["s74", "s75", "s82"][blk]
                    srd = "s[40:43]" if blk < 2 else "s[44:47]"
                    for k in range(4):
                        E(f"buffer_load_dwordx4 v3, {srd}, {so} offen offset:{k*896} {SP} lds")
                E("s_mov_b32 exec_hi, -1")
            for u in range(4):
                d = 48 + 4 * u
                E(f"v_cndmask_b32 v{32+u}, v{d}, v{d+1}, s[62:63]")
            for u in range(4):
                d = 48 + 4 * u
                E(f"v_cndmask_b32 v{32+u}, v{32+u}, v{d+2}, s[64:65]")
            for u in range(4):
                d = 48 + 4 * u
                E(f"v_cndmask_b32 v{32+u}, v{32+u}, v{d+3}, s[66:67]")
            for u in range(4):
                E(f"v_add_f32_dpp v{32+u}, v{32+u}, v{32+u} quad_perm:[1,0,3,2] row_mask:0xf bank_mask:0xf")
            for u in range(4):
                E(f"v_add_f32_dpp v{32+u}, v{32+u}, v{32+u} quad_perm:[2,3,0,1] row_mask:0xf bank_mask:0xf")
            E(f"""
            v_cndmask_b32 v{24+n}, v32, v33, s[62:63]
            v_cndmask_b32 v{24+n}, v{24+n}, v34, s[64:65]
            v_cndmask_b32 v{24+n}, v{24+n}, v35, s[66:67]
            """)
        stamp(4)
        E("""
        v_max3_f32 v32, v24, v25, v26
        v_max3_f32 v33, v27, v28, v29
        v_max3_f32 v32, v32, v30, v31
        v_max_f32 v32, v32, v33
        """)
        for r in (8, 4, 2, 1):
            E(f"v_max_f32_dpp v32, v32, v32 row_ror:{r} row_mask:0xf bank_mask:0xf")
        E("v_mul_f32 v36, s81, v32")
        for i in range(8):
            E(f"v_fma_f32 v{24+i}, v{24+i}, s81, -v36")
        for i in range(8):
            E(f"v_exp_f32 v{24+i}, v{24+i}")
        E("""
        v_add_f32 v32, v24, v25
        v_add_f32 v33, v26, v27
        v_add_f32 v34, v28, v29
        v_add_f32 v35, v30, v31
        v_add_f32 v32, v32, v33
        v_add_f32 v34, v34, v35
        v_add_f32 v37, v32, v34
        """)
        for i in range(0, 8, 2):
            E(f"v_cvt_pk_bf16_f32 v{40+i//2}, v{24+i}, v{25+i}")
        for r in (8, 4, 2, 1):
            E(f"v_add_f32_dpp v37, v37, v37 row_ror:{r} row_mask:0xf bank_mask:0xf")
        for i in range(0, 8, 2):
            E(f"ds_write_b16 v5, v{40+i//2} offset:{i*32}")
            E(f"ds_write_b16_d16_hi v5, v{40+i//2} offset:{(i+1)*32}")
        E(f"""
        s_lshl_b32 s73, s52, 3
        s_add_u32 s73, s73, {MLW_OFF}
        v_lshl_add_u32 v14, v0, 2, s73
        s_mov_b32 exec_lo, 0x00010001
        s_mov_b32 exec_hi, 0
        ds_write_b64 v14, v[36:37]
        s_mov_b64 exec, -1
        s_waitcnt lgkmcnt(0)
        ds_read_b128 v[12:15], v6
        """)
        ml_ids = None
        for n in range(8, 16):
            i = n - 8
            r = slot(n)
            pa = 12 if (i % 2 == 0) else 44
            pn = 44 if (i % 2 == 0) else 12
            setp(n)
            E.wait_vm(ids_[n])
            E("s_waitcnt lgkmcnt(0)")
            for half in range(2):
                for ii in range(2):
                    sreg = half * 2 + ii
                    for e in range(2):
                        dloc = ii * 2 + e
                        for jp in range(4):
                            tq = 48 + dloc * 4 + jp
                            s1 = r + (2 * jp) * 4 + sreg
                            s0 = r + (2 * jp + 1) * 4 + sreg
                            if not cfg.get("nocomp", 0): E(f"v_perm_b32 v{tq}, v{s0}, v{s1}, s{68+e}")
                if half == 1 and sched(n) is not None:
                    ids_[sched(n)] = issue(sched(n))
                for dloc in range(4):
                    d = half * 4 + dloc
                    a = 16 + 4 * d
                    c = "0" if i == 0 else f"v[{a}:{a+3}]"
                    if not cfg.get("nocomp", 0): E(f"v_mfma_f32_16x16x32_bf16 v[{a}:{a+3}], v[12:15], v[{48+dloc*4}:{51+dloc*4}], {c}")
            if i < 7:
                E(f"ds_read_b128 v[12:15], v6 offset:{(i+1)*32}")
        stamp(5)
        E(f"""
        s_lshl_b32 s73, s52, 11
        s_add_u32 s73, s73, {MRG_OFF}
        v_lshlrev_b32 v14, 5, v0
        v_add_u32 v14, s73, v14
        """)
        for d in range(8):
            E(f"v_mov_b32 v{48+d}, v{16+4*d}")
        E("""
        ds_write_b128 v14, v[48:51]
        ds_write_b128 v14, v[52:55] offset:16
        s_waitcnt vmcnt(0) lgkmcnt(0)
        s_barrier
        """)

    main(False)
    stamp(6)
    if cfg.get("notail", 0): E.branch("s_branch L_end")
    E("s_cmp_eq_u32 s52, 7")
    E.branch("s_cbranch_scc1 L_w7tail")
    E("s_cmp_ge_u32 s52, 4")
    E.branch("s_cbranch_scc1 L_proj")
    E(f"""
    s_lshl_b32 s73, s52, 9
    s_add_u32 s73, s73, {MRG_OFF}
    v_lshl_add_u32 v14, v0, 3, s73
    s_lshr_b32 s74, s52, 1
    s_lshl_b32 s75, s74, 6
    s_add_u32 s75, s75, {MLW_OFF}
    v_mov_b32 v15, s75
    ds_read_b128 v[64:67], v15
    ds_read_b128 v[68:71], v15 offset:16
    ds_read_b128 v[72:75], v15 offset:32
    ds_read_b128 v[76:79], v15 offset:48
    """)
    for w in range(8):
        E(f"ds_read_b64 v[{24+2*w}:{25+2*w}], v14 offset:{w*2048}")
    E(f"""
    s_and_b32 s75, s52, 1
    s_lshl_b32 s75, s75, 14
    v_lshlrev_b32 v14, 12, v11
    v_lshl_add_u32 v14, v10, 4, v14
    s_lshl_b32 s73, s57, 15
    s_add_u32 s73, s73, s75
    s_lshl_b32 s75, s55, 9
    s_add_u32 s73, s73, s75
    s_lshl_b32 s75, s74, 8
    s_add_u32 s73, s73, s75
    s_add_u32 s73, s73, {H1BOX}
    v_mov_b32 v42, v8
    v_mov_b32 v43, v9
    v_mov_b32 v46, v8
    v_mov_b32 v47, v9
    s_lshl_b32 s82, s57, 11
    s_lshl_b32 s75, s55, 5
    s_add_u32 s82, s82, s75
    s_lshl_b32 s75, s74, 4
    s_add_u32 s82, s82, s75
    s_add_u32 s82, s82, {H1ML}
    v_lshlrev_b32 v15, 8, v0
    s_waitcnt lgkmcnt(8)
    v_max3_f32 v44, v64, v66, v68
    v_max3_f32 v45, v70, v72, v74
    v_max3_f32 v44, v44, v76, v78
    v_max_f32 v44, v44, v45
    """)
    for w in range(8):
        E(f"v_sub_f32 v{16+w}, v{64+2*w}, v44")
    for w in range(8):
        E(f"v_exp_f32 v{16+w}, v{16+w}")
    E("""
    s_waitcnt lgkmcnt(0)
    v_mul_f32 v40, v16, v24
    v_mul_f32 v41, v16, v25
    v_mul_f32 v45, v16, v65
    """)
    for w in range(1, 8):
        E(f"v_fmac_f32 v40, v{16+w}, v{24+2*w}")
        E(f"v_fmac_f32 v41, v{16+w}, v{25+2*w}")
        E(f"v_fmac_f32 v45, v{16+w}, v{65+2*w}")
    H1ST = cfg.get("h1st", "sc1").replace("+", " ")
    E(f"buffer_store_dwordx4 v[40:43], v14, s[36:39], s73 offen {H1ST}")
    E(f"""
    s_mov_b64 exec, 0xff
    buffer_store_dwordx4 v[44:47], v15, s[36:39], s82 offen {H1ST}
    s_mov_b64 exec, -1
    """)
    stamp(12)
    E.label("L_proj")
    E(f"""
    v_lshrrev_b32 v12, 2, v10
    v_and_b32 v13, 3, v10
    v_lshl_add_u32 v14, v11, 3, v12
    v_mul_u32_u24 v14, 896, v14
    v_lshl_add_u32 v14, v13, 3, v14
    s_lshl_b32 s73, s52, 7
    v_add_u32 v14, s73, v14
    v_lshlrev_b32 v15, 4, v11
    v_add_u32 v15, {COEF_OFF}, v15
    ds_read_b128 v[120:123], v15 offset:128
    """)
    cnt = 1
    for ks in (2, 0, 1):
        for ct in range(4):
            q = 64 + (ks * 4 + ct) * 4
            E(f"ds_read_b64_tr_b16 v[{q}:{q+1}], v14 offset:{ks*28672+ct*32}")
            E(f"ds_read_b64_tr_b16 v[{q+2}:{q+3}], v14 offset:{ks*28672+ct*32+3584}")
        E("s_waitcnt lgkmcnt(0)")
    for ct in range(4):
        q = 64 + (2 * 4 + ct) * 4
        E(f"v_mfma_f32_16x16x32_bf16 v[{128+4*ct}:{131+4*ct}], v[{q}:{q+3}], v[120:123], 0")
    E(f"""
    v_lshrrev_b32 v12, 1, v11
    v_lshlrev_b32 v12, 12, v12
    v_and_b32 v13, 1, v11
    v_lshl_add_u32 v12, v13, 5, v12
    v_lshl_add_u32 v12, v10, 4, v12
    s_mul_i32 s73, s54, {56*4096}
    s_lshl_b32 s74, s58, 6
    s_add_u32 s73, s73, s74
    s_lshl_b32 s74, s52, 15
    s_add_u32 s73, s73, s74
    s_add_u32 s73, s73, {H2BOX}
    s_mov_b32 s76, 0x00020002
    s_mov_b32 s77, 0x00020002
    """)
    for ct in range(4):
        E(f"v_mov_b32 v{146+4*ct}, v8")
        E(f"v_mov_b32 v{147+4*ct}, v9")
    E("s_barrier")
    stamp(8)
    E("""
    ds_read_b128 v[112:115], v15
    ds_read_b128 v[116:119], v15 offset:64
    s_waitcnt lgkmcnt(0)
    """)
    for ks in range(2):
        for ct in range(4):
            q = 64 + (ks * 4 + ct) * 4
            E(f"v_mfma_f32_16x16x32_bf16 v[{128+4*ct}:{131+4*ct}], v[{q}:{q+3}], v[{112+4*ks}:{115+4*ks}], v[{128+4*ct}:{131+4*ct}]")
    for ct in range(4):
        E(f"v_cndmask_b32 v{144+4*ct}, v{128+4*ct}, v{130+4*ct}, s[76:77]")
        E(f"v_cndmask_b32 v{145+4*ct}, v{129+4*ct}, v{131+4*ct}, s[76:77]")
    E("""
    s_mov_b32 exec_lo, 0x00030003
    s_mov_b32 exec_hi, 0x00030003
    """)
    for ct in range(4):
        E(f"s_add_u32 s74, s73, {ct*8192}")
        E(f"buffer_store_dwordx4 v[{144+4*ct}:{147+4*ct}], v12, s[36:39], s74 offen {cfg.get('h2st', 'sc1').replace('+', ' ')}")
    E.branch("s_branch L_end")

    E.label("L_w7tail")
    E(f"""
    s_lshl_b32 s73, s57, 3
    s_add_u32 s73, s73, s55
    s_lshl_b32 s82, s73, 8
    s_add_u32 s82, s82, {H1ML}
    s_lshl_b32 s73, s73, 12
    s_add_u32 s73, s73, {H1BOX}
    v_mov_b32 v15, {G_OFF}
    ds_read_b32 v40, v15
    v_and_b32 v14, 31, v0
    v_lshlrev_b32 v14, 2, v14
    v_add_u32 v14, {COEF_OFF}, v14
    v_lshlrev_b32 v13, 4, v11
    s_mov_b32 s80, 0
    """)
    def h1_load(i, r):
        H1LD = cfg.get("h1ld", "sc1").replace("+", " ")
        if i < 4: return f"buffer_load_dwordx4 v[{r}:{r+3}], v3, s[36:39], s73 offen offset:{i*1024} {H1LD}"
        return f"buffer_load_dwordx4 v[{r}:{r+3}], v13, s[36:39], s82 offen offset:{(i-4)*64} {H1LD}"
    poll_pipe("L_h1", 8, h1_load, None, 128, 64, nsets=NPS, sleep=cfg.get("psl", 4))
    stamp(7)
    if PROF:
        E("v_writelane_b32 v7, s80, 13")
    E(f"""
    v_max3_f32 v96, v80, v84, v88
    v_max_f32 v96, v96, v92
    v_mov_b32 v97, v96
    v_permlane32_swap_b32 v96, v97
    v_max_f32 v96, v96, v97
    v_sub_f32 v80, v80, v96
    v_sub_f32 v84, v84, v96
    v_sub_f32 v88, v88, v96
    v_sub_f32 v92, v92, v96
    v_exp_f32 v80, v80
    v_exp_f32 v84, v84
    v_exp_f32 v88, v88
    v_exp_f32 v92, v92
    v_mul_f32 v98, v80, v81
    v_mul_f32 v64, v80, v64
    v_mul_f32 v65, v80, v65
    v_fmac_f32 v98, v84, v85
    v_fmac_f32 v64, v84, v68
    v_fmac_f32 v65, v84, v69
    v_fmac_f32 v98, v88, v89
    v_fmac_f32 v64, v88, v72
    v_fmac_f32 v65, v88, v73
    v_fmac_f32 v98, v92, v93
    v_fmac_f32 v64, v92, v76
    v_fmac_f32 v65, v92, v77
    v_mov_b32 v99, v98
    v_mov_b32 v66, v64
    v_mov_b32 v67, v65
    v_permlane32_swap_b32 v98, v99
    v_permlane32_swap_b32 v64, v66
    v_permlane32_swap_b32 v65, v67
    v_add_f32 v98, v98, v99
    v_add_f32 v64, v64, v66
    v_add_f32 v65, v65, v67
    v_rcp_f32 v98, v98
    s_waitcnt lgkmcnt(0)
    v_mul_f32 v98, v40, v98
    v_mul_f32 v64, v98, v64
    v_mul_f32 v65, v98, v65
    v_cvt_pk_bf16_f32 v64, v64, v65
    ds_write_b32 v14, v64
    s_waitcnt lgkmcnt(0)
    s_barrier
    s_cmp_ge_u32 s58, 56
    """)
    E.branch("s_cbranch_scc1 L_end")
    E(f"""
    s_mul_i32 s73, s54, 56
    s_add_u32 s73, s73, s58
    s_lshl_b32 s73, s73, 12
    s_add_u32 s73, s73, {H2BOX}
    s_mov_b32 s48, s22
    s_mov_b32 s49, s23
    s_mov_b32 s50, 3584
    s_mul_i32 s74, s54, 896
    s_lshl_b32 s75, s58, 4
    s_add_u32 s74, s74, s75
    v_lshlrev_b32 v14, 2, v0
    s_mov_b32 s80, 0
    """)
    poll_pipe("L_h2", 4, lambda i, r: f"buffer_load_dwordx4 v[{r}:{r+3}], v3, s[36:39], s73 offen offset:{i*1024} {cfg.get('h2ld', 'sc1').replace('+', ' ')}",
              None, 128, 64, nsets=NPS, sleep=cfg.get("psl", 4))
    E("""
    v_add_f32 v64, v64, v68
    v_add_f32 v65, v65, v69
    v_add_f32 v72, v72, v76
    v_add_f32 v73, v73, v77
    v_add_f32 v64, v64, v72
    v_add_f32 v65, v65, v73
    """)
    stamp(9)
    if PROF:
        E("v_writelane_b32 v7, s80, 14")
    for rr in (4, 8):
        E(f"v_add_f32_dpp v64, v64, v64 row_ror:{rr} row_mask:0xf bank_mask:0xf")
        E(f"v_add_f32_dpp v65, v65, v65 row_ror:{rr} row_mask:0xf bank_mask:0xf")
    E(f"""
    v_mov_b32 v66, v64
    v_mov_b32 v67, v65
    v_permlane16_swap_b32 v64, v66
    v_permlane16_swap_b32 v65, v67
    v_add_f32 v64, v64, v66
    v_add_f32 v65, v65, v67
    v_mov_b32 v66, v64
    v_mov_b32 v67, v65
    v_permlane32_swap_b32 v64, v66
    v_permlane32_swap_b32 v65, v67
    v_add_f32 v64, v64, v66
    v_add_f32 v65, v65, v67
    v_cvt_pk_bf16_f32 v64, v64, v65
    s_mov_b64 exec, 15
    buffer_store_dword v64, v14, s[48:51], s74 offen
    s_cmp_lg_u32 s2, 0
    """)
    E.branch("s_cbranch_scc1 L_end")
    E("""
    s_mov_b64 exec, 1
    buffer_store_dwordx2 v[8:9], v14, s[36:39], 0 offen sc1
    """)
    E.label("L_end")
    if PROF:
        stamp(10)
        E(f"""
        s_mov_b64 exec, 0xffff
        s_lshl_b32 s73, s2, 3
        s_add_u32 s73, s73, s52
        s_lshl_b32 s73, s73, 6
        s_add_u32 s73, s73, 0x300000
        v_lshlrev_b32 v14, 2, v0
        buffer_store_dword v7, v14, s[36:39], s73 offen
        """)
        if PROF == 2:
            E("""
            v_readlane_b32 s73, v7, 0
            s_not_b32 s73, s73
            v_writelane_b32 v7, s73, 0
            s_mov_b32 s48, s24
            s_mov_b32 s49, s25
            s_mov_b32 s50, 64
            s_mov_b32 s51, 0x20000
            s_cmp_lg_u32 s52, 7
            """)
            E.branch("s_cbranch_scc1 L_exit")
            E("""
            s_mov_b64 exec, 0x6e1
            buffer_atomic_umax v7, v14, s[48:51], 0 offen
            """)
    E.label("L_exit")
    E.raw("    s_endpgm")
    E.raw(f""".section .rodata,"a"
.p2align 6
.amdhsa_kernel {KNAME}
  .amdhsa_next_free_vgpr 256
  .amdhsa_next_free_sgpr 102
  .amdhsa_accum_offset 256
  .amdhsa_group_segment_fixed_size 0
  .amdhsa_kernarg_size 96
  .amdhsa_user_sgpr_count 2
  .amdhsa_user_sgpr_kernarg_segment_ptr 1
  .amdhsa_system_sgpr_workgroup_id_x 1
.end_amdhsa_kernel""")
    return E.text()

if __name__ == "__main__":
    out = sys.argv[1] if len(sys.argv) > 1 else "k1.s"
    cfg = {}
    for a in sys.argv[2:]:
        k, v = a.split("=")
        cfg[k] = int(v) if v.lstrip("-").isdigit() else v
    open(out, "w").write(gen(cfg))
```

```python
import sys, math
sys.path.insert(0, "gen")
from emit import Emit

KNAME = "gated_mix__gqa_block_cached__dense_activation_relu__decode_kernel"

W_OFF = 0
WQ_OFF = 86016
W1_OFF = 100352
MRG_OFF = 129024
P_OFF = 145408
Q_OFF = 151552
COEF_OFF = 152576
FAC_OFF = 152832
TAG_OFF = 152896
G_OFF = 152904
MLW_OFF = 152960
FLAG_OFF = 153088
XS_OFF = 153152
LDS_BYTES = 154112
QBOX = 0x1000
MLBOX = 0x20000
H1BOX = 0x40000
H2BOX = 0x140000
H1ML = 0x20000
WS_BYTES = 0x400000

NS = 6
RING = 64
SPIN = 400000


def gen(cfg):
    E = Emit()
    POL = cfg.get("pol", "nt")
    PROF = cfg.get("prof", 0)
    def stamp(k):
        if PROF:
            E(f"""
            s_memrealtime s[98:99]
            s_waitcnt lgkmcnt(0)
            v_writelane_b32 v7, s98, {k}
            """)
    hdr = open("gated_mix__gqa_block_cached__dense_activation_relu__decode.s.ref").read().split("\n")
    for l in hdr:
        if l.startswith("; @launch"): break
        if l.startswith(";"): E.raw(l)
    E.raw(f"; @launch grid=(256,1,1) block=(512,1,1) lds={LDS_BYTES}")
    E.raw('.amdgcn_target "amdgcn-amd-amdhsa--gfx950"')
    E.raw(".text")
    E.raw(f".globl {KNAME}\n.p2align 8\n.type {KNAME},@function\n{KNAME}:")
    E("s_cmp_ge_u32 s2, 256")
    E.branch("s_cbranch_scc1 L_exit")
    if PROF:
        E("v_mov_b32 v7, 0")
    stamp(0)
    E("""
    s_load_dwordx16 s[4:19], s[0:1], 0
    s_load_dwordx8 s[20:27], s[0:1], 64
    v_lshrrev_b32 v1, 6, v0
    v_and_b32 v0, 63, v0
    v_readfirstlane_b32 s52, v1
    s_and_b32 s53, s2, 7
    s_lshr_b32 s54, s2, 6
    s_bfe_u32 s55, s2, 0x30003
    s_lshr_b32 s56, s2, 3
    s_lshl_b32 s57, s54, 3
    s_add_u32 s57, s57, s53
    s_lshl_b32 s58, s53, 3
    s_add_u32 s58, s58, s55
    v_and_b32 v10, 15, v0
    v_lshrrev_b32 v11, 4, v0
    v_lshrrev_b32 v12, 2, v10
    v_and_b32 v13, 3, v10
    v_lshlrev_b32 v1, 9, v12
    v_lshl_add_u32 v1, v11, 6, v1
    v_lshl_add_u32 v1, v13, 4, v1
    v_add_u32 v2, 0x1000, v1
    v_lshlrev_b32 v3, 4, v0
    v_add_u32 v4, 0x1000, v3
    s_lshl_b32 s59, s57, 22
    s_lshl_b32 s60, s55, 19
    s_add_u32 s59, s59, s60
    s_lshl_b32 s60, s52, 13
    s_add_u32 s59, s59, s60
    s_mov_b32 s62, 0x22222222
    s_mov_b32 s63, 0x22222222
    s_mov_b32 s64, 0x44444444
    s_mov_b32 s65, 0x44444444
    s_mov_b32 s66, 0x88888888
    s_mov_b32 s67, 0x88888888
    s_mov_b32 s68, 0x05040100
    s_mov_b32 s69, 0x07060302
    s_mov_b32 s30, 0x8000000
    s_mov_b32 s31, 0x20000
    s_mov_b32 s34, 0x8000000
    s_mov_b32 s35, 0x20000
    """)
    E(f"s_mov_b32 s38, {WS_BYTES}")
    E("""
    s_mov_b32 s39, 0x20000
    s_mov_b32 s43, 0x20000
    s_mov_b32 s47, 0x20000
    s_mov_b32 s51, 0x20000
    s_min_u32 s72, s58, 55
    v_mov_b32 v14, 153088
    v_mov_b32 v15, 0
    ds_write_b32 v14, v15
    s_waitcnt lgkmcnt(0)
    s_barrier
    s_mov_b32 s28, s6
    s_mov_b32 s29, s7
    s_mov_b32 s32, s8
    s_mov_b32 s33, s9
    s_mov_b32 s36, s26
    s_mov_b32 s37, s27
    s_mov_b32 s44, s4
    s_mov_b32 s45, s5
    s_mov_b32 s46, 3584
    s_mov_b32 s40, s10
    s_mov_b32 s41, s11
    s_mov_b32 s42, 3670016
    s_mov_b32 s48, s20
    s_mov_b32 s49, s21
    s_mov_b32 s50, 896
    """)
    E(f"""
    s_mul_i32 s73, s52, 768
    s_add_u32 s73, s73, {P_OFF}
    v_and_b32 v5, 1, v11
    v_lshlrev_b32 v5, 8, v5
    v_and_b32 v14, 1, v12
    v_lshl_add_u32 v5, v14, 4, v5
    v_lshl_add_u32 v5, v13, 2, v5
    v_lshrrev_b32 v14, 1, v12
    v_lshl_add_u32 v5, v14, 1, v5
    v_add_u32 v5, s73, v5
    v_lshrrev_b32 v6, 3, v10
    v_lshlrev_b32 v6, 8, v6
    v_xor_b32 v14, v12, v11
    v_and_b32 v14, 1, v14
    v_cmp_eq_u32 vcc, 1, v14
    v_mov_b32 v15, 0x200
    v_cndmask_b32 v6, v6, v15, vcc
    v_lshrrev_b32 v14, 1, v11
    v_lshl_add_u32 v6, v14, 4, v6
    v_add_u32 v6, s73, v6
    v_lshl_add_u32 v14, v0, 2, s73
    v_mov_b32 v15, 0
    ds_write_b32 v14, v15 offset:512
    """)
    if not cfg.get("nos0", 0):
        E("s_cmp_eq_u32 s52, 0")
        E.branch("s_cbranch_scc1 L_w0")

    def poll_pipe(lbl, nload, mk_load, tagregs, base, dst, nsets=2, sleep=0):
        sz = 4 * nload
        def issue_set(k):
            for i in range(nload):
                E(mk_load(i, base + k * sz + 4 * i))
        sv = E.vm
        E("s_mov_b32 s80, 0")
        for k in range(nsets - 1):
            issue_set(k)
            if sleep: E(f"s_sleep {sleep}")
        E.label(lbl)
        for k in range(nsets):
            issue_set((k + nsets - 1) % nsets)
            E(f"s_waitcnt vmcnt({(nsets - 1) * nload})")
            b = base + k * sz
            E(f"v_cmp_eq_u64 s[76:77], v[{b+2}:{b+3}], v[8:9]")
            for i in range(1, nload):
                E(f"v_cmp_eq_u64 s[78:79], v[{b+4*i+2}:{b+4*i+3}], v[8:9]")
                E("s_and_b64 s[76:77], s[76:77], s[78:79]")
            E("s_cmp_eq_u64 s[76:77], exec")
            E.branch(f"s_cbranch_scc1 {lbl}_g{k}")
        if cfg.get("lsl", 0): E(f"s_sleep {cfg.get('lsl')}")
        E("s_add_u32 s80, s80, 1")
        E(f"s_cmp_lt_u32 s80, {SPIN // nsets}")
        E.branch(f"s_cbranch_scc1 {lbl}")
        for k in reversed(range(nsets)):
            E.label(f"{lbl}_g{k}")
            b = base + k * sz
            if b != dst:
                for i in range(nload):
                    E(f"v_mov_b32 v{dst+4*i}, v{b+4*i}")
                    E(f"v_mov_b32 v{dst+4*i+1}, v{b+4*i+1}")
            if k: E.branch(f"s_branch {lbl}_got")
        E.label(f"{lbl}_got")
        E.vm = sv

    OVF = cfg.get("ovf", 0)
    PL = cfg.get("pacel", 0)
    SL = {n: n % NS for n in range(16)}
    if OVF:
        SL = {n: n for n in range(6)}
        SL[6] = 5
        nxt = 7
        ACT = {}
        for st in range(16):
            if st == 5: ACT[st] = 6
            elif nxt < 16:
                ACT[st] = nxt; SL[nxt] = SL[st]; nxt += 1
    def slot(n): return RING + 32 * SL[n]
    def issue(n, lds=False, pl=0):
        r = slot(n)
        i = n & 7
        E(f"s_add_u32 s61, s59, {i * 65536}")
        last = None
        if n < 8:
            for u in range(4):
                for t in range(2):
                    va = "v1" if u < 2 else "v2"
                    off = (u & 1) * 2048 + t * 256
                    q = r + (u * 2 + t) * 4
                    if cfg.get("klin", 0):
                        j = u * 2 + t
                        va = "v3" if j < 4 else "v4"
                        off = (j & 3) * 1024
                    if pl: E(f"s_waitcnt vmcnt({pl-1})")
                    if lds:
                        j = u * 2 + t
                        E(f"s_add_u32 m0, s83, {W_OFF + (j // 3) * 28672 + (j % 3) * 1024 - off}")
                        last = E.ins(f"buffer_load_dwordx4 {va}, s[28:31], s61 offen offset:{off} {POL} lds")
                    else:
                        last = E.ins(f"buffer_load_dwordx4 v[{q}:{q+3}], {va}, s[28:31], s61 offen offset:{off} {POL}")
        else:
            for j in range(8):
                va = "v3" if j < 4 else "v4"
                off = (j & 3) * 1024
                q = r + j * 4
                last = E.ins(f"buffer_load_dwordx4 v[{q}:{q+3}], {va}, s[32:35], s61 offen offset:{off} {cfg.get('polv', POL)}")
        return last

    def prologue(pace=0, bar=False):
        ids = {}
        for n in range(NS):
            if pace and n >= pace and not PL:
                E.wait_vm(ids[n - pace])
            ids[n] = issue(n, pl=(PL if pace else 0))
        if OVF:
            E("s_mul_i32 s83, s52, 3584")
            if pace and not PL: E.wait_vm(ids[NS - pace])
            ids[6] = issue(6, lds=True, pl=(PL if pace else 0))
        return ids

    SP = cfg.get("spol", "nt")
    E("s_cmp_lg_u32 s52, 1" if not cfg.get("nos0", 0) else "s_cmp_lg_u32 s52, 100")
    E.branch("s_cbranch_scc1 L_pro")
    E(f"""
    s_mov_b32 s40, s16
    s_mov_b32 s41, s17
    s_mov_b32 s42, 1605632
    v_lshrrev_b32 v14, 2, v0
    v_mul_u32_u24 v14, 3584, v14
    v_and_b32 v15, 3, v0
    v_lshl_add_u32 v14, v15, 4, v14
    s_lshl_b32 s73, s72, 6
    s_mul_i32 s75, s54, 896
    buffer_load_dwordx4 v[56:59], v3, s[44:47], s75 offen {SP}
    buffer_load_dwordx4 v[60:63], v3, s[48:51], 0 offen {SP}
    s_mov_b32 m0, {XS_OFF}
    s_mov_b32 exec_hi, 0x00ffffff
    buffer_load_dwordx4 v3, s[44:47], s75 offen {SP} lds
    s_mov_b32 exec_hi, -1
    """)
    for i in range(28):
        E(f"s_mov_b32 m0, {W1_OFF + i * 1024}")
        if cfg.get("fakesc", 0):
            E(f"s_mul_i32 s74, s72, 28672")
            E(f"s_add_u32 s74, s74, {i * 1024}")
            E(f"buffer_load_dwordx4 v3, s[40:43], s74 offen {SP} lds")
        elif not cfg.get("noffn", 0):
            E(f"s_add_u32 s74, s73, {i * 57344}")
            E(f"buffer_load_dwordx4 v14, s[40:43], s74 offen {SP} lds")
    E.label("L_pro")
    if cfg.get("cpf", 0):
        E("s_cmp_lg_u32 s52, 2")
        E.branch("s_cbranch_scc1 L_nocpf")
        E.raw("    s_getpc_b64 s[74:75]")
        E.raw("L_pcref:")
        E.raw(f"    s_sub_u32 s74, s74, L_pcref-{KNAME}")
        E.raw("    s_subb_u32 s75, s75, 0")
        E("v_lshlrev_b32 v14, 6, v0")
        for i in range(cfg.get("cpf")):
            E.raw(f"    v_min_u32 v16, L_exit-{KNAME}, v14")
            E(f"global_load_dword v15, v16, s[74:75] offset:0")
            E.ins("v_add_u32 v14, 0x1000, v14")
        E.label("L_nocpf")
    if cfg.get("dprio", 0): E("s_setprio 3")
    base_vm = E.vm
    ids = prologue(cfg.get('pace', 0), bar=False)
    vm_after_prologue = E.vm
    stamp(1)
    E("s_cmp_eq_u32 s52, 1" if not cfg.get("nos0", 0) else "s_cmp_eq_u32 s52, 100")
    E.branch("s_cbranch_scc1 L_w1")
    E.label("L_flag")
    if cfg.get("noflag", 0): E.branch("s_branch L_main")
    E(f"v_mov_b32 v14, {FLAG_OFF}")
    E.label("L_flag_loop")
    E("""
    ds_read_b32 v15, v14
    s_waitcnt lgkmcnt(0)
    v_readfirstlane_b32 s73, v15
    s_cmp_lg_u32 s73, 0
    """)
    E.branch("s_cbranch_scc1 L_main")
    E("s_sleep 2")
    E.branch("s_branch L_flag_loop")

    E.label("L_w0")
    E("s_setprio 3")
    stamp(13)
    E(f"""
    buffer_load_dwordx2 v[8:9], v15, s[36:39], 0 offen
    v_lshrrev_b32 v14, 1, v0
    v_lshlrev_b32 v14, 13, v14
    v_and_b32 v15, 1, v0
    v_lshl_add_u32 v14, v15, 4, v14
    s_lshl_b32 s73, s53, 10
    s_lshl_b32 s74, s56, 5
    s_add_u32 s73, s73, s74
    """)
    for i in range(14):
        E(f"s_mov_b32 m0, {WQ_OFF + i * 1024}")
        if cfg.get("fakesc", 0):
            E(f"s_mul_i32 s74, s2, 14336")
            E(f"s_add_u32 s74, s74, {i * 1024}")
            E(f"buffer_load_dwordx4 v3, s[40:43], s74 offen {SP} lds")
        else:
            E(f"s_add_u32 s74, s73, {i * 262144}")
            E(f"buffer_load_dwordx4 v14, s[40:43], s74 offen {SP} lds")
    E(f"""
    v_mul_u32_u24 v15, 896, v13
    v_lshl_add_u32 v15, v11, 4, v15
    """)
    for ks in range(14):
        E(f"buffer_load_dwordx4 v[{64+4*ks}:{67+4*ks}], v15, s[44:47], 0 offen offset:{ks*64} {SP}")
    E(f"""
    v_lshl_add_u32 v14, v11, 3, v12
    v_lshlrev_b32 v14, 5, v14
    v_lshl_add_u32 v14, v13, 3, v14
    v_add_u32 v14, {WQ_OFF}, v14
    s_waitcnt lgkmcnt(0)
    """)
    stamp(14)
    E(f"""
    s_waitcnt vmcnt(0)
    v_add_co_u32 v8, vcc, 1, v8
    v_addc_co_u32 v9, vcc, 0, v9, vcc
    """)
    stamp(1)
    for ks in range(14):
        E(f"ds_read_b64_tr_b16 v[{128+4*ks}:{129+4*ks}], v14 offset:{ks*1024}")
        E(f"ds_read_b64_tr_b16 v[{130+4*ks}:{131+4*ks}], v14 offset:{ks*1024+128}")
        if ks % 7 == 6:
            E("s_waitcnt lgkmcnt(0)")
    for ks in range(14):
        c = "0" if ks == 0 else "v[48:51]"
        E(f"v_mfma_f32_16x16x32_bf16 v[48:51], v[{128+4*ks}:{131+4*ks}], v[{64+4*ks}:{67+4*ks}], {c}")
    E(f"""
    v_lshlrev_b32 v14, 14, v10
    v_lshl_add_u32 v14, v11, 4, v14
    s_lshl_b32 s73, s53, 11
    s_lshl_b32 s74, s56, 6
    s_add_u32 s73, s73, s74
    s_add_u32 s73, s73, {QBOX}
    v_mov_b32 v54, v8
    v_mov_b32 v55, v9
    v_cvt_pk_bf16_f32 v52, v48, v49
    v_cvt_pk_bf16_f32 v53, v50, v51
    s_mov_b32 exec_lo, 0x000f000f
    s_mov_b32 exec_hi, 0x000f000f
    buffer_store_dwordx4 v[52:55], v14, s[36:39], s73 offen sc1
    s_mov_b64 exec, -1
    s_lshl_b32 s73, s57, 11
    s_add_u32 s73, s73, {QBOX}
    s_mov_b32 s80, 0
    """)
    stamp(2)
    if PROF:
        E("s_waitcnt vmcnt(0)")
    stamp(15)
    NPS = cfg.get("nps", 2)
    poll_pipe("L_w0_poll", 2, lambda i, r: f"buffer_load_dwordx4 v[{r}:{r+3}], v3, s[36:39], s73 offen offset:{i*1024} sc1",
              None, 200, 56, nsets=NPS, sleep=cfg.get("psl", 4))
    stamp(11)
    if PROF:
        E("v_writelane_b32 v7, s80, 12")
    E(f"""
    v_lshlrev_b32 v14, 3, v0
    v_add_u32 v14, {Q_OFF}, v14
    ds_write_b64 v14, v[56:57]
    ds_write_b64 v14, v[60:61] offset:512
    v_mov_b32 v15, {TAG_OFF}
    ds_write_b64 v15, v[8:9]
    v_mov_b32 v15, {FLAG_OFF}
    v_mov_b32 v14, 1
    s_waitcnt lgkmcnt(0)
    ds_write_b32 v15, v14
    """)
    if not cfg.get("dprio", 0): E("s_setprio 0")
    E.vm = base_vm
    ids2 = prologue()
    assert ids2 == ids and E.vm == vm_after_prologue
    E.branch("s_branch L_main")

    E.label("L_w1")
    E(f"""
    v_lshl_add_u32 v14, v11, 3, v12
    v_lshlrev_b32 v14, 6, v14
    v_lshl_add_u32 v14, v13, 3, v14
    v_add_u32 v14, {W1_OFF}, v14
    v_lshlrev_b32 v15, 4, v11
    v_add_u32 v15, {XS_OFF}, v15
    s_waitcnt vmcnt({8*(NS+OVF)})
    """)
    def ffn_rd(ks):
        xb = 16 + 4 * (ks & 1)
        tb = 24 + 8 * (ks & 1)
        E(f"ds_read_b128 v[{xb}:{xb+3}], v15 offset:{ks*64}")
        for ct in range(2):
            q = tb + 4 * ct
            E(f"ds_read_b64_tr_b16 v[{q}:{q+1}], v14 offset:{ks*2048+ct*32}")
            E(f"ds_read_b64_tr_b16 v[{q+2}:{q+3}], v14 offset:{ks*2048+ct*32+256}")
    ffn_rd(0)
    E("s_mov_b32 s74, 0xffff0000")
    E("v_mov_b32 v40, 0")
    for i in range(4):
        E(f"""
        v_lshlrev_b32 v41, 16, v{56+i}
        v_lshlrev_b32 v42, 16, v{60+i}
        v_fmac_f32 v40, v41, v42
        v_and_b32 v41, s74, v{56+i}
        v_and_b32 v42, s74, v{60+i}
        v_fmac_f32 v40, v41, v42
        """)
    E("""
    v_cmp_gt_u32 vcc, 56, v0
    v_cndmask_b32 v40, 0, v40, vcc
    """)
    for ks in range(14):
        if ks + 1 < 14:
            ffn_rd(ks + 1)
            E("s_waitcnt lgkmcnt(5)")
        else:
            E("s_waitcnt lgkmcnt(0)")
        xb = 16 + 4 * (ks & 1)
        tb = 24 + 8 * (ks & 1)
        for ct in range(2):
            d = 48 + ct * 4
            c = "0" if ks == 0 else f"v[{d}:{d+3}]"
            E(f"v_mfma_f32_16x16x32_bf16 v[{d}:{d+3}], v[{tb+4*ct}:{tb+4*ct+3}], v[{xb}:{xb+3}], {c}")
    for r in (8, 4, 2, 1):
        E(f"v_add_f32_dpp v40, v40, v40 row_ror:{r} row_mask:0xf bank_mask:0xf")
    E("""
    v_mov_b32 v41, v40
    v_permlane16_swap_b32 v40, v41
    v_add_f32 v40, v40, v41
    v_mov_b32 v41, v40
    v_permlane32_swap_b32 v40, v41
    v_add_f32 v40, v40, v41
    v_mul_f32 v40, 0xbfb8aa3b, v40
    v_exp_f32 v40, v40
    v_add_f32 v40, 1.0, v40
    v_rcp_f32 v40, v40
    v_sub_f32 v41, 1.0, v40
    s_cmp_lt_u32 s58, 56
    s_cselect_b64 s[76:77], -1, 0
    """)
    E(f"""
    v_mov_b32 v15, {G_OFF}
    ds_write_b32 v15, v40
    """)
    for r in range(8):
        E(f"""
        v_max_f32 v{48+r}, 0, v{48+r}
        v_mul_f32 v{48+r}, v41, v{48+r}
        v_cndmask_b32 v{48+r}, 0, v{48+r}, s[76:77]
        """)
    E(f"""
    v_cvt_pk_bf16_f32 v56, v48, v49
    v_cvt_pk_bf16_f32 v57, v50, v51
    v_cvt_pk_bf16_f32 v58, v52, v53
    v_cvt_pk_bf16_f32 v59, v54, v55
    v_lshlrev_b32 v14, 3, v11
    v_add_u32 v14, {COEF_OFF + 128}, v14
    s_mov_b32 exec_lo, 0x00010001
    s_mov_b32 exec_hi, 0x00010001
    ds_write_b64 v14, v[56:57]
    ds_write_b64 v14, v[58:59] offset:32
    s_mov_b64 exec, -1
    """)
    stamp(2)
    E.branch("s_branch L_flag")

    LA = cfg.get("la", NS)
    def sched(n):
        if OVF: return ACT.get(n)
        if n < LA: k = NS + n
        elif n < NS: return None
        else: k = n + LA
        return k if k < 16 else None
    def main(w7):
        ids_ = dict(ids)
        E.vm = vm_after_prologue
        E.label("L_main")
        stamp(3)
        E(f"""
        v_mov_b32 v15, {TAG_OFF}
        ds_read_b64 v[8:9], v15
        v_bfe_u32 v14, v10, 2, 1
        v_lshlrev_b32 v14, 9, v14
        v_lshl_add_u32 v14, v11, 6, v14
        v_lshl_add_u32 v14, v13, 4, v14
        v_add_u32 v14, {Q_OFF}, v14
        ds_read_b128 v[16:19], v14
        ds_read_b128 v[20:23], v14 offset:256
        s_mov_b32 s40, s12
        s_mov_b32 s41, s13
        s_mov_b32 s42, 3670016
        s_mov_b32 s44, s18
        s_mov_b32 s45, s19
        s_mov_b32 s46, 1605632
        s_mov_b32 s81, 0x3db8aa3b
        s_waitcnt lgkmcnt(0)
        """)
        DP = cfg.get("dprio", 0)
        TH = [int(x) for x in str(cfg.get("dth", "4.8.12")).split(".")]
        def setp(n):
            if DP and n in TH: E(f"s_setprio {2 - TH.index(n)}")
        for n in range(8):
            r = slot(n)
            setp(n)
            if OVF and n == 6: E("s_waitcnt lgkmcnt(0)")
            else: E.wait_vm(ids_[n])
            for t in range(2):
                for u in range(4):
                    d = 48 + 4 * u
                    q = r + (u * 2 + t) * 4
                    c = "0" if t == 0 else f"v[{d}:{d+3}]"
                    if not cfg.get("nocomp", 0): E(f"v_mfma_f32_16x16x32_bf16 v[{d}:{d+3}], v[{16+4*t}:{19+4*t}], v[{q}:{q+3}], {c}")
            if OVF and n == 5:
                E.wait_vm(ids_[6])
                E("v_add_u32 v14, s83, v3")
                for j in range(8):
                    E(f"ds_read_b128 v[{r+4*j}:{r+4*j+3}], v14 offset:{W_OFF + (j // 3) * 28672 + (j % 3) * 1024}")
            elif sched(n) is not None:
                ids_[sched(n)] = issue(sched(n))
            if n == cfg.get("stage_at", 6 if OVF else 3) and not cfg.get("nostage", 0):
                E(f"""
                s_mul_i32 s73, s52, 3584
                s_lshl_b32 s74, s53, 9
                s_lshl_b32 s75, s55, 5
                s_add_u32 s74, s74, s75
                s_mul_i32 s74, s74, 896
                s_add_u32 s74, s74, s73
                s_add_u32 s75, s74, {256*896}
                s_mul_i32 s82, s72, {32*896}
                s_add_u32 s82, s82, s73
                s_mov_b32 exec_hi, 0x00ffffff
                """)
                for blk in range(3):
                    E(f"s_add_u32 m0, s73, {W_OFF + blk * 28672}")
                    so = ["s74", "s75", "s82"][blk]
                    srd = "s[40:43]" if blk < 2 else "s[44:47]"
                    for k in range(4):
                        E(f"buffer_load_dwordx4 v3, {srd}, {so} offen offset:{k*896} {SP} lds")
                E("s_mov_b32 exec_hi, -1")
            for u in range(4):
                d = 48 + 4 * u
                E(f"v_cndmask_b32 v{32+u}, v{d}, v{d+1}, s[62:63]")
            for u in range(4):
                d = 48 + 4 * u
                E(f"v_cndmask_b32 v{32+u}, v{32+u}, v{d+2}, s[64:65]")
            for u in range(4):
                d = 48 + 4 * u
                E(f"v_cndmask_b32 v{32+u}, v{32+u}, v{d+3}, s[66:67]")
            for u in range(4):
                E(f"v_add_f32_dpp v{32+u}, v{32+u}, v{32+u} quad_perm:[1,0,3,2] row_mask:0xf bank_mask:0xf")
            for u in range(4):
                E(f"v_add_f32_dpp v{32+u}, v{32+u}, v{32+u} quad_perm:[2,3,0,1] row_mask:0xf bank_mask:0xf")
            E(f"""
            v_cndmask_b32 v{24+n}, v32, v33, s[62:63]
            v_cndmask_b32 v{24+n}, v{24+n}, v34, s[64:65]
            v_cndmask_b32 v{24+n}, v{24+n}, v35, s[66:67]
            """)
        stamp(4)
        E("""
        v_max3_f32 v32, v24, v25, v26
        v_max3_f32 v33, v27, v28, v29
        v_max3_f32 v32, v32, v30, v31
        v_max_f32 v32, v32, v33
        """)
        for r in (8, 4, 2, 1):
            E(f"v_max_f32_dpp v32, v32, v32 row_ror:{r} row_mask:0xf bank_mask:0xf")
        E("v_mul_f32 v36, s81, v32")
        for i in range(8):
            E(f"v_fma_f32 v{24+i}, v{24+i}, s81, -v36")
        for i in range(8):
            E(f"v_exp_f32 v{24+i}, v{24+i}")
        E("""
        v_add_f32 v32, v24, v25
        v_add_f32 v33, v26, v27
        v_add_f32 v34, v28, v29
        v_add_f32 v35, v30, v31
        v_add_f32 v32, v32, v33
        v_add_f32 v34, v34, v35
        v_add_f32 v37, v32, v34
        """)
        for i in range(0, 8, 2):
            E(f"v_cvt_pk_bf16_f32 v{40+i//2}, v{24+i}, v{25+i}")
        for r in (8, 4, 2, 1):
            E(f"v_add_f32_dpp v37, v37, v37 row_ror:{r} row_mask:0xf bank_mask:0xf")
        for i in range(0, 8, 2):
            E(f"ds_write_b16 v5, v{40+i//2} offset:{i*32}")
            E(f"ds_write_b16_d16_hi v5, v{40+i//2} offset:{(i+1)*32}")
        E(f"""
        s_lshl_b32 s73, s52, 3
        s_add_u32 s73, s73, {MLW_OFF}
        v_lshl_add_u32 v14, v0, 2, s73
        s_mov_b32 exec_lo, 0x00010001
        s_mov_b32 exec_hi, 0
        ds_write_b64 v14, v[36:37]
        s_mov_b64 exec, -1
        s_waitcnt lgkmcnt(0)
        ds_read_b128 v[12:15], v6
        """)
        ml_ids = None
        for n in range(8, 16):
            i = n - 8
            r = slot(n)
            pa = 12 if (i % 2 == 0) else 44
            pn = 44 if (i % 2 == 0) else 12
            setp(n)
            E.wait_vm(ids_[n])
            E("s_waitcnt lgkmcnt(0)")
            for half in range(2):
                for ii in range(2):
                    sreg = half * 2 + ii
                    for e in range(2):
                        dloc = ii * 2 + e
                        for jp in range(4):
                            tq = 48 + dloc * 4 + jp
                            s1 = r + (2 * jp) * 4 + sreg
                            s0 = r + (2 * jp + 1) * 4 + sreg
                            if not cfg.get("nocomp", 0): E(f"v_perm_b32 v{tq}, v{s0}, v{s1}, s{68+e}")
                if half == 1 and sched(n) is not None:
                    ids_[sched(n)] = issue(sched(n))
                for dloc in range(4):
                    d = half * 4 + dloc
                    a = 16 + 4 * d
                    c = "0" if i == 0 else f"v[{a}:{a+3}]"
                    if not cfg.get("nocomp", 0): E(f"v_mfma_f32_16x16x32_bf16 v[{a}:{a+3}], v[12:15], v[{48+dloc*4}:{51+dloc*4}], {c}")
            if i < 7:
                E(f"ds_read_b128 v[12:15], v6 offset:{(i+1)*32}")
        if cfg.get("dup", 0):
            for rep in range(cfg.get("dup")):
                for n in range(8):
                    if n >= 4 or rep: E("s_waitcnt vmcnt(24)")
                    SLs = SL[n]; SL[n] = n % 4
                    issue(n)
                    SL[n] = SLs
            E("s_waitcnt vmcnt(0)")
        stamp(5)
        E(f"""
        s_lshl_b32 s73, s52, 11
        s_add_u32 s73, s73, {MRG_OFF}
        v_lshlrev_b32 v14, 5, v0
        v_add_u32 v14, s73, v14
        """)
        for d in range(8):
            E(f"v_mov_b32 v{48+d}, v{16+4*d}")
        E("""
        ds_write_b128 v14, v[48:51]
        ds_write_b128 v14, v[52:55] offset:16
        s_waitcnt vmcnt(0) lgkmcnt(0)
        s_barrier
        """)

    main(False)
    stamp(6)
    if cfg.get("notail", 0): E.branch("s_branch L_end")
    E("s_cmp_eq_u32 s52, 7")
    E.branch("s_cbranch_scc1 L_w7tail")
    E("s_cmp_ge_u32 s52, 4")
    E.branch("s_cbranch_scc1 L_proj")
    E(f"""
    s_lshl_b32 s73, s52, 9
    s_add_u32 s73, s73, {MRG_OFF}
    v_lshl_add_u32 v14, v0, 3, s73
    s_lshr_b32 s74, s52, 1
    s_lshl_b32 s75, s74, 6
    s_add_u32 s75, s75, {MLW_OFF}
    v_mov_b32 v15, s75
    ds_read_b128 v[64:67], v15
    ds_read_b128 v[68:71], v15 offset:16
    ds_read_b128 v[72:75], v15 offset:32
    ds_read_b128 v[76:79], v15 offset:48
    """)
    for w in range(8):
        E(f"ds_read_b64 v[{24+2*w}:{25+2*w}], v14 offset:{w*2048}")
    E(f"""
    s_and_b32 s75, s52, 1
    s_lshl_b32 s75, s75, 14
    v_lshlrev_b32 v14, 12, v11
    v_lshl_add_u32 v14, v10, 4, v14
    s_lshl_b32 s73, s57, 15
    s_add_u32 s73, s73, s75
    s_lshl_b32 s75, s55, 9
    s_add_u32 s73, s73, s75
    s_lshl_b32 s75, s74, 8
    s_add_u32 s73, s73, s75
    s_add_u32 s73, s73, {H1BOX}
    v_mov_b32 v42, v8
    v_mov_b32 v43, v9
    v_mov_b32 v46, v8
    v_mov_b32 v47, v9
    s_lshl_b32 s82, s57, 11
    s_lshl_b32 s75, s55, 5
    s_add_u32 s82, s82, s75
    s_lshl_b32 s75, s74, 4
    s_add_u32 s82, s82, s75
    s_add_u32 s82, s82, {H1ML}
    v_lshlrev_b32 v15, 8, v0
    s_waitcnt lgkmcnt(8)
    v_max3_f32 v44, v64, v66, v68
    v_max3_f32 v45, v70, v72, v74
    v_max3_f32 v44, v44, v76, v78
    v_max_f32 v44, v44, v45
    """)
    for w in range(8):
        E(f"v_sub_f32 v{16+w}, v{64+2*w}, v44")
    for w in range(8):
        E(f"v_exp_f32 v{16+w}, v{16+w}")
    E("""
    s_waitcnt lgkmcnt(0)
    v_mul_f32 v40, v16, v24
    v_mul_f32 v41, v16, v25
    v_mul_f32 v45, v16, v65
    """)
    for w in range(1, 8):
        E(f"v_fmac_f32 v40, v{16+w}, v{24+2*w}")
        E(f"v_fmac_f32 v41, v{16+w}, v{25+2*w}")
        E(f"v_fmac_f32 v45, v{16+w}, v{65+2*w}")
    H1ST = cfg.get("h1st", "sc1").replace("+", " ")
    E(f"buffer_store_dwordx4 v[40:43], v14, s[36:39], s73 offen {H1ST}")
    E(f"""
    s_mov_b64 exec, 0xff
    buffer_store_dwordx4 v[44:47], v15, s[36:39], s82 offen {H1ST}
    s_mov_b64 exec, -1
    """)
    stamp(12)
    E.label("L_proj")
    E(f"""
    v_lshrrev_b32 v12, 2, v10
    v_and_b32 v13, 3, v10
    v_lshl_add_u32 v14, v11, 3, v12
    v_mul_u32_u24 v14, 896, v14
    v_lshl_add_u32 v14, v13, 3, v14
    s_lshl_b32 s73, s52, 7
    v_add_u32 v14, s73, v14
    v_lshlrev_b32 v15, 4, v11
    v_add_u32 v15, {COEF_OFF}, v15
    ds_read_b128 v[120:123], v15 offset:128
    """)
    cnt = 1
    for ks in (2, 0, 1):
        for ct in range(4):
            q = 64 + (ks * 4 + ct) * 4
            E(f"ds_read_b64_tr_b16 v[{q}:{q+1}], v14 offset:{ks*28672+ct*32}")
            E(f"ds_read_b64_tr_b16 v[{q+2}:{q+3}], v14 offset:{ks*28672+ct*32+3584}")
        E("s_waitcnt lgkmcnt(0)")
    for ct in range(4):
        q = 64 + (2 * 4 + ct) * 4
        E(f"v_mfma_f32_16x16x32_bf16 v[{128+4*ct}:{131+4*ct}], v[{q}:{q+3}], v[120:123], 0")
    E(f"""
    v_lshrrev_b32 v12, 1, v11
    v_lshlrev_b32 v12, 12, v12
    v_and_b32 v13, 1, v11
    v_lshl_add_u32 v12, v13, 5, v12
    v_lshl_add_u32 v12, v10, 4, v12
    s_mul_i32 s73, s54, {56*4096}
    s_lshl_b32 s74, s58, 6
    s_add_u32 s73, s73, s74
    s_lshl_b32 s74, s52, 15
    s_add_u32 s73, s73, s74
    s_add_u32 s73, s73, {H2BOX}
    s_mov_b32 s76, 0x00020002
    s_mov_b32 s77, 0x00020002
    """)
    for ct in range(4):
        E(f"v_mov_b32 v{146+4*ct}, v8")
        E(f"v_mov_b32 v{147+4*ct}, v9")
    E("s_barrier")
    stamp(8)
    E("""
    ds_read_b128 v[112:115], v15
    ds_read_b128 v[116:119], v15 offset:64
    s_waitcnt lgkmcnt(0)
    """)
    for ks in range(2):
        for ct in range(4):
            q = 64 + (ks * 4 + ct) * 4
            E(f"v_mfma_f32_16x16x32_bf16 v[{128+4*ct}:{131+4*ct}], v[{q}:{q+3}], v[{112+4*ks}:{115+4*ks}], v[{128+4*ct}:{131+4*ct}]")
    for ct in range(4):
        E(f"v_cndmask_b32 v{144+4*ct}, v{128+4*ct}, v{130+4*ct}, s[76:77]")
        E(f"v_cndmask_b32 v{145+4*ct}, v{129+4*ct}, v{131+4*ct}, s[76:77]")
    E("""
    s_mov_b32 exec_lo, 0x00030003
    s_mov_b32 exec_hi, 0x00030003
    """)
    for ct in range(4):
        E(f"s_add_u32 s74, s73, {ct*8192}")
        E(f"buffer_store_dwordx4 v[{144+4*ct}:{147+4*ct}], v12, s[36:39], s74 offen {cfg.get('h2st', 'sc1').replace('+', ' ')}")
    E.branch("s_branch L_end")

    E.label("L_w7tail")
    E(f"""
    s_lshl_b32 s73, s57, 3
    s_add_u32 s73, s73, s55
    s_lshl_b32 s82, s73, 8
    s_add_u32 s82, s82, {H1ML}
    s_lshl_b32 s73, s73, 12
    s_add_u32 s73, s73, {H1BOX}
    v_mov_b32 v15, {G_OFF}
    ds_read_b32 v40, v15
    v_and_b32 v14, 31, v0
    v_lshlrev_b32 v14, 2, v14
    v_add_u32 v14, {COEF_OFF}, v14
    v_lshlrev_b32 v13, 4, v11
    s_mov_b32 s80, 0
    """)
    def h1_load(i, r):
        H1LD = cfg.get("h1ld", "sc1").replace("+", " ")
        if i < 4: return f"buffer_load_dwordx4 v[{r}:{r+3}], v3, s[36:39], s73 offen offset:{i*1024} {H1LD}"
        return f"buffer_load_dwordx4 v[{r}:{r+3}], v13, s[36:39], s82 offen offset:{(i-4)*64} {H1LD}"
    poll_pipe("L_h1", 8, h1_load, None, 128, 64, nsets=NPS, sleep=cfg.get("psl", 4))
    stamp(7)
    if PROF:
        E("v_writelane_b32 v7, s80, 13")
    E(f"""
    v_max3_f32 v96, v80, v84, v88
    v_max_f32 v96, v96, v92
    v_mov_b32 v97, v96
    v_permlane32_swap_b32 v96, v97
    v_max_f32 v96, v96, v97
    v_sub_f32 v80, v80, v96
    v_sub_f32 v84, v84, v96
    v_sub_f32 v88, v88, v96
    v_sub_f32 v92, v92, v96
    v_exp_f32 v80, v80
    v_exp_f32 v84, v84
    v_exp_f32 v88, v88
    v_exp_f32 v92, v92
    v_mul_f32 v98, v80, v81
    v_mul_f32 v64, v80, v64
    v_mul_f32 v65, v80, v65
    v_fmac_f32 v98, v84, v85
    v_fmac_f32 v64, v84, v68
    v_fmac_f32 v65, v84, v69
    v_fmac_f32 v98, v88, v89
    v_fmac_f32 v64, v88, v72
    v_fmac_f32 v65, v88, v73
    v_fmac_f32 v98, v92, v93
    v_fmac_f32 v64, v92, v76
    v_fmac_f32 v65, v92, v77
    v_mov_b32 v99, v98
    v_mov_b32 v66, v64
    v_mov_b32 v67, v65
    v_permlane32_swap_b32 v98, v99
    v_permlane32_swap_b32 v64, v66
    v_permlane32_swap_b32 v65, v67
    v_add_f32 v98, v98, v99
    v_add_f32 v64, v64, v66
    v_add_f32 v65, v65, v67
    v_rcp_f32 v98, v98
    s_waitcnt lgkmcnt(0)
    v_mul_f32 v98, v40, v98
    v_mul_f32 v64, v98, v64
    v_mul_f32 v65, v98, v65
    v_cvt_pk_bf16_f32 v64, v64, v65
    ds_write_b32 v14, v64
    s_waitcnt lgkmcnt(0)
    s_barrier
    s_cmp_ge_u32 s58, 56
    """)
    E.branch("s_cbranch_scc1 L_end")
    E(f"""
    s_mul_i32 s73, s54, 56
    s_add_u32 s73, s73, s58
    s_lshl_b32 s73, s73, 12
    s_add_u32 s73, s73, {H2BOX}
    s_mov_b32 s48, s22
    s_mov_b32 s49, s23
    s_mov_b32 s50, 3584
    s_mul_i32 s74, s54, 896
    s_lshl_b32 s75, s58, 4
    s_add_u32 s74, s74, s75
    v_lshlrev_b32 v14, 2, v0
    s_mov_b32 s80, 0
    """)
    poll_pipe("L_h2", 4, lambda i, r: f"buffer_load_dwordx4 v[{r}:{r+3}], v3, s[36:39], s73 offen offset:{i*1024} {cfg.get('h2ld', 'sc1').replace('+', ' ')}",
              None, 128, 64, nsets=NPS, sleep=cfg.get("psl", 4))
    E("""
    v_add_f32 v64, v64, v68
    v_add_f32 v65, v65, v69
    v_add_f32 v72, v72, v76
    v_add_f32 v73, v73, v77
    v_add_f32 v64, v64, v72
    v_add_f32 v65, v65, v73
    """)
    stamp(9)
    if PROF:
        E("v_writelane_b32 v7, s80, 14")
    for rr in (4, 8):
        E(f"v_add_f32_dpp v64, v64, v64 row_ror:{rr} row_mask:0xf bank_mask:0xf")
        E(f"v_add_f32_dpp v65, v65, v65 row_ror:{rr} row_mask:0xf bank_mask:0xf")
    E(f"""
    v_mov_b32 v66, v64
    v_mov_b32 v67, v65
    v_permlane16_swap_b32 v64, v66
    v_permlane16_swap_b32 v65, v67
    v_add_f32 v64, v64, v66
    v_add_f32 v65, v65, v67
    v_mov_b32 v66, v64
    v_mov_b32 v67, v65
    v_permlane32_swap_b32 v64, v66
    v_permlane32_swap_b32 v65, v67
    v_add_f32 v64, v64, v66
    v_add_f32 v65, v65, v67
    v_cvt_pk_bf16_f32 v64, v64, v65
    s_mov_b64 exec, 15
    buffer_store_dword v64, v14, s[48:51], s74 offen
    s_cmp_lg_u32 s2, 0
    """)
    E.branch("s_cbranch_scc1 L_end")
    E("""
    s_mov_b64 exec, 1
    buffer_store_dwordx2 v[8:9], v14, s[36:39], 0 offen sc1
    """)
    E.label("L_end")
    if PROF:
        stamp(10)
        E(f"""
        s_mov_b64 exec, 0xffff
        s_lshl_b32 s73, s2, 3
        s_add_u32 s73, s73, s52
        s_lshl_b32 s73, s73, 6
        s_add_u32 s73, s73, 0x300000
        v_lshlrev_b32 v14, 2, v0
        buffer_store_dword v7, v14, s[36:39], s73 offen
        """)
        if PROF == 2:
            E("""
            v_readlane_b32 s73, v7, 0
            s_not_b32 s73, s73
            v_writelane_b32 v7, s73, 0
            s_mov_b32 s48, s24
            s_mov_b32 s49, s25
            s_mov_b32 s50, 64
            s_mov_b32 s51, 0x20000
            s_cmp_lg_u32 s52, 7
            """)
            E.branch("s_cbranch_scc1 L_exit")
            E("""
            s_mov_b64 exec, 0x6e1
            buffer_atomic_umax v7, v14, s[48:51], 0 offen
            """)
    E.label("L_exit")
    E.raw("    s_endpgm")
    E.raw(f""".section .rodata,"a"
.p2align 6
.amdhsa_kernel {KNAME}
  .amdhsa_next_free_vgpr 256
  .amdhsa_next_free_sgpr 102
  .amdhsa_accum_offset 256
  .amdhsa_group_segment_fixed_size 0
  .amdhsa_kernarg_size 96
  .amdhsa_user_sgpr_count 2
  .amdhsa_user_sgpr_kernarg_segment_ptr 1
  .amdhsa_system_sgpr_workgroup_id_x 1
.end_amdhsa_kernel""")
    return E.text()

if __name__ == "__main__":
    out = sys.argv[1] if len(sys.argv) > 1 else "k1.s"
    cfg = {}
    for a in sys.argv[2:]:
        k, v = a.split("=")
        cfg[k] = int(v) if v.lstrip("-").isdigit() else v
    open(out, "w").write(gen(cfg))
```

```python
import sys, math
sys.path.insert(0, "gen")
from emit import Emit

KNAME = "gated_mix__gqa_block_cached__dense_activation_relu__decode_kernel"

W_OFF = 0
WQ_OFF = 86016
W1_OFF = 100352
MRG_OFF = 129024
P_OFF = 145408
Q_OFF = 151552
COEF_OFF = 152576
FAC_OFF = 152832
TAG_OFF = 152896
G_OFF = 152904
MLW_OFF = 152960
FLAG_OFF = 153088
XS_OFF = 153152
LDS_BYTES = 154112
QBOX = 0x1000
MLBOX = 0x20000
H1BOX = 0x40000
H2BOX = 0x140000
H1ML = 0x20000
WS_BYTES = 0x400000

NS = 6
RING = 64
SPIN = 400000


def gen(cfg):
    E = Emit()
    POL = cfg.get("pol", "nt")
    PROF = cfg.get("prof", 0)
    def stamp(k):
        if PROF:
            E(f"""
            s_memrealtime s[98:99]
            s_waitcnt lgkmcnt(0)
            v_writelane_b32 v7, s98, {k}
            """)
    hdr = open("gated_mix__gqa_block_cached__dense_activation_relu__decode.s.ref").read().split("\n")
    for l in hdr:
        if l.startswith("; @launch"): break
        if l.startswith(";"): E.raw(l)
    E.raw(f"; @launch grid=(256,1,1) block=(512,1,1) lds={LDS_BYTES}")
    E.raw('.amdgcn_target "amdgcn-amd-amdhsa--gfx950"')
    E.raw(".text")
    E.raw(f".globl {KNAME}\n.p2align 8\n.type {KNAME},@function\n{KNAME}:")
    E("s_cmp_ge_u32 s2, 256")
    E.branch("s_cbranch_scc1 L_exit")
    if PROF:
        E("v_mov_b32 v7, 0")
    stamp(0)
    E("""
    s_load_dwordx16 s[4:19], s[0:1], 0
    s_load_dwordx8 s[20:27], s[0:1], 64
    v_lshrrev_b32 v1, 6, v0
    v_and_b32 v0, 63, v0
    v_readfirstlane_b32 s52, v1
    """ + ("""
    s_and_b32 s55, s2, 7
    s_lshr_b32 s54, s2, 6
    s_bfe_u32 s53, s2, 0x30003
    s_lshl_b32 s56, s55, 2
    s_add_u32 s56, s56, s54
    """ if cfg.get("nox", 0) == 1 else """
    s_bfe_u32 s53, s2, 0x20001
    s_lshl_b32 s53, s53, 1
    s_bfe_u32 s55, s2, 0x10003
    s_add_u32 s53, s53, s55
    s_lshr_b32 s54, s2, 6
    s_bfe_u32 s55, s2, 0x20004
    s_lshl_b32 s55, s55, 1
    s_and_b32 s56, s2, 1
    s_add_u32 s55, s55, s56
    s_lshl_b32 s56, s55, 2
    s_add_u32 s56, s56, s54
    """ if cfg.get("nox", 0) == 2 else """
    s_and_b32 s53, s2, 7
    s_lshr_b32 s54, s2, 6
    s_bfe_u32 s55, s2, 0x30003
    s_lshr_b32 s56, s2, 3
    """) + """
    s_lshl_b32 s57, s54, 3
    s_add_u32 s57, s57, s53
    s_lshl_b32 s58, s53, 3
    s_add_u32 s58, s58, s55
    v_and_b32 v10, 15, v0
    v_lshrrev_b32 v11, 4, v0
    v_lshrrev_b32 v12, 2, v10
    v_and_b32 v13, 3, v10
    v_lshlrev_b32 v1, 9, v12
    v_lshl_add_u32 v1, v11, 6, v1
    v_lshl_add_u32 v1, v13, 4, v1
    v_add_u32 v2, 0x1000, v1
    v_lshlrev_b32 v3, 4, v0
    v_add_u32 v4, 0x1000, v3
    s_lshl_b32 s59, s57, 22
    s_lshl_b32 s60, s55, 19
    s_add_u32 s59, s59, s60
    s_lshl_b32 s60, s52, 13
    s_add_u32 s59, s59, s60
    s_mov_b32 s62, 0x22222222
    s_mov_b32 s63, 0x22222222
    s_mov_b32 s64, 0x44444444
    s_mov_b32 s65, 0x44444444
    s_mov_b32 s66, 0x88888888
    s_mov_b32 s67, 0x88888888
    s_mov_b32 s68, 0x05040100
    s_mov_b32 s69, 0x07060302
    s_mov_b32 s30, 0x8000000
    s_mov_b32 s31, 0x20000
    s_mov_b32 s34, 0x8000000
    s_mov_b32 s35, 0x20000
    """)
    E(f"s_mov_b32 s38, {WS_BYTES}")
    E("""
    s_mov_b32 s39, 0x20000
    s_mov_b32 s43, 0x20000
    s_mov_b32 s47, 0x20000
    s_mov_b32 s51, 0x20000
    s_min_u32 s72, s58, 55
    v_mov_b32 v14, 153088
    v_mov_b32 v15, 0
    ds_write_b32 v14, v15
    s_waitcnt lgkmcnt(0)
    """ + ("s_barrier" if cfg.get("bpos", 0) == 0 else "") + """
    s_mov_b32 s28, s6
    s_mov_b32 s29, s7
    s_mov_b32 s32, s8
    s_mov_b32 s33, s9
    s_mov_b32 s36, s26
    s_mov_b32 s37, s27
    s_mov_b32 s44, s4
    s_mov_b32 s45, s5
    s_mov_b32 s46, 3584
    s_mov_b32 s40, s10
    s_mov_b32 s41, s11
    s_mov_b32 s42, 3670016
    s_mov_b32 s48, s20
    s_mov_b32 s49, s21
    s_mov_b32 s50, 896
    """)
    E(f"""
    s_mul_i32 s73, s52, 768
    s_add_u32 s73, s73, {P_OFF}
    v_and_b32 v5, 1, v11
    v_lshlrev_b32 v5, 8, v5
    v_and_b32 v14, 1, v12
    v_lshl_add_u32 v5, v14, 4, v5
    v_lshl_add_u32 v5, v13, 2, v5
    v_lshrrev_b32 v14, 1, v12
    v_lshl_add_u32 v5, v14, 1, v5
    v_add_u32 v5, s73, v5
    v_lshrrev_b32 v6, 3, v10
    v_lshlrev_b32 v6, 8, v6
    v_xor_b32 v14, v12, v11
    v_and_b32 v14, 1, v14
    v_cmp_eq_u32 vcc, 1, v14
    v_mov_b32 v15, 0x200
    v_cndmask_b32 v6, v6, v15, vcc
    v_lshrrev_b32 v14, 1, v11
    v_lshl_add_u32 v6, v14, 4, v6
    v_add_u32 v6, s73, v6
    v_lshl_add_u32 v14, v0, 2, s73
    v_mov_b32 v15, 0
    ds_write_b32 v14, v15 offset:512
    """)
    if not cfg.get("nos0", 0):
        E("s_cmp_eq_u32 s52, 0")
        E.branch("s_cbranch_scc1 L_w0")

    def poll_pipe(lbl, nload, mk_load, tagregs, base, dst, nsets=2, sleep=0):
        sz = 4 * nload
        def issue_set(k):
            for i in range(nload):
                E(mk_load(i, base + k * sz + 4 * i))
        sv = E.vm
        E("s_mov_b32 s80, 0")
        for k in range(nsets - 1):
            issue_set(k)
            if sleep: E(f"s_sleep {sleep}")
        E.label(lbl)
        for k in range(nsets):
            issue_set((k + nsets - 1) % nsets)
            E(f"s_waitcnt vmcnt({(nsets - 1) * nload})")
            b = base + k * sz
            E(f"v_cmp_eq_u64 s[76:77], v[{b+2}:{b+3}], v[8:9]")
            for i in range(1, nload):
                E(f"v_cmp_eq_u64 s[78:79], v[{b+4*i+2}:{b+4*i+3}], v[8:9]")
                E("s_and_b64 s[76:77], s[76:77], s[78:79]")
            E("s_cmp_eq_u64 s[76:77], exec")
            E.branch(f"s_cbranch_scc1 {lbl}_g{k}")
        if cfg.get("lsl", 0): E(f"s_sleep {cfg.get('lsl')}")
        E("s_add_u32 s80, s80, 1")
        E(f"s_cmp_lt_u32 s80, {SPIN // nsets}")
        E.branch(f"s_cbranch_scc1 {lbl}")
        for k in reversed(range(nsets)):
            E.label(f"{lbl}_g{k}")
            b = base + k * sz
            if b != dst:
                for i in range(nload):
                    E(f"v_mov_b32 v{dst+4*i}, v{b+4*i}")
                    E(f"v_mov_b32 v{dst+4*i+1}, v{b+4*i+1}")
            if k: E.branch(f"s_branch {lbl}_got")
        E.label(f"{lbl}_got")
        E.vm = sv

    OVF = cfg.get("ovf", 0)
    PL = cfg.get("pacel", 0)
    SL = {n: n % NS for n in range(16)}
    if OVF:
        SL = {n: n for n in range(6)}
        SL[6] = 5
        nxt = 7
        ACT = {}
        for st in range(16):
            if st == 5: ACT[st] = 6
            elif nxt < 16:
                ACT[st] = nxt; SL[nxt] = SL[st]; nxt += 1
    def slot(n): return RING + 32 * SL[n]
    def issue(n, lds=False, pl=0):
        r = slot(n)
        i = n & 7
        E(f"s_add_u32 s61, s59, {i * 65536}")
        last = None
        if n < 8:
            for u in range(4):
                for t in range(2):
                    va = "v1" if u < 2 else "v2"
                    off = (u & 1) * 2048 + t * 256
                    q = r + (u * 2 + t) * 4
                    if cfg.get("klin", 0):
                        j = u * 2 + t
                        va = "v3" if j < 4 else "v4"
                        off = (j & 3) * 1024
                    if pl: E(f"s_waitcnt vmcnt({pl-1})")
                    if lds:
                        j = u * 2 + t
                        E(f"s_add_u32 m0, s83, {W_OFF + (j // 3) * 28672 + (j % 3) * 1024 - off}")
                        last = E.ins(f"buffer_load_dwordx4 {va}, s[28:31], s61 offen offset:{off} {POL} lds")
                    else:
                        last = E.ins(f"buffer_load_dwordx4 v[{q}:{q+3}], {va}, s[28:31], s61 offen offset:{off} {POL}")
        else:
            for j in range(8):
                va = "v3" if j < 4 else "v4"
                off = (j & 3) * 1024
                q = r + j * 4
                last = E.ins(f"buffer_load_dwordx4 v[{q}:{q+3}], {va}, s[32:35], s61 offen offset:{off} {cfg.get('polv', POL)}")
        return last

    def prologue(pace=0, bar=False):
        ids = {}
        for n in range(NS):
            if pace and n >= pace and not PL:
                E.wait_vm(ids[n - pace])
            ids[n] = issue(n, pl=(PL if pace else 0))
            if bar and n == cfg.get("bgr", 1) - 1: E("s_barrier")
        if OVF:
            E("s_mul_i32 s83, s52, 3584")
            if pace and not PL: E.wait_vm(ids[NS - pace])
            ids[6] = issue(6, lds=True, pl=(PL if pace else 0))
        return ids

    SP = cfg.get("spol", "nt")
    E("s_cmp_lg_u32 s52, 1" if not cfg.get("nos0", 0) else "s_cmp_lg_u32 s52, 100")
    E.branch("s_cbranch_scc1 L_pro")
    E(f"""
    s_mov_b32 s40, s16
    s_mov_b32 s41, s17
    s_mov_b32 s42, 1605632
    v_lshrrev_b32 v14, 2, v0
    v_mul_u32_u24 v14, 3584, v14
    v_and_b32 v15, 3, v0
    v_lshl_add_u32 v14, v15, 4, v14
    s_lshl_b32 s73, s72, 6
    s_mul_i32 s75, s54, 896
    buffer_load_dwordx4 v[56:59], v3, s[44:47], s75 offen {SP}
    buffer_load_dwordx4 v[60:63], v3, s[48:51], 0 offen {SP}
    s_mov_b32 m0, {XS_OFF}
    s_mov_b32 exec_hi, 0x00ffffff
    buffer_load_dwordx4 v3, s[44:47], s75 offen {SP} lds
    s_mov_b32 exec_hi, -1
    """)
    for i in range(28):
        E(f"s_mov_b32 m0, {W1_OFF + i * 1024}")
        if cfg.get("fakesc", 0):
            E(f"s_mul_i32 s74, s72, 28672")
            E(f"s_add_u32 s74, s74, {i * 1024}")
            E(f"buffer_load_dwordx4 v3, s[40:43], s74 offen {SP} lds")
        elif not cfg.get("noffn", 0):
            E(f"s_add_u32 s74, s73, {i * 57344}")
            E(f"buffer_load_dwordx4 v14, s[40:43], s74 offen {SP} lds")
    E.label("L_pro")
    if cfg.get("cpf", 0):
        E("s_cmp_lg_u32 s52, 2")
        E.branch("s_cbranch_scc1 L_nocpf")
        E.raw("    s_getpc_b64 s[74:75]")
        E.raw("L_pcref:")
        E.raw(f"    s_sub_u32 s74, s74, L_pcref-{KNAME}")
        E.raw("    s_subb_u32 s75, s75, 0")
        E("v_lshlrev_b32 v14, 6, v0")
        for i in range(cfg.get("cpf")):
            E.raw(f"    v_min_u32 v16, L_exit-{KNAME}, v14")
            E(f"global_load_dword v15, v16, s[74:75] offset:0")
            E.ins("v_add_u32 v14, 0x1000, v14")
        E.label("L_nocpf")
    if cfg.get("dprio", 0): E("s_setprio 3")
    base_vm = E.vm
    if cfg.get('bpos', 0) and cfg.get('bgr', 1) == 0: E('s_barrier')
    ids = prologue(cfg.get('pace', 0), bar=cfg.get('bpos', 0) > 0)
    vm_after_prologue = E.vm
    stamp(1)
    E("s_cmp_eq_u32 s52, 1" if not cfg.get("nos0", 0) else "s_cmp_eq_u32 s52, 100")
    E.branch("s_cbranch_scc1 L_w1")
    E.label("L_flag")
    if cfg.get("noflag", 0): E.branch("s_branch L_main")
    E(f"v_mov_b32 v14, {FLAG_OFF}")
    E.label("L_flag_loop")
    E("""
    ds_read_b32 v15, v14
    s_waitcnt lgkmcnt(0)
    v_readfirstlane_b32 s73, v15
    s_cmp_lg_u32 s73, 0
    """)
    E.branch("s_cbranch_scc1 L_main")
    E("s_sleep 2")
    E.branch("s_branch L_flag_loop")

    E.label("L_w0")
    E("s_setprio 3")
    stamp(13)
    E(f"""
    buffer_load_dwordx2 v[8:9], v15, s[36:39], 0 offen
    v_lshrrev_b32 v14, 1, v0
    v_lshlrev_b32 v14, 13, v14
    v_and_b32 v15, 1, v0
    v_lshl_add_u32 v14, v15, 4, v14
    s_lshl_b32 s73, s53, 10
    s_lshl_b32 s74, s56, 5
    s_add_u32 s73, s73, s74
    """)
    for i in range(14):
        E(f"s_mov_b32 m0, {WQ_OFF + i * 1024}")
        if cfg.get("fakesc", 0):
            E(f"s_mul_i32 s74, s2, 14336")
            E(f"s_add_u32 s74, s74, {i * 1024}")
            E(f"buffer_load_dwordx4 v3, s[40:43], s74 offen {SP} lds")
        else:
            E(f"s_add_u32 s74, s73, {i * 262144}")
            E(f"buffer_load_dwordx4 v14, s[40:43], s74 offen {SP} lds")
    if cfg.get("bpos", 0) == 1: E("s_barrier")
    E(f"""
    v_mul_u32_u24 v15, 896, v13
    v_lshl_add_u32 v15, v11, 4, v15
    """)
    for ks in range(14):
        E(f"buffer_load_dwordx4 v[{64+4*ks}:{67+4*ks}], v15, s[44:47], 0 offen offset:{ks*64} {SP}")
    if cfg.get("bpos", 0) == 2: E("s_barrier")
    E(f"""
    v_lshl_add_u32 v14, v11, 3, v12
    v_lshlrev_b32 v14, 5, v14
    v_lshl_add_u32 v14, v13, 3, v14
    v_add_u32 v14, {WQ_OFF}, v14
    s_waitcnt lgkmcnt(0)
    """)
    stamp(14)
    E(f"""
    s_waitcnt vmcnt(0)
    v_add_co_u32 v8, vcc, 1, v8
    v_addc_co_u32 v9, vcc, 0, v9, vcc
    """)
    if cfg.get("bpos", 0) == 3: E("s_barrier")
    stamp(1)
    for ks in range(14):
        E(f"ds_read_b64_tr_b16 v[{128+4*ks}:{129+4*ks}], v14 offset:{ks*1024}")
        E(f"ds_read_b64_tr_b16 v[{130+4*ks}:{131+4*ks}], v14 offset:{ks*1024+128}")
        if ks % 7 == 6:
            E("s_waitcnt lgkmcnt(0)")
    for ks in range(14):
        c = "0" if ks == 0 else "v[48:51]"
        E(f"v_mfma_f32_16x16x32_bf16 v[48:51], v[{128+4*ks}:{131+4*ks}], v[{64+4*ks}:{67+4*ks}], {c}")
    E(f"""
    v_lshlrev_b32 v14, 14, v10
    v_lshl_add_u32 v14, v11, 4, v14
    s_lshl_b32 s73, s53, 11
    s_lshl_b32 s74, s56, 6
    s_add_u32 s73, s73, s74
    s_add_u32 s73, s73, {QBOX}
    v_mov_b32 v54, v8
    v_mov_b32 v55, v9
    v_cvt_pk_bf16_f32 v52, v48, v49
    v_cvt_pk_bf16_f32 v53, v50, v51
    s_mov_b32 exec_lo, 0x000f000f
    s_mov_b32 exec_hi, 0x000f000f
    buffer_store_dwordx4 v[52:55], v14, s[36:39], s73 offen sc1
    s_mov_b64 exec, -1
    s_lshl_b32 s73, s57, 11
    s_add_u32 s73, s73, {QBOX}
    s_mov_b32 s80, 0
    """)
    if cfg.get("bpos", 0) == 4: E("s_barrier")
    stamp(2)
    if PROF:
        E("s_waitcnt vmcnt(0)")
    stamp(15)
    NPS = cfg.get("nps", 2)
    poll_pipe("L_w0_poll", 2, lambda i, r: f"buffer_load_dwordx4 v[{r}:{r+3}], v3, s[36:39], s73 offen offset:{i*1024} sc1",
              None, 200, 56, nsets=NPS, sleep=cfg.get("psl", 4))
    stamp(11)
    if PROF:
        E("v_writelane_b32 v7, s80, 12")
    E(f"""
    v_lshlrev_b32 v14, 3, v0
    v_add_u32 v14, {Q_OFF}, v14
    ds_write_b64 v14, v[56:57]
    ds_write_b64 v14, v[60:61] offset:512
    v_mov_b32 v15, {TAG_OFF}
    ds_write_b64 v15, v[8:9]
    v_mov_b32 v15, {FLAG_OFF}
    v_mov_b32 v14, 1
    s_waitcnt lgkmcnt(0)
    ds_write_b32 v15, v14
    """)
    if not cfg.get("dprio", 0): E("s_setprio 0")
    E.vm = base_vm
    ids2 = prologue()
    assert ids2 == ids and E.vm == vm_after_prologue
    E.branch("s_branch L_main")

    E.label("L_w1")
    E(f"""
    v_lshl_add_u32 v14, v11, 3, v12
    v_lshlrev_b32 v14, 6, v14
    v_lshl_add_u32 v14, v13, 3, v14
    v_add_u32 v14, {W1_OFF}, v14
    v_lshlrev_b32 v15, 4, v11
    v_add_u32 v15, {XS_OFF}, v15
    s_waitcnt vmcnt({8*(NS+OVF)})
    """)
    def ffn_rd(ks):
        xb = 16 + 4 * (ks & 1)
        tb = 24 + 8 * (ks & 1)
        E(f"ds_read_b128 v[{xb}:{xb+3}], v15 offset:{ks*64}")
        for ct in range(2):
            q = tb + 4 * ct
            E(f"ds_read_b64_tr_b16 v[{q}:{q+1}], v14 offset:{ks*2048+ct*32}")
            E(f"ds_read_b64_tr_b16 v[{q+2}:{q+3}], v14 offset:{ks*2048+ct*32+256}")
    ffn_rd(0)
    E("s_mov_b32 s74, 0xffff0000")
    E("v_mov_b32 v40, 0")
    for i in range(4):
        E(f"""
        v_lshlrev_b32 v41, 16, v{56+i}
        v_lshlrev_b32 v42, 16, v{60+i}
        v_fmac_f32 v40, v41, v42
        v_and_b32 v41, s74, v{56+i}
        v_and_b32 v42, s74, v{60+i}
        v_fmac_f32 v40, v41, v42
        """)
    E("""
    v_cmp_gt_u32 vcc, 56, v0
    v_cndmask_b32 v40, 0, v40, vcc
    """)
    for ks in range(14):
        if ks + 1 < 14:
            ffn_rd(ks + 1)
            E("s_waitcnt lgkmcnt(5)")
        else:
            E("s_waitcnt lgkmcnt(0)")
        xb = 16 + 4 * (ks & 1)
        tb = 24 + 8 * (ks & 1)
        for ct in range(2):
            d = 48 + ct * 4
            c = "0" if ks == 0 else f"v[{d}:{d+3}]"
            E(f"v_mfma_f32_16x16x32_bf16 v[{d}:{d+3}], v[{tb+4*ct}:{tb+4*ct+3}], v[{xb}:{xb+3}], {c}")
    for r in (8, 4, 2, 1):
        E(f"v_add_f32_dpp v40, v40, v40 row_ror:{r} row_mask:0xf bank_mask:0xf")
    E("""
    v_mov_b32 v41, v40
    v_permlane16_swap_b32 v40, v41
    v_add_f32 v40, v40, v41
    v_mov_b32 v41, v40
    v_permlane32_swap_b32 v40, v41
    v_add_f32 v40, v40, v41
    v_mul_f32 v40, 0xbfb8aa3b, v40
    v_exp_f32 v40, v40
    v_add_f32 v40, 1.0, v40
    v_rcp_f32 v40, v40
    v_sub_f32 v41, 1.0, v40
    s_cmp_lt_u32 s58, 56
    s_cselect_b64 s[76:77], -1, 0
    """)
    E(f"""
    v_mov_b32 v15, {G_OFF}
    ds_write_b32 v15, v40
    """)
    for r in range(8):
        E(f"""
        v_max_f32 v{48+r}, 0, v{48+r}
        v_mul_f32 v{48+r}, v41, v{48+r}
        v_cndmask_b32 v{48+r}, 0, v{48+r}, s[76:77]
        """)
    E(f"""
    v_cvt_pk_bf16_f32 v56, v48, v49
    v_cvt_pk_bf16_f32 v57, v50, v51
    v_cvt_pk_bf16_f32 v58, v52, v53
    v_cvt_pk_bf16_f32 v59, v54, v55
    v_lshlrev_b32 v14, 3, v11
    v_add_u32 v14, {COEF_OFF + 128}, v14
    s_mov_b32 exec_lo, 0x00010001
    s_mov_b32 exec_hi, 0x00010001
    ds_write_b64 v14, v[56:57]
    ds_write_b64 v14, v[58:59] offset:32
    s_mov_b64 exec, -1
    """)
    stamp(2)
    E.branch("s_branch L_flag")

    LA = cfg.get("la", NS)
    def sched(n):
        if OVF: return ACT.get(n)
        if n < LA: k = NS + n
        elif n < NS: return None
        else: k = n + LA
        return k if k < 16 else None
    def main(w7):
        ids_ = dict(ids)
        E.vm = vm_after_prologue
        E.label("L_main")
        stamp(3)
        E(f"""
        v_mov_b32 v15, {TAG_OFF}
        ds_read_b64 v[8:9], v15
        v_bfe_u32 v14, v10, 2, 1
        v_lshlrev_b32 v14, 9, v14
        v_lshl_add_u32 v14, v11, 6, v14
        v_lshl_add_u32 v14, v13, 4, v14
        v_add_u32 v14, {Q_OFF}, v14
        ds_read_b128 v[16:19], v14
        ds_read_b128 v[20:23], v14 offset:256
        s_mov_b32 s40, s12
        s_mov_b32 s41, s13
        s_mov_b32 s42, 3670016
        s_mov_b32 s44, s18
        s_mov_b32 s45, s19
        s_mov_b32 s46, 1605632
        s_mov_b32 s81, 0x3db8aa3b
        s_waitcnt lgkmcnt(0)
        """)
        DP = cfg.get("dprio", 0)
        TH = [int(x) for x in str(cfg.get("dth", "4.8.12")).split(".")]
        def setp(n):
            if DP and n in TH: E(f"s_setprio {2 - TH.index(n)}")
        for n in range(8):
            r = slot(n)
            setp(n)
            if OVF and n == 6: E("s_waitcnt lgkmcnt(0)")
            else: E.wait_vm(ids_[n])
            for t in range(2):
                for u in range(4):
                    d = 48 + 4 * u
                    q = r + (u * 2 + t) * 4
                    c = "0" if t == 0 else f"v[{d}:{d+3}]"
                    if not cfg.get("nocomp", 0): E(f"v_mfma_f32_16x16x32_bf16 v[{d}:{d+3}], v[{16+4*t}:{19+4*t}], v[{q}:{q+3}], {c}")
            if OVF and n == 5:
                E.wait_vm(ids_[6])
                E("v_add_u32 v14, s83, v3")
                for j in range(8):
                    E(f"ds_read_b128 v[{r+4*j}:{r+4*j+3}], v14 offset:{W_OFF + (j // 3) * 28672 + (j % 3) * 1024}")
            elif sched(n) is not None:
                ids_[sched(n)] = issue(sched(n))
            if n == cfg.get("stage_at", 6 if OVF else 3) and not cfg.get("nostage", 0):
                E(f"""
                s_mul_i32 s73, s52, 3584
                s_lshl_b32 s74, s53, 9
                s_lshl_b32 s75, s55, 5
                s_add_u32 s74, s74, s75
                s_mul_i32 s74, s74, 896
                s_add_u32 s74, s74, s73
                s_add_u32 s75, s74, {256*896}
                s_mul_i32 s82, s72, {32*896}
                s_add_u32 s82, s82, s73
                s_mov_b32 exec_hi, 0x00ffffff
                """)
                for blk in range(3):
                    E(f"s_add_u32 m0, s73, {W_OFF + blk * 28672}")
                    so = ["s74", "s75", "s82"][blk]
                    srd = "s[40:43]" if blk < 2 else "s[44:47]"
                    for k in range(4):
                        E(f"buffer_load_dwordx4 v3, {srd}, {so} offen offset:{k*896} {SP} lds")
                E("s_mov_b32 exec_hi, -1")
            for u in range(4):
                d = 48 + 4 * u
                E(f"v_cndmask_b32 v{32+u}, v{d}, v{d+1}, s[62:63]")
            for u in range(4):
                d = 48 + 4 * u
                E(f"v_cndmask_b32 v{32+u}, v{32+u}, v{d+2}, s[64:65]")
            for u in range(4):
                d = 48 + 4 * u
                E(f"v_cndmask_b32 v{32+u}, v{32+u}, v{d+3}, s[66:67]")
            for u in range(4):
                E(f"v_add_f32_dpp v{32+u}, v{32+u}, v{32+u} quad_perm:[1,0,3,2] row_mask:0xf bank_mask:0xf")
            for u in range(4):
                E(f"v_add_f32_dpp v{32+u}, v{32+u}, v{32+u} quad_perm:[2,3,0,1] row_mask:0xf bank_mask:0xf")
            E(f"""
            v_cndmask_b32 v{24+n}, v32, v33, s[62:63]
            v_cndmask_b32 v{24+n}, v{24+n}, v34, s[64:65]
            v_cndmask_b32 v{24+n}, v{24+n}, v35, s[66:67]
            """)
        stamp(4)
        E("""
        v_max3_f32 v32, v24, v25, v26
        v_max3_f32 v33, v27, v28, v29
        v_max3_f32 v32, v32, v30, v31
        v_max_f32 v32, v32, v33
        """)
        for r in (8, 4, 2, 1):
            E(f"v_max_f32_dpp v32, v32, v32 row_ror:{r} row_mask:0xf bank_mask:0xf")
        E("v_mul_f32 v36, s81, v32")
        for i in range(8):
            E(f"v_fma_f32 v{24+i}, v{24+i}, s81, -v36")
        for i in range(8):
            E(f"v_exp_f32 v{24+i}, v{24+i}")
        E("""
        v_add_f32 v32, v24, v25
        v_add_f32 v33, v26, v27
        v_add_f32 v34, v28, v29
        v_add_f32 v35, v30, v31
        v_add_f32 v32, v32, v33
        v_add_f32 v34, v34, v35
        v_add_f32 v37, v32, v34
        """)
        for i in range(0, 8, 2):
            E(f"v_cvt_pk_bf16_f32 v{40+i//2}, v{24+i}, v{25+i}")
        for r in (8, 4, 2, 1):
            E(f"v_add_f32_dpp v37, v37, v37 row_ror:{r} row_mask:0xf bank_mask:0xf")
        for i in range(0, 8, 2):
            E(f"ds_write_b16 v5, v{40+i//2} offset:{i*32}")
            E(f"ds_write_b16_d16_hi v5, v{40+i//2} offset:{(i+1)*32}")
        E(f"""
        s_lshl_b32 s73, s52, 3
        s_add_u32 s73, s73, {MLW_OFF}
        v_lshl_add_u32 v14, v0, 2, s73
        s_mov_b32 exec_lo, 0x00010001
        s_mov_b32 exec_hi, 0
        ds_write_b64 v14, v[36:37]
        s_mov_b64 exec, -1
        s_waitcnt lgkmcnt(0)
        ds_read_b128 v[12:15], v6
        """)
        ml_ids = None
        for n in range(8, 16):
            i = n - 8
            r = slot(n)
            pa = 12 if (i % 2 == 0) else 44
            pn = 44 if (i % 2 == 0) else 12
            setp(n)
            E.wait_vm(ids_[n])
            E("s_waitcnt lgkmcnt(0)")
            for half in range(2):
                for ii in range(2):
                    sreg = half * 2 + ii
                    for e in range(2):
                        dloc = ii * 2 + e
                        for jp in range(4):
                            tq = 48 + dloc * 4 + jp
                            s1 = r + (2 * jp) * 4 + sreg
                            s0 = r + (2 * jp + 1) * 4 + sreg
                            if not cfg.get("nocomp", 0): E(f"v_perm_b32 v{tq}, v{s0}, v{s1}, s{68+e}")
                if half == 1 and sched(n) is not None:
                    ids_[sched(n)] = issue(sched(n))
                for dloc in range(4):
                    d = half * 4 + dloc
                    a = 16 + 4 * d
                    c = "0" if i == 0 else f"v[{a}:{a+3}]"
                    if not cfg.get("nocomp", 0): E(f"v_mfma_f32_16x16x32_bf16 v[{a}:{a+3}], v[12:15], v[{48+dloc*4}:{51+dloc*4}], {c}")
            if i < 7:
                E(f"ds_read_b128 v[12:15], v6 offset:{(i+1)*32}")
        if cfg.get("dup", 0):
            for rep in range(cfg.get("dup")):
                for n in range(8):
                    if n >= 4 or rep: E("s_waitcnt vmcnt(24)")
                    SLs = SL[n]; SL[n] = n % 4
                    issue(n)
                    SL[n] = SLs
            E("s_waitcnt vmcnt(0)")
        stamp(5)
        E(f"""
        s_lshl_b32 s73, s52, 11
        s_add_u32 s73, s73, {MRG_OFF}
        v_lshlrev_b32 v14, 5, v0
        v_add_u32 v14, s73, v14
        """)
        for d in range(8):
            E(f"v_mov_b32 v{48+d}, v{16+4*d}")
        E("""
        ds_write_b128 v14, v[48:51]
        ds_write_b128 v14, v[52:55] offset:16
        s_waitcnt vmcnt(0) lgkmcnt(0)
        s_barrier
        """)

    main(False)
    stamp(6)
    if cfg.get("notail", 0): E.branch("s_branch L_end")
    E("s_cmp_eq_u32 s52, 7")
    E.branch("s_cbranch_scc1 L_w7tail")
    E("s_cmp_ge_u32 s52, 4")
    E.branch("s_cbranch_scc1 L_proj")
    E(f"""
    s_lshl_b32 s73, s52, 9
    s_add_u32 s73, s73, {MRG_OFF}
    v_lshl_add_u32 v14, v0, 3, s73
    s_lshr_b32 s74, s52, 1
    s_lshl_b32 s75, s74, 6
    s_add_u32 s75, s75, {MLW_OFF}
    v_mov_b32 v15, s75
    ds_read_b128 v[64:67], v15
    ds_read_b128 v[68:71], v15 offset:16
    ds_read_b128 v[72:75], v15 offset:32
    ds_read_b128 v[76:79], v15 offset:48
    """)
    for w in range(8):
        E(f"ds_read_b64 v[{24+2*w}:{25+2*w}], v14 offset:{w*2048}")
    E(f"""
    s_and_b32 s75, s52, 1
    s_lshl_b32 s75, s75, 14
    v_lshlrev_b32 v14, 12, v11
    v_lshl_add_u32 v14, v10, 4, v14
    s_lshl_b32 s73, s57, 15
    s_add_u32 s73, s73, s75
    s_lshl_b32 s75, s55, 9
    s_add_u32 s73, s73, s75
    s_lshl_b32 s75, s74, 8
    s_add_u32 s73, s73, s75
    s_add_u32 s73, s73, {H1BOX}
    v_mov_b32 v42, v8
    v_mov_b32 v43, v9
    v_mov_b32 v46, v8
    v_mov_b32 v47, v9
    s_lshl_b32 s82, s57, 11
    s_lshl_b32 s75, s55, 5
    s_add_u32 s82, s82, s75
    s_lshl_b32 s75, s74, 4
    s_add_u32 s82, s82, s75
    s_add_u32 s82, s82, {H1ML}
    v_lshlrev_b32 v15, 8, v0
    s_waitcnt lgkmcnt(8)
    v_max3_f32 v44, v64, v66, v68
    v_max3_f32 v45, v70, v72, v74
    v_max3_f32 v44, v44, v76, v78
    v_max_f32 v44, v44, v45
    """)
    for w in range(8):
        E(f"v_sub_f32 v{16+w}, v{64+2*w}, v44")
    for w in range(8):
        E(f"v_exp_f32 v{16+w}, v{16+w}")
    E("""
    s_waitcnt lgkmcnt(0)
    v_mul_f32 v40, v16, v24
    v_mul_f32 v41, v16, v25
    v_mul_f32 v45, v16, v65
    """)
    for w in range(1, 8):
        E(f"v_fmac_f32 v40, v{16+w}, v{24+2*w}")
        E(f"v_fmac_f32 v41, v{16+w}, v{25+2*w}")
        E(f"v_fmac_f32 v45, v{16+w}, v{65+2*w}")
    H1ST = cfg.get("h1st", "sc1").replace("+", " ")
    E(f"buffer_store_dwordx4 v[40:43], v14, s[36:39], s73 offen {H1ST}")
    E(f"""
    s_mov_b64 exec, 0xff
    buffer_store_dwordx4 v[44:47], v15, s[36:39], s82 offen {H1ST}
    s_mov_b64 exec, -1
    """)
    stamp(12)
    E.label("L_proj")
    E(f"""
    v_lshrrev_b32 v12, 2, v10
    v_and_b32 v13, 3, v10
    v_lshl_add_u32 v14, v11, 3, v12
    v_mul_u32_u24 v14, 896, v14
    v_lshl_add_u32 v14, v13, 3, v14
    s_lshl_b32 s73, s52, 7
    v_add_u32 v14, s73, v14
    v_lshlrev_b32 v15, 4, v11
    v_add_u32 v15, {COEF_OFF}, v15
    ds_read_b128 v[120:123], v15 offset:128
    """)
    cnt = 1
    for ks in (2, 0, 1):
        for ct in range(4):
            q = 64 + (ks * 4 + ct) * 4
            E(f"ds_read_b64_tr_b16 v[{q}:{q+1}], v14 offset:{ks*28672+ct*32}")
            E(f"ds_read_b64_tr_b16 v[{q+2}:{q+3}], v14 offset:{ks*28672+ct*32+3584}")
        E("s_waitcnt lgkmcnt(0)")
    for ct in range(4):
        q = 64 + (2 * 4 + ct) * 4
        E(f"v_mfma_f32_16x16x32_bf16 v[{128+4*ct}:{131+4*ct}], v[{q}:{q+3}], v[120:123], 0")
    E(f"""
    v_lshrrev_b32 v12, 1, v11
    v_lshlrev_b32 v12, 12, v12
    v_and_b32 v13, 1, v11
    v_lshl_add_u32 v12, v13, 5, v12
    v_lshl_add_u32 v12, v10, 4, v12
    s_mul_i32 s73, s54, {56*4096}
    s_lshl_b32 s74, s58, 6
    s_add_u32 s73, s73, s74
    s_lshl_b32 s74, s52, 15
    s_add_u32 s73, s73, s74
    s_add_u32 s73, s73, {H2BOX}
    s_mov_b32 s76, 0x00020002
    s_mov_b32 s77, 0x00020002
    """)
    for ct in range(4):
        E(f"v_mov_b32 v{146+4*ct}, v8")
        E(f"v_mov_b32 v{147+4*ct}, v9")
    E("s_barrier")
    stamp(8)
    E("""
    ds_read_b128 v[112:115], v15
    ds_read_b128 v[116:119], v15 offset:64
    s_waitcnt lgkmcnt(0)
    """)
    for ks in range(2):
        for ct in range(4):
            q = 64 + (ks * 4 + ct) * 4
            E(f"v_mfma_f32_16x16x32_bf16 v[{128+4*ct}:{131+4*ct}], v[{q}:{q+3}], v[{112+4*ks}:{115+4*ks}], v[{128+4*ct}:{131+4*ct}]")
    for ct in range(4):
        E(f"v_cndmask_b32 v{144+4*ct}, v{128+4*ct}, v{130+4*ct}, s[76:77]")
        E(f"v_cndmask_b32 v{145+4*ct}, v{129+4*ct}, v{131+4*ct}, s[76:77]")
    E("""
    s_mov_b32 exec_lo, 0x00030003
    s_mov_b32 exec_hi, 0x00030003
    """)
    for ct in range(4):
        E(f"s_add_u32 s74, s73, {ct*8192}")
        E(f"buffer_store_dwordx4 v[{144+4*ct}:{147+4*ct}], v12, s[36:39], s74 offen {cfg.get('h2st', 'sc1').replace('+', ' ')}")
    E.branch("s_branch L_end")

    E.label("L_w7tail")
    E(f"""
    s_lshl_b32 s73, s57, 3
    s_add_u32 s73, s73, s55
    s_lshl_b32 s82, s73, 8
    s_add_u32 s82, s82, {H1ML}
    s_lshl_b32 s73, s73, 12
    s_add_u32 s73, s73, {H1BOX}
    v_mov_b32 v15, {G_OFF}
    ds_read_b32 v40, v15
    v_and_b32 v14, 31, v0
    v_lshlrev_b32 v14, 2, v14
    v_add_u32 v14, {COEF_OFF}, v14
    v_lshlrev_b32 v13, 4, v11
    s_mov_b32 s80, 0
    """)
    def h1_load(i, r):
        H1LD = cfg.get("h1ld", "sc1").replace("+", " ")
        if i < 4: return f"buffer_load_dwordx4 v[{r}:{r+3}], v3, s[36:39], s73 offen offset:{i*1024} {H1LD}"
        return f"buffer_load_dwordx4 v[{r}:{r+3}], v13, s[36:39], s82 offen offset:{(i-4)*64} {H1LD}"
    poll_pipe("L_h1", 8, h1_load, None, 128, 64, nsets=NPS, sleep=cfg.get("psl", 4))
    stamp(7)
    if PROF:
        E("v_writelane_b32 v7, s80, 13")
    E(f"""
    v_max3_f32 v96, v80, v84, v88
    v_max_f32 v96, v96, v92
    v_mov_b32 v97, v96
    v_permlane32_swap_b32 v96, v97
    v_max_f32 v96, v96, v97
    v_sub_f32 v80, v80, v96
    v_sub_f32 v84, v84, v96
    v_sub_f32 v88, v88, v96
    v_sub_f32 v92, v92, v96
    v_exp_f32 v80, v80
    v_exp_f32 v84, v84
    v_exp_f32 v88, v88
    v_exp_f32 v92, v92
    v_mul_f32 v98, v80, v81
    v_mul_f32 v64, v80, v64
    v_mul_f32 v65, v80, v65
    v_fmac_f32 v98, v84, v85
    v_fmac_f32 v64, v84, v68
    v_fmac_f32 v65, v84, v69
    v_fmac_f32 v98, v88, v89
    v_fmac_f32 v64, v88, v72
    v_fmac_f32 v65, v88, v73
    v_fmac_f32 v98, v92, v93
    v_fmac_f32 v64, v92, v76
    v_fmac_f32 v65, v92, v77
    v_mov_b32 v99, v98
    v_mov_b32 v66, v64
    v_mov_b32 v67, v65
    v_permlane32_swap_b32 v98, v99
    v_permlane32_swap_b32 v64, v66
    v_permlane32_swap_b32 v65, v67
    v_add_f32 v98, v98, v99
    v_add_f32 v64, v64, v66
    v_add_f32 v65, v65, v67
    v_rcp_f32 v98, v98
    s_waitcnt lgkmcnt(0)
    v_mul_f32 v98, v40, v98
    v_mul_f32 v64, v98, v64
    v_mul_f32 v65, v98, v65
    v_cvt_pk_bf16_f32 v64, v64, v65
    ds_write_b32 v14, v64
    s_waitcnt lgkmcnt(0)
    s_barrier
    s_cmp_ge_u32 s58, 56
    """)
    E.branch("s_cbranch_scc1 L_end")
    E(f"""
    s_mul_i32 s73, s54, 56
    s_add_u32 s73, s73, s58
    s_lshl_b32 s73, s73, 12
    s_add_u32 s73, s73, {H2BOX}
    s_mov_b32 s48, s22
    s_mov_b32 s49, s23
    s_mov_b32 s50, 3584
    s_mul_i32 s74, s54, 896
    s_lshl_b32 s75, s58, 4
    s_add_u32 s74, s74, s75
    v_lshlrev_b32 v14, 2, v0
    s_mov_b32 s80, 0
    """)
    poll_pipe("L_h2", 4, lambda i, r: f"buffer_load_dwordx4 v[{r}:{r+3}], v3, s[36:39], s73 offen offset:{i*1024} {cfg.get('h2ld', 'sc1').replace('+', ' ')}",
              None, 128, 64, nsets=NPS, sleep=cfg.get("psl", 4))
    E("""
    v_add_f32 v64, v64, v68
    v_add_f32 v65, v65, v69
    v_add_f32 v72, v72, v76
    v_add_f32 v73, v73, v77
    v_add_f32 v64, v64, v72
    v_add_f32 v65, v65, v73
    """)
    stamp(9)
    if PROF:
        E("v_writelane_b32 v7, s80, 14")
    for rr in (4, 8):
        E(f"v_add_f32_dpp v64, v64, v64 row_ror:{rr} row_mask:0xf bank_mask:0xf")
        E(f"v_add_f32_dpp v65, v65, v65 row_ror:{rr} row_mask:0xf bank_mask:0xf")
    E(f"""
    v_mov_b32 v66, v64
    v_mov_b32 v67, v65
    v_permlane16_swap_b32 v64, v66
    v_permlane16_swap_b32 v65, v67
    v_add_f32 v64, v64, v66
    v_add_f32 v65, v65, v67
    v_mov_b32 v66, v64
    v_mov_b32 v67, v65
    v_permlane32_swap_b32 v64, v66
    v_permlane32_swap_b32 v65, v67
    v_add_f32 v64, v64, v66
    v_add_f32 v65, v65, v67
    v_cvt_pk_bf16_f32 v64, v64, v65
    s_mov_b64 exec, 15
    buffer_store_dword v64, v14, s[48:51], s74 offen
    s_cmp_lg_u32 s2, 0
    """)
    E.branch("s_cbranch_scc1 L_end")
    E("""
    s_mov_b64 exec, 1
    buffer_store_dwordx2 v[8:9], v14, s[36:39], 0 offen sc1
    """)
    E.label("L_end")
    if PROF:
        stamp(10)
        E(f"""
        s_mov_b64 exec, 0xffff
        s_lshl_b32 s73, s2, 3
        s_add_u32 s73, s73, s52
        s_lshl_b32 s73, s73, 6
        s_add_u32 s73, s73, 0x300000
        v_lshlrev_b32 v14, 2, v0
        buffer_store_dword v7, v14, s[36:39], s73 offen
        """)
        if PROF == 2:
            E("""
            v_readlane_b32 s73, v7, 0
            s_not_b32 s73, s73
            v_writelane_b32 v7, s73, 0
            s_mov_b32 s48, s24
            s_mov_b32 s49, s25
            s_mov_b32 s50, 64
            s_mov_b32 s51, 0x20000
            s_cmp_lg_u32 s52, 7
            """)
            E.branch("s_cbranch_scc1 L_exit")
            E("""
            s_mov_b64 exec, 0x6e1
            buffer_atomic_umax v7, v14, s[48:51], 0 offen
            """)
    E.label("L_exit")
    E.raw("    s_endpgm")
    E.raw(f""".section .rodata,"a"
.p2align 6
.amdhsa_kernel {KNAME}
  .amdhsa_next_free_vgpr 256
  .amdhsa_next_free_sgpr 102
  .amdhsa_accum_offset 256
  .amdhsa_group_segment_fixed_size 0
  .amdhsa_kernarg_size 96
  .amdhsa_user_sgpr_count 2
  .amdhsa_user_sgpr_kernarg_segment_ptr 1
  .amdhsa_system_sgpr_workgroup_id_x 1
.end_amdhsa_kernel""")
    return E.text()

if __name__ == "__main__":
    out = sys.argv[1] if len(sys.argv) > 1 else "k1.s"
    cfg = {}
    for a in sys.argv[2:]:
        k, v = a.split("=")
        cfg[k] = int(v) if v.lstrip("-").isdigit() else v
    open(out, "w").write(gen(cfg))
```

```python
import sys, math
sys.path.insert(0, "gen")
from emit import Emit

KNAME = "gated_mix__gqa_block_cached__dense_activation_relu__decode_kernel"

W_OFF = 0
WQ_OFF = 86016
W1_OFF = 100352
MRG_OFF = 129024
P_OFF = 145408
Q_OFF = 151552
COEF_OFF = 152576
FAC_OFF = 152832
TAG_OFF = 152896
G_OFF = 152904
MLW_OFF = 152960
FLAG_OFF = 153088
XS_OFF = 153152
LDS_BYTES = 154112
QBOX = 0x1000
MLBOX = 0x20000
H1BOX = 0x40000
H2BOX = 0x140000
H1ML = 0x20000
WS_BYTES = 0x400000

NS = 6
RING = 64
SPIN = 400000


def gen(cfg):
    E = Emit()
    POL = cfg.get("pol", "nt")
    PROF = cfg.get("prof", 0)
    def stamp(k):
        if PROF:
            E(f"""
            s_memrealtime s[98:99]
            s_waitcnt lgkmcnt(0)
            v_writelane_b32 v7, s98, {k}
            """)
    hdr = open("gated_mix__gqa_block_cached__dense_activation_relu__decode.s.ref").read().split("\n")
    for l in hdr:
        if l.startswith("; @launch"): break
        if l.startswith(";"): E.raw(l)
    E.raw(f"; @launch grid=(256,1,1) block=(512,1,1) lds={LDS_BYTES}")
    E.raw('.amdgcn_target "amdgcn-amd-amdhsa--gfx950"')
    E.raw(".text")
    E.raw(f".globl {KNAME}\n.p2align 8\n.type {KNAME},@function\n{KNAME}:")
    E("s_cmp_ge_u32 s2, 256")
    E.branch("s_cbranch_scc1 L_exit")
    if PROF:
        E("v_mov_b32 v7, 0")
    stamp(0)
    E("""
    s_load_dwordx16 s[4:19], s[0:1], 0
    s_load_dwordx8 s[20:27], s[0:1], 64
    v_lshrrev_b32 v1, 6, v0
    v_and_b32 v0, 63, v0
    v_readfirstlane_b32 s52, v1
    """ + ("""
    s_and_b32 s55, s2, 7
    s_lshr_b32 s54, s2, 6
    s_bfe_u32 s53, s2, 0x30003
    s_lshl_b32 s56, s55, 2
    s_add_u32 s56, s56, s54
    """ if cfg.get("nox", 0) == 1 else """
    s_bfe_u32 s53, s2, 0x20001
    s_lshl_b32 s53, s53, 1
    s_bfe_u32 s55, s2, 0x10003
    s_add_u32 s53, s53, s55
    s_lshr_b32 s54, s2, 6
    s_bfe_u32 s55, s2, 0x20004
    s_lshl_b32 s55, s55, 1
    s_and_b32 s56, s2, 1
    s_add_u32 s55, s55, s56
    s_lshl_b32 s56, s55, 2
    s_add_u32 s56, s56, s54
    """ if cfg.get("nox", 0) == 2 else """
    s_and_b32 s53, s2, 7
    s_lshr_b32 s54, s2, 6
    s_bfe_u32 s55, s2, 0x30003
    s_lshr_b32 s56, s2, 3
    """) + """
    s_lshl_b32 s57, s54, 3
    s_add_u32 s57, s57, s53
    s_lshl_b32 s58, s53, 3
    s_add_u32 s58, s58, s55
    v_and_b32 v10, 15, v0
    v_lshrrev_b32 v11, 4, v0
    v_lshrrev_b32 v12, 2, v10
    v_and_b32 v13, 3, v10
    v_lshlrev_b32 v1, 9, v12
    v_lshl_add_u32 v1, v11, 6, v1
    v_lshl_add_u32 v1, v13, 4, v1
    v_add_u32 v2, 0x1000, v1
    v_lshlrev_b32 v3, 4, v0
    v_add_u32 v4, 0x1000, v3
    s_lshl_b32 s59, s57, 22
    s_lshl_b32 s60, s55, 19
    s_add_u32 s59, s59, s60
    s_mul_i32 s60, s52, """ + str(cfg.get("ps", 8192)) + """
    s_add_u32 s59, s59, s60
    s_mov_b32 s62, 0x22222222
    s_mov_b32 s63, 0x22222222
    s_mov_b32 s64, 0x44444444
    s_mov_b32 s65, 0x44444444
    s_mov_b32 s66, 0x88888888
    s_mov_b32 s67, 0x88888888
    s_mov_b32 s68, 0x05040100
    s_mov_b32 s69, 0x07060302
    s_mov_b32 s30, 0x8000000
    s_mov_b32 s31, 0x20000
    s_mov_b32 s34, 0x8000000
    s_mov_b32 s35, 0x20000
    """)
    E(f"s_mov_b32 s38, {WS_BYTES}")
    E("""
    s_mov_b32 s39, 0x20000
    s_mov_b32 s43, 0x20000
    s_mov_b32 s47, 0x20000
    s_mov_b32 s51, 0x20000
    s_min_u32 s72, s58, 55
    v_mov_b32 v14, 153088
    v_mov_b32 v15, 0
    ds_write_b32 v14, v15
    s_waitcnt lgkmcnt(0)
    """ + ("s_barrier" if cfg.get("bpos", 0) == 0 else "") + """
    s_mov_b32 s28, s6
    s_mov_b32 s29, s7
    s_mov_b32 s32, s8
    s_mov_b32 s33, s9
    s_mov_b32 s36, s26
    s_mov_b32 s37, s27
    s_mov_b32 s44, s4
    s_mov_b32 s45, s5
    s_mov_b32 s46, 3584
    s_mov_b32 s40, s10
    s_mov_b32 s41, s11
    s_mov_b32 s42, 3670016
    s_mov_b32 s48, s20
    s_mov_b32 s49, s21
    s_mov_b32 s50, 896
    """)
    E(f"""
    s_mul_i32 s73, s52, 768
    s_add_u32 s73, s73, {P_OFF}
    v_and_b32 v5, 1, v11
    v_lshlrev_b32 v5, 8, v5
    v_and_b32 v14, 1, v12
    v_lshl_add_u32 v5, v14, 4, v5
    v_lshl_add_u32 v5, v13, 2, v5
    v_lshrrev_b32 v14, 1, v12
    v_lshl_add_u32 v5, v14, 1, v5
    v_add_u32 v5, s73, v5
    v_lshrrev_b32 v6, 3, v10
    v_lshlrev_b32 v6, 8, v6
    v_xor_b32 v14, v12, v11
    v_and_b32 v14, 1, v14
    v_cmp_eq_u32 vcc, 1, v14
    v_mov_b32 v15, 0x200
    v_cndmask_b32 v6, v6, v15, vcc
    v_lshrrev_b32 v14, 1, v11
    v_lshl_add_u32 v6, v14, 4, v6
    v_add_u32 v6, s73, v6
    v_lshl_add_u32 v14, v0, 2, s73
    v_mov_b32 v15, 0
    ds_write_b32 v14, v15 offset:512
    """)
    if not cfg.get("nos0", 0):
        E("s_cmp_eq_u32 s52, 0")
        E.branch("s_cbranch_scc1 L_w0")

    def poll_pipe(lbl, nload, mk_load, tagregs, base, dst, nsets=2, sleep=0):
        sz = 4 * nload
        def issue_set(k):
            for i in range(nload):
                E(mk_load(i, base + k * sz + 4 * i))
        sv = E.vm
        E("s_mov_b32 s80, 0")
        for k in range(nsets - 1):
            issue_set(k)
            if sleep: E(f"s_sleep {sleep}")
        E.label(lbl)
        for k in range(nsets):
            issue_set((k + nsets - 1) % nsets)
            E(f"s_waitcnt vmcnt({(nsets - 1) * nload})")
            b = base + k * sz
            E(f"v_cmp_eq_u64 s[76:77], v[{b+2}:{b+3}], v[8:9]")
            for i in range(1, nload):
                E(f"v_cmp_eq_u64 s[78:79], v[{b+4*i+2}:{b+4*i+3}], v[8:9]")
                E("s_and_b64 s[76:77], s[76:77], s[78:79]")
            E("s_cmp_eq_u64 s[76:77], exec")
            E.branch(f"s_cbranch_scc1 {lbl}_g{k}")
        if cfg.get("lsl", 0): E(f"s_sleep {cfg.get('lsl')}")
        E("s_add_u32 s80, s80, 1")
        E(f"s_cmp_lt_u32 s80, {SPIN // nsets}")
        E.branch(f"s_cbranch_scc1 {lbl}")
        for k in reversed(range(nsets)):
            E.label(f"{lbl}_g{k}")
            b = base + k * sz
            if b != dst:
                for i in range(nload):
                    E(f"v_mov_b32 v{dst+4*i}, v{b+4*i}")
                    E(f"v_mov_b32 v{dst+4*i+1}, v{b+4*i+1}")
            if k: E.branch(f"s_branch {lbl}_got")
        E.label(f"{lbl}_got")
        E.vm = sv

    OVF = cfg.get("ovf", 0)
    PL = cfg.get("pacel", 0)
    SL = {n: n % NS for n in range(16)}
    if OVF:
        SL = {n: n for n in range(6)}
        SL[6] = 5
        nxt = 7
        ACT = {}
        for st in range(16):
            if st == 5: ACT[st] = 6
            elif nxt < 16:
                ACT[st] = nxt; SL[nxt] = SL[st]; nxt += 1
    def slot(n): return RING + 32 * SL[n]
    def issue(n, lds=False, pl=0):
        r = slot(n)
        i = n & 7
        PS = cfg.get("ps", 8192)
        last = None
        cur = [None]
        def addr(goff):
            p, w_ = goff // PS, goff % PS
            so = i * 65536 + p * PS * 8
            if cur[0] != so:
                E(f"s_add_u32 s61, s59, {so}")
                cur[0] = so
            return w_ >= 4096, w_ % 4096
        if n < 8:
            for u in range(4):
                for t in range(2):
                    hi, off = addr(u * 2048)
                    off += t * 256
                    va = "v2" if hi else "v1"
                    q = r + (u * 2 + t) * 4
                    if pl: E(f"s_waitcnt vmcnt({pl-1})")
                    if lds:
                        j = u * 2 + t
                        E(f"s_add_u32 m0, s83, {W_OFF + (j // 3) * 28672 + (j % 3) * 1024 - off}")
                        last = E.ins(f"buffer_load_dwordx4 {va}, s[28:31], s61 offen offset:{off} {POL} lds")
                    else:
                        last = E.ins(f"buffer_load_dwordx4 v[{q}:{q+3}], {va}, s[28:31], s61 offen offset:{off} {POL}")
        else:
            for j in range(8):
                hi, off = addr(j * 1024)
                va = "v4" if hi else "v3"
                q = r + j * 4
                last = E.ins(f"buffer_load_dwordx4 v[{q}:{q+3}], {va}, s[32:35], s61 offen offset:{off} {cfg.get('polv', POL)}")
        return last

    def prologue(pace=0, bar=False):
        ids = {}
        for n in range(NS):
            if pace and n >= pace and not PL:
                E.wait_vm(ids[n - pace])
            ids[n] = issue(n, pl=(PL if pace else 0))
            if bar and n == cfg.get("bgr", 1) - 1: E("s_barrier")
        if OVF:
            E("s_mul_i32 s83, s52, 3584")
            if pace and not PL: E.wait_vm(ids[NS - pace])
            ids[6] = issue(6, lds=True, pl=(PL if pace else 0))
        return ids

    SP = cfg.get("spol", "nt")
    E("s_cmp_lg_u32 s52, 1" if not cfg.get("nos0", 0) else "s_cmp_lg_u32 s52, 100")
    E.branch("s_cbranch_scc1 L_pro")
    E(f"""
    s_mov_b32 s40, s16
    s_mov_b32 s41, s17
    s_mov_b32 s42, 1605632
    v_lshrrev_b32 v14, 2, v0
    v_mul_u32_u24 v14, 3584, v14
    v_and_b32 v15, 3, v0
    v_lshl_add_u32 v14, v15, 4, v14
    s_lshl_b32 s73, s72, 6
    s_mul_i32 s75, s54, 896
    buffer_load_dwordx4 v[56:59], v3, s[44:47], s75 offen {SP}
    buffer_load_dwordx4 v[60:63], v3, s[48:51], 0 offen {SP}
    s_mov_b32 m0, {XS_OFF}
    s_mov_b32 exec_hi, 0x00ffffff
    buffer_load_dwordx4 v3, s[44:47], s75 offen {SP} lds
    s_mov_b32 exec_hi, -1
    """)
    for i in range(28):
        E(f"s_mov_b32 m0, {W1_OFF + i * 1024}")
        if cfg.get("fakesc", 0):
            E(f"s_mul_i32 s74, s72, 28672")
            E(f"s_add_u32 s74, s74, {i * 1024}")
            E(f"buffer_load_dwordx4 v3, s[40:43], s74 offen {SP} lds")
        elif not cfg.get("noffn", 0):
            E(f"s_add_u32 s74, s73, {i * 57344}")
            E(f"buffer_load_dwordx4 v14, s[40:43], s74 offen {SP} lds")
    E.label("L_pro")
    if cfg.get("cpf", 0):
        E("s_cmp_lg_u32 s52, 2")
        E.branch("s_cbranch_scc1 L_nocpf")
        E.raw("    s_getpc_b64 s[74:75]")
        E.raw("L_pcref:")
        E.raw(f"    s_sub_u32 s74, s74, L_pcref-{KNAME}")
        E.raw("    s_subb_u32 s75, s75, 0")
        E("v_lshlrev_b32 v14, 6, v0")
        for i in range(cfg.get("cpf")):
            E.raw(f"    v_min_u32 v16, L_exit-{KNAME}, v14")
            E(f"global_load_dword v15, v16, s[74:75] offset:0")
            E.ins("v_add_u32 v14, 0x1000, v14")
        E.label("L_nocpf")
    if cfg.get("dprio", 0): E("s_setprio 3")
    base_vm = E.vm
    if cfg.get('bpos', 0) and cfg.get('bgr', 1) == 0: E('s_barrier')
    ids = prologue(cfg.get('pace', 0), bar=cfg.get('bpos', 0) > 0)
    vm_after_prologue = E.vm
    stamp(1)
    E("s_cmp_eq_u32 s52, 1" if not cfg.get("nos0", 0) else "s_cmp_eq_u32 s52, 100")
    E.branch("s_cbranch_scc1 L_w1")
    E.label("L_flag")
    if cfg.get("noflag", 0): E.branch("s_branch L_main")
    E(f"v_mov_b32 v14, {FLAG_OFF}")
    E.label("L_flag_loop")
    E("""
    ds_read_b32 v15, v14
    s_waitcnt lgkmcnt(0)
    v_readfirstlane_b32 s73, v15
    s_cmp_lg_u32 s73, 0
    """)
    E.branch("s_cbranch_scc1 L_main")
    E("s_sleep 2")
    E.branch("s_branch L_flag_loop")

    E.label("L_w0")
    E("s_setprio 3")
    stamp(13)
    E(f"""
    buffer_load_dwordx2 v[8:9], v15, s[36:39], 0 offen
    v_lshrrev_b32 v14, 1, v0
    v_lshlrev_b32 v14, 13, v14
    v_and_b32 v15, 1, v0
    v_lshl_add_u32 v14, v15, 4, v14
    s_lshl_b32 s73, s53, 10
    s_lshl_b32 s74, s56, 5
    s_add_u32 s73, s73, s74
    """)
    for i in range(14):
        E(f"s_mov_b32 m0, {WQ_OFF + i * 1024}")
        if cfg.get("fakesc", 0):
            E(f"s_mul_i32 s74, s2, 14336")
            E(f"s_add_u32 s74, s74, {i * 1024}")
            E(f"buffer_load_dwordx4 v3, s[40:43], s74 offen {SP} lds")
        else:
            E(f"s_add_u32 s74, s73, {i * 262144}")
            E(f"buffer_load_dwordx4 v14, s[40:43], s74 offen {SP} lds")
    if cfg.get("bpos", 0) == 1: E("s_barrier")
    E(f"""
    v_mul_u32_u24 v15, 896, v13
    v_lshl_add_u32 v15, v11, 4, v15
    """)
    for ks in range(14):
        E(f"buffer_load_dwordx4 v[{64+4*ks}:{67+4*ks}], v15, s[44:47], 0 offen offset:{ks*64} {SP}")
    if cfg.get("bpos", 0) == 2: E("s_barrier")
    E(f"""
    v_lshl_add_u32 v14, v11, 3, v12
    v_lshlrev_b32 v14, 5, v14
    v_lshl_add_u32 v14, v13, 3, v14
    v_add_u32 v14, {WQ_OFF}, v14
    s_waitcnt lgkmcnt(0)
    """)
    stamp(14)
    E(f"""
    s_waitcnt vmcnt(0)
    v_add_co_u32 v8, vcc, 1, v8
    v_addc_co_u32 v9, vcc, 0, v9, vcc
    """)
    if cfg.get("bpos", 0) == 3: E("s_barrier")
    stamp(1)
    for ks in range(14):
        E(f"ds_read_b64_tr_b16 v[{128+4*ks}:{129+4*ks}], v14 offset:{ks*1024}")
        E(f"ds_read_b64_tr_b16 v[{130+4*ks}:{131+4*ks}], v14 offset:{ks*1024+128}")
        if ks % 7 == 6:
            E("s_waitcnt lgkmcnt(0)")
    for ks in range(14):
        c = "0" if ks == 0 else "v[48:51]"
        E(f"v_mfma_f32_16x16x32_bf16 v[48:51], v[{128+4*ks}:{131+4*ks}], v[{64+4*ks}:{67+4*ks}], {c}")
    E(f"""
    v_lshlrev_b32 v14, 14, v10
    v_lshl_add_u32 v14, v11, 4, v14
    s_lshl_b32 s73, s53, 11
    s_lshl_b32 s74, s56, 6
    s_add_u32 s73, s73, s74
    s_add_u32 s73, s73, {QBOX}
    v_mov_b32 v54, v8
    v_mov_b32 v55, v9
    v_cvt_pk_bf16_f32 v52, v48, v49
    v_cvt_pk_bf16_f32 v53, v50, v51
    s_mov_b32 exec_lo, 0x000f000f
    s_mov_b32 exec_hi, 0x000f000f
    buffer_store_dwordx4 v[52:55], v14, s[36:39], s73 offen sc1
    s_mov_b64 exec, -1
    s_lshl_b32 s73, s57, 11
    s_add_u32 s73, s73, {QBOX}
    s_mov_b32 s80, 0
    """)
    if cfg.get("bpos", 0) == 4: E("s_barrier")
    stamp(2)
    if PROF:
        E("s_waitcnt vmcnt(0)")
    stamp(15)
    NPS = cfg.get("nps", 2)
    poll_pipe("L_w0_poll", 2, lambda i, r: f"buffer_load_dwordx4 v[{r}:{r+3}], v3, s[36:39], s73 offen offset:{i*1024} sc1",
              None, 200, 56, nsets=NPS, sleep=cfg.get("psl", 4))
    stamp(11)
    if PROF:
        E("v_writelane_b32 v7, s80, 12")
    E(f"""
    v_lshlrev_b32 v14, 3, v0
    v_add_u32 v14, {Q_OFF}, v14
    ds_write_b64 v14, v[56:57]
    ds_write_b64 v14, v[60:61] offset:512
    v_mov_b32 v15, {TAG_OFF}
    ds_write_b64 v15, v[8:9]
    v_mov_b32 v15, {FLAG_OFF}
    v_mov_b32 v14, 1
    s_waitcnt lgkmcnt(0)
    ds_write_b32 v15, v14
    """)
    if not cfg.get("dprio", 0): E("s_setprio 0")
    E.vm = base_vm
    ids2 = prologue()
    assert ids2 == ids and E.vm == vm_after_prologue
    E.branch("s_branch L_main")

    E.label("L_w1")
    E(f"""
    v_lshl_add_u32 v14, v11, 3, v12
    v_lshlrev_b32 v14, 6, v14
    v_lshl_add_u32 v14, v13, 3, v14
    v_add_u32 v14, {W1_OFF}, v14
    v_lshlrev_b32 v15, 4, v11
    v_add_u32 v15, {XS_OFF}, v15
    s_waitcnt vmcnt({8*(NS+OVF)})
    """)
    def ffn_rd(ks):
        xb = 16 + 4 * (ks & 1)
        tb = 24 + 8 * (ks & 1)
        E(f"ds_read_b128 v[{xb}:{xb+3}], v15 offset:{ks*64}")
        for ct in range(2):
            q = tb + 4 * ct
            E(f"ds_read_b64_tr_b16 v[{q}:{q+1}], v14 offset:{ks*2048+ct*32}")
            E(f"ds_read_b64_tr_b16 v[{q+2}:{q+3}], v14 offset:{ks*2048+ct*32+256}")
    ffn_rd(0)
    E("s_mov_b32 s74, 0xffff0000")
    E("v_mov_b32 v40, 0")
    for i in range(4):
        E(f"""
        v_lshlrev_b32 v41, 16, v{56+i}
        v_lshlrev_b32 v42, 16, v{60+i}
        v_fmac_f32 v40, v41, v42
        v_and_b32 v41, s74, v{56+i}
        v_and_b32 v42, s74, v{60+i}
        v_fmac_f32 v40, v41, v42
        """)
    E("""
    v_cmp_gt_u32 vcc, 56, v0
    v_cndmask_b32 v40, 0, v40, vcc
    """)
    for ks in range(14):
        if ks + 1 < 14:
            ffn_rd(ks + 1)
            E("s_waitcnt lgkmcnt(5)")
        else:
            E("s_waitcnt lgkmcnt(0)")
        xb = 16 + 4 * (ks & 1)
        tb = 24 + 8 * (ks & 1)
        for ct in range(2):
            d = 48 + ct * 4
            c = "0" if ks == 0 else f"v[{d}:{d+3}]"
            E(f"v_mfma_f32_16x16x32_bf16 v[{d}:{d+3}], v[{tb+4*ct}:{tb+4*ct+3}], v[{xb}:{xb+3}], {c}")
    for r in (8, 4, 2, 1):
        E(f"v_add_f32_dpp v40, v40, v40 row_ror:{r} row_mask:0xf bank_mask:0xf")
    E("""
    v_mov_b32 v41, v40
    v_permlane16_swap_b32 v40, v41
    v_add_f32 v40, v40, v41
    v_mov_b32 v41, v40
    v_permlane32_swap_b32 v40, v41
    v_add_f32 v40, v40, v41
    v_mul_f32 v40, 0xbfb8aa3b, v40
    v_exp_f32 v40, v40
    v_add_f32 v40, 1.0, v40
    v_rcp_f32 v40, v40
    v_sub_f32 v41, 1.0, v40
    s_cmp_lt_u32 s58, 56
    s_cselect_b64 s[76:77], -1, 0
    """)
    E(f"""
    v_mov_b32 v15, {G_OFF}
    ds_write_b32 v15, v40
    """)
    for r in range(8):
        E(f"""
        v_max_f32 v{48+r}, 0, v{48+r}
        v_mul_f32 v{48+r}, v41, v{48+r}
        v_cndmask_b32 v{48+r}, 0, v{48+r}, s[76:77]
        """)
    E(f"""
    v_cvt_pk_bf16_f32 v56, v48, v49
    v_cvt_pk_bf16_f32 v57, v50, v51
    v_cvt_pk_bf16_f32 v58, v52, v53
    v_cvt_pk_bf16_f32 v59, v54, v55
    v_lshlrev_b32 v14, 3, v11
    v_add_u32 v14, {COEF_OFF + 128}, v14
    s_mov_b32 exec_lo, 0x00010001
    s_mov_b32 exec_hi, 0x00010001
    ds_write_b64 v14, v[56:57]
    ds_write_b64 v14, v[58:59] offset:32
    s_mov_b64 exec, -1
    """)
    stamp(2)
    E.branch("s_branch L_flag")

    LA = cfg.get("la", NS)
    def sched(n):
        if OVF: return ACT.get(n)
        if n < LA: k = NS + n
        elif n < NS: return None
        else: k = n + LA
        return k if k < 16 else None
    def main(w7):
        ids_ = dict(ids)
        E.vm = vm_after_prologue
        E.label("L_main")
        stamp(3)
        E(f"""
        v_mov_b32 v15, {TAG_OFF}
        ds_read_b64 v[8:9], v15
        v_bfe_u32 v14, v10, 2, 1
        v_lshlrev_b32 v14, 9, v14
        v_lshl_add_u32 v14, v11, 6, v14
        v_lshl_add_u32 v14, v13, 4, v14
        v_add_u32 v14, {Q_OFF}, v14
        ds_read_b128 v[16:19], v14
        ds_read_b128 v[20:23], v14 offset:256
        s_mov_b32 s40, s12
        s_mov_b32 s41, s13
        s_mov_b32 s42, 3670016
        s_mov_b32 s44, s18
        s_mov_b32 s45, s19
        s_mov_b32 s46, 1605632
        s_mov_b32 s81, 0x3db8aa3b
        s_waitcnt lgkmcnt(0)
        """)
        DP = cfg.get("dprio", 0)
        TH = [int(x) for x in str(cfg.get("dth", "4.8.12")).split(".")]
        def setp(n):
            if DP and n in TH: E(f"s_setprio {2 - TH.index(n)}")
        for n in range(8):
            r = slot(n)
            setp(n)
            if OVF and n == 6: E("s_waitcnt lgkmcnt(0)")
            else: E.wait_vm(ids_[n])
            for t in range(2):
                for u in range(4):
                    d = 48 + 4 * u
                    q = r + (u * 2 + t) * 4
                    c = "0" if t == 0 else f"v[{d}:{d+3}]"
                    if not cfg.get("nocomp", 0): E(f"v_mfma_f32_16x16x32_bf16 v[{d}:{d+3}], v[{16+4*t}:{19+4*t}], v[{q}:{q+3}], {c}")
            if OVF and n == 5:
                E.wait_vm(ids_[6])
                E("v_add_u32 v14, s83, v3")
                for j in range(8):
                    E(f"ds_read_b128 v[{r+4*j}:{r+4*j+3}], v14 offset:{W_OFF + (j // 3) * 28672 + (j % 3) * 1024}")
            elif sched(n) is not None:
                ids_[sched(n)] = issue(sched(n))
            if n == cfg.get("stage_at", 6 if OVF else 3) and not cfg.get("nostage", 0):
                E(f"""
                s_mul_i32 s73, s52, 3584
                s_lshl_b32 s74, s53, 9
                s_lshl_b32 s75, s55, 5
                s_add_u32 s74, s74, s75
                s_mul_i32 s74, s74, 896
                s_add_u32 s74, s74, s73
                s_add_u32 s75, s74, {256*896}
                s_mul_i32 s82, s72, {32*896}
                s_add_u32 s82, s82, s73
                s_mov_b32 exec_hi, 0x00ffffff
                """)
                for blk in range(3):
                    E(f"s_add_u32 m0, s73, {W_OFF + blk * 28672}")
                    so = ["s74", "s75", "s82"][blk]
                    srd = "s[40:43]" if blk < 2 else "s[44:47]"
                    for k in range(4):
                        E(f"buffer_load_dwordx4 v3, {srd}, {so} offen offset:{k*896} {SP} lds")
                E("s_mov_b32 exec_hi, -1")
            for u in range(4):
                d = 48 + 4 * u
                E(f"v_cndmask_b32 v{32+u}, v{d}, v{d+1}, s[62:63]")
            for u in range(4):
                d = 48 + 4 * u
                E(f"v_cndmask_b32 v{32+u}, v{32+u}, v{d+2}, s[64:65]")
            for u in range(4):
                d = 48 + 4 * u
                E(f"v_cndmask_b32 v{32+u}, v{32+u}, v{d+3}, s[66:67]")
            for u in range(4):
                E(f"v_add_f32_dpp v{32+u}, v{32+u}, v{32+u} quad_perm:[1,0,3,2] row_mask:0xf bank_mask:0xf")
            for u in range(4):
                E(f"v_add_f32_dpp v{32+u}, v{32+u}, v{32+u} quad_perm:[2,3,0,1] row_mask:0xf bank_mask:0xf")
            E(f"""
            v_cndmask_b32 v{24+n}, v32, v33, s[62:63]
            v_cndmask_b32 v{24+n}, v{24+n}, v34, s[64:65]
            v_cndmask_b32 v{24+n}, v{24+n}, v35, s[66:67]
            """)
        stamp(4)
        E("""
        v_max3_f32 v32, v24, v25, v26
        v_max3_f32 v33, v27, v28, v29
        v_max3_f32 v32, v32, v30, v31
        v_max_f32 v32, v32, v33
        """)
        for r in (8, 4, 2, 1):
            E(f"v_max_f32_dpp v32, v32, v32 row_ror:{r} row_mask:0xf bank_mask:0xf")
        E("v_mul_f32 v36, s81, v32")
        for i in range(8):
            E(f"v_fma_f32 v{24+i}, v{24+i}, s81, -v36")
        for i in range(8):
            E(f"v_exp_f32 v{24+i}, v{24+i}")
        E("""
        v_add_f32 v32, v24, v25
        v_add_f32 v33, v26, v27
        v_add_f32 v34, v28, v29
        v_add_f32 v35, v30, v31
        v_add_f32 v32, v32, v33
        v_add_f32 v34, v34, v35
        v_add_f32 v37, v32, v34
        """)
        for i in range(0, 8, 2):
            E(f"v_cvt_pk_bf16_f32 v{40+i//2}, v{24+i}, v{25+i}")
        for r in (8, 4, 2, 1):
            E(f"v_add_f32_dpp v37, v37, v37 row_ror:{r} row_mask:0xf bank_mask:0xf")
        for i in range(0, 8, 2):
            E(f"ds_write_b16 v5, v{40+i//2} offset:{i*32}")
            E(f"ds_write_b16_d16_hi v5, v{40+i//2} offset:{(i+1)*32}")
        E(f"""
        s_lshl_b32 s73, s52, 3
        s_add_u32 s73, s73, {MLW_OFF}
        v_lshl_add_u32 v14, v0, 2, s73
        s_mov_b32 exec_lo, 0x00010001
        s_mov_b32 exec_hi, 0
        ds_write_b64 v14, v[36:37]
        s_mov_b64 exec, -1
        s_waitcnt lgkmcnt(0)
        ds_read_b128 v[12:15], v6
        """)
        ml_ids = None
        for n in range(8, 16):
            i = n - 8
            r = slot(n)
            pa = 12 if (i % 2 == 0) else 44
            pn = 44 if (i % 2 == 0) else 12
            setp(n)
            E.wait_vm(ids_[n])
            E("s_waitcnt lgkmcnt(0)")
            for half in range(2):
                for ii in range(2):
                    sreg = half * 2 + ii
                    for e in range(2):
                        dloc = ii * 2 + e
                        for jp in range(4):
                            tq = 48 + dloc * 4 + jp
                            s1 = r + (2 * jp) * 4 + sreg
                            s0 = r + (2 * jp + 1) * 4 + sreg
                            if not cfg.get("nocomp", 0): E(f"v_perm_b32 v{tq}, v{s0}, v{s1}, s{68+e}")
                if half == 1 and sched(n) is not None:
                    ids_[sched(n)] = issue(sched(n))
                for dloc in range(4):
                    d = half * 4 + dloc
                    a = 16 + 4 * d
                    c = "0" if i == 0 else f"v[{a}:{a+3}]"
                    if not cfg.get("nocomp", 0): E(f"v_mfma_f32_16x16x32_bf16 v[{a}:{a+3}], v[12:15], v[{48+dloc*4}:{51+dloc*4}], {c}")
            if i < 7:
                E(f"ds_read_b128 v[12:15], v6 offset:{(i+1)*32}")
        if cfg.get("dup", 0):
            for rep in range(cfg.get("dup")):
                for n in range(8):
                    if n >= 4 or rep: E("s_waitcnt vmcnt(24)")
                    SLs = SL[n]; SL[n] = n % 4
                    issue(n)
                    SL[n] = SLs
            E("s_waitcnt vmcnt(0)")
        stamp(5)
        E(f"""
        s_lshl_b32 s73, s52, 11
        s_add_u32 s73, s73, {MRG_OFF}
        v_lshlrev_b32 v14, 5, v0
        v_add_u32 v14, s73, v14
        """)
        for d in range(8):
            E(f"v_mov_b32 v{48+d}, v{16+4*d}")
        E("""
        ds_write_b128 v14, v[48:51]
        ds_write_b128 v14, v[52:55] offset:16
        s_waitcnt vmcnt(0) lgkmcnt(0)
        s_barrier
        """)

    main(False)
    stamp(6)
    if cfg.get("notail", 0): E.branch("s_branch L_end")
    E("s_cmp_eq_u32 s52, 7")
    E.branch("s_cbranch_scc1 L_w7tail")
    E("s_cmp_ge_u32 s52, 4")
    E.branch("s_cbranch_scc1 L_proj")
    E(f"""
    s_lshl_b32 s73, s52, 9
    s_add_u32 s73, s73, {MRG_OFF}
    v_lshl_add_u32 v14, v0, 3, s73
    s_lshr_b32 s74, s52, 1
    s_lshl_b32 s75, s74, 6
    s_add_u32 s75, s75, {MLW_OFF}
    v_mov_b32 v15, s75
    ds_read_b128 v[64:67], v15
    ds_read_b128 v[68:71], v15 offset:16
    ds_read_b128 v[72:75], v15 offset:32
    ds_read_b128 v[76:79], v15 offset:48
    """)
    for w in range(8):
        E(f"ds_read_b64 v[{24+2*w}:{25+2*w}], v14 offset:{w*2048}")
    E(f"""
    s_and_b32 s75, s52, 1
    s_lshl_b32 s75, s75, 14
    v_lshlrev_b32 v14, 12, v11
    v_lshl_add_u32 v14, v10, 4, v14
    s_lshl_b32 s73, s57, 15
    s_add_u32 s73, s73, s75
    s_lshl_b32 s75, s55, 9
    s_add_u32 s73, s73, s75
    s_lshl_b32 s75, s74, 8
    s_add_u32 s73, s73, s75
    s_add_u32 s73, s73, {H1BOX}
    v_mov_b32 v42, v8
    v_mov_b32 v43, v9
    v_mov_b32 v46, v8
    v_mov_b32 v47, v9
    s_lshl_b32 s82, s57, 11
    s_lshl_b32 s75, s55, 5
    s_add_u32 s82, s82, s75
    s_lshl_b32 s75, s74, 4
    s_add_u32 s82, s82, s75
    s_add_u32 s82, s82, {H1ML}
    v_lshlrev_b32 v15, 8, v0
    s_waitcnt lgkmcnt(8)
    v_max3_f32 v44, v64, v66, v68
    v_max3_f32 v45, v70, v72, v74
    v_max3_f32 v44, v44, v76, v78
    v_max_f32 v44, v44, v45
    """)
    for w in range(8):
        E(f"v_sub_f32 v{16+w}, v{64+2*w}, v44")
    for w in range(8):
        E(f"v_exp_f32 v{16+w}, v{16+w}")
    E("""
    s_waitcnt lgkmcnt(0)
    v_mul_f32 v40, v16, v24
    v_mul_f32 v41, v16, v25
    v_mul_f32 v45, v16, v65
    """)
    for w in range(1, 8):
        E(f"v_fmac_f32 v40, v{16+w}, v{24+2*w}")
        E(f"v_fmac_f32 v41, v{16+w}, v{25+2*w}")
        E(f"v_fmac_f32 v45, v{16+w}, v{65+2*w}")
    H1ST = cfg.get("h1st", "sc1").replace("+", " ")
    E(f"buffer_store_dwordx4 v[40:43], v14, s[36:39], s73 offen {H1ST}")
    E(f"""
    s_mov_b64 exec, 0xff
    buffer_store_dwordx4 v[44:47], v15, s[36:39], s82 offen {H1ST}
    s_mov_b64 exec, -1
    """)
    stamp(12)
    E.label("L_proj")
    E(f"""
    v_lshrrev_b32 v12, 2, v10
    v_and_b32 v13, 3, v10
    v_lshl_add_u32 v14, v11, 3, v12
    v_mul_u32_u24 v14, 896, v14
    v_lshl_add_u32 v14, v13, 3, v14
    s_lshl_b32 s73, s52, 7
    v_add_u32 v14, s73, v14
    v_lshlrev_b32 v15, 4, v11
    v_add_u32 v15, {COEF_OFF}, v15
    ds_read_b128 v[120:123], v15 offset:128
    """)
    cnt = 1
    for ks in (2, 0, 1):
        for ct in range(4):
            q = 64 + (ks * 4 + ct) * 4
            E(f"ds_read_b64_tr_b16 v[{q}:{q+1}], v14 offset:{ks*28672+ct*32}")
            E(f"ds_read_b64_tr_b16 v[{q+2}:{q+3}], v14 offset:{ks*28672+ct*32+3584}")
        E("s_waitcnt lgkmcnt(0)")
    for ct in range(4):
        q = 64 + (2 * 4 + ct) * 4
        E(f"v_mfma_f32_16x16x32_bf16 v[{128+4*ct}:{131+4*ct}], v[{q}:{q+3}], v[120:123], 0")
    E(f"""
    v_lshrrev_b32 v12, 1, v11
    v_lshlrev_b32 v12, 12, v12
    v_and_b32 v13, 1, v11
    v_lshl_add_u32 v12, v13, 5, v12
    v_lshl_add_u32 v12, v10, 4, v12
    s_mul_i32 s73, s54, {56*4096}
    s_lshl_b32 s74, s58, 6
    s_add_u32 s73, s73, s74
    s_lshl_b32 s74, s52, 15
    s_add_u32 s73, s73, s74
    s_add_u32 s73, s73, {H2BOX}
    s_mov_b32 s76, 0x00020002
    s_mov_b32 s77, 0x00020002
    """)
    for ct in range(4):
        E(f"v_mov_b32 v{146+4*ct}, v8")
        E(f"v_mov_b32 v{147+4*ct}, v9")
    E("s_barrier")
    stamp(8)
    E("""
    ds_read_b128 v[112:115], v15
    ds_read_b128 v[116:119], v15 offset:64
    s_waitcnt lgkmcnt(0)
    """)
    for ks in range(2):
        for ct in range(4):
            q = 64 + (ks * 4 + ct) * 4
            E(f"v_mfma_f32_16x16x32_bf16 v[{128+4*ct}:{131+4*ct}], v[{q}:{q+3}], v[{112+4*ks}:{115+4*ks}], v[{128+4*ct}:{131+4*ct}]")
    for ct in range(4):
        E(f"v_cndmask_b32 v{144+4*ct}, v{128+4*ct}, v{130+4*ct}, s[76:77]")
        E(f"v_cndmask_b32 v{145+4*ct}, v{129+4*ct}, v{131+4*ct}, s[76:77]")
    E("""
    s_mov_b32 exec_lo, 0x00030003
    s_mov_b32 exec_hi, 0x00030003
    """)
    for ct in range(4):
        E(f"s_add_u32 s74, s73, {ct*8192}")
        E(f"buffer_store_dwordx4 v[{144+4*ct}:{147+4*ct}], v12, s[36:39], s74 offen {cfg.get('h2st', 'sc1').replace('+', ' ')}")
    E.branch("s_branch L_end")

    E.label("L_w7tail")
    E(f"""
    s_lshl_b32 s73, s57, 3
    s_add_u32 s73, s73, s55
    s_lshl_b32 s82, s73, 8
    s_add_u32 s82, s82, {H1ML}
    s_lshl_b32 s73, s73, 12
    s_add_u32 s73, s73, {H1BOX}
    v_mov_b32 v15, {G_OFF}
    ds_read_b32 v40, v15
    v_and_b32 v14, 31, v0
    v_lshlrev_b32 v14, 2, v14
    v_add_u32 v14, {COEF_OFF}, v14
    v_lshlrev_b32 v13, 4, v11
    s_mov_b32 s80, 0
    """)
    def h1_load(i, r):
        H1LD = cfg.get("h1ld", "sc1").replace("+", " ")
        if i < 4: return f"buffer_load_dwordx4 v[{r}:{r+3}], v3, s[36:39], s73 offen offset:{i*1024} {H1LD}"
        return f"buffer_load_dwordx4 v[{r}:{r+3}], v13, s[36:39], s82 offen offset:{(i-4)*64} {H1LD}"
    poll_pipe("L_h1", 8, h1_load, None, 128, 64, nsets=NPS, sleep=cfg.get("psl", 4))
    stamp(7)
    if PROF:
        E("v_writelane_b32 v7, s80, 13")
    E(f"""
    v_max3_f32 v96, v80, v84, v88
    v_max_f32 v96, v96, v92
    v_mov_b32 v97, v96
    v_permlane32_swap_b32 v96, v97
    v_max_f32 v96, v96, v97
    v_sub_f32 v80, v80, v96
    v_sub_f32 v84, v84, v96
    v_sub_f32 v88, v88, v96
    v_sub_f32 v92, v92, v96
    v_exp_f32 v80, v80
    v_exp_f32 v84, v84
    v_exp_f32 v88, v88
    v_exp_f32 v92, v92
    v_mul_f32 v98, v80, v81
    v_mul_f32 v64, v80, v64
    v_mul_f32 v65, v80, v65
    v_fmac_f32 v98, v84, v85
    v_fmac_f32 v64, v84, v68
    v_fmac_f32 v65, v84, v69
    v_fmac_f32 v98, v88, v89
    v_fmac_f32 v64, v88, v72
    v_fmac_f32 v65, v88, v73
    v_fmac_f32 v98, v92, v93
    v_fmac_f32 v64, v92, v76
    v_fmac_f32 v65, v92, v77
    v_mov_b32 v99, v98
    v_mov_b32 v66, v64
    v_mov_b32 v67, v65
    v_permlane32_swap_b32 v98, v99
    v_permlane32_swap_b32 v64, v66
    v_permlane32_swap_b32 v65, v67
    v_add_f32 v98, v98, v99
    v_add_f32 v64, v64, v66
    v_add_f32 v65, v65, v67
    v_rcp_f32 v98, v98
    s_waitcnt lgkmcnt(0)
    v_mul_f32 v98, v40, v98
    v_mul_f32 v64, v98, v64
    v_mul_f32 v65, v98, v65
    v_cvt_pk_bf16_f32 v64, v64, v65
    ds_write_b32 v14, v64
    s_waitcnt lgkmcnt(0)
    s_barrier
    s_cmp_ge_u32 s58, 56
    """)
    E.branch("s_cbranch_scc1 L_end")
    E(f"""
    s_mul_i32 s73, s54, 56
    s_add_u32 s73, s73, s58
    s_lshl_b32 s73, s73, 12
    s_add_u32 s73, s73, {H2BOX}
    s_mov_b32 s48, s22
    s_mov_b32 s49, s23
    s_mov_b32 s50, 3584
    s_mul_i32 s74, s54, 896
    s_lshl_b32 s75, s58, 4
    s_add_u32 s74, s74, s75
    v_lshlrev_b32 v14, 2, v0
    s_mov_b32 s80, 0
    """)
    poll_pipe("L_h2", 4, lambda i, r: f"buffer_load_dwordx4 v[{r}:{r+3}], v3, s[36:39], s73 offen offset:{i*1024} {cfg.get('h2ld', 'sc1').replace('+', ' ')}",
              None, 128, 64, nsets=NPS, sleep=cfg.get("psl", 4))
    E("""
    v_add_f32 v64, v64, v68
    v_add_f32 v65, v65, v69
    v_add_f32 v72, v72, v76
    v_add_f32 v73, v73, v77
    v_add_f32 v64, v64, v72
    v_add_f32 v65, v65, v73
    """)
    stamp(9)
    if PROF:
        E("v_writelane_b32 v7, s80, 14")
    for rr in (4, 8):
        E(f"v_add_f32_dpp v64, v64, v64 row_ror:{rr} row_mask:0xf bank_mask:0xf")
        E(f"v_add_f32_dpp v65, v65, v65 row_ror:{rr} row_mask:0xf bank_mask:0xf")
    E(f"""
    v_mov_b32 v66, v64
    v_mov_b32 v67, v65
    v_permlane16_swap_b32 v64, v66
    v_permlane16_swap_b32 v65, v67
    v_add_f32 v64, v64, v66
    v_add_f32 v65, v65, v67
    v_mov_b32 v66, v64
    v_mov_b32 v67, v65
    v_permlane32_swap_b32 v64, v66
    v_permlane32_swap_b32 v65, v67
    v_add_f32 v64, v64, v66
    v_add_f32 v65, v65, v67
    v_cvt_pk_bf16_f32 v64, v64, v65
    s_mov_b64 exec, 15
    buffer_store_dword v64, v14, s[48:51], s74 offen
    s_cmp_lg_u32 s2, 0
    """)
    E.branch("s_cbranch_scc1 L_end")
    E("""
    s_mov_b64 exec, 1
    buffer_store_dwordx2 v[8:9], v14, s[36:39], 0 offen sc1
    """)
    E.label("L_end")
    if PROF:
        stamp(10)
        E(f"""
        s_mov_b64 exec, 0xffff
        s_lshl_b32 s73, s2, 3
        s_add_u32 s73, s73, s52
        s_lshl_b32 s73, s73, 6
        s_add_u32 s73, s73, 0x300000
        v_lshlrev_b32 v14, 2, v0
        buffer_store_dword v7, v14, s[36:39], s73 offen
        """)
        if PROF == 2:
            E("""
            v_readlane_b32 s73, v7, 0
            s_not_b32 s73, s73
            v_writelane_b32 v7, s73, 0
            s_mov_b32 s48, s24
            s_mov_b32 s49, s25
            s_mov_b32 s50, 64
            s_mov_b32 s51, 0x20000
            s_cmp_lg_u32 s52, 7
            """)
            E.branch("s_cbranch_scc1 L_exit")
            E("""
            s_mov_b64 exec, 0x6e1
            buffer_atomic_umax v7, v14, s[48:51], 0 offen
            """)
    E.label("L_exit")
    E.raw("    s_endpgm")
    E.raw(f""".section .rodata,"a"
.p2align 6
.amdhsa_kernel {KNAME}
  .amdhsa_next_free_vgpr 256
  .amdhsa_next_free_sgpr 102
  .amdhsa_accum_offset 256
  .amdhsa_group_segment_fixed_size 0
  .amdhsa_kernarg_size 96
  .amdhsa_user_sgpr_count 2
  .amdhsa_user_sgpr_kernarg_segment_ptr 1
  .amdhsa_system_sgpr_workgroup_id_x 1
.end_amdhsa_kernel""")
    return E.text()

if __name__ == "__main__":
    out = sys.argv[1] if len(sys.argv) > 1 else "k1.s"
    cfg = {}
    for a in sys.argv[2:]:
        k, v = a.split("=")
        cfg[k] = int(v) if v.lstrip("-").isdigit() else v
    open(out, "w").write(gen(cfg))
```

```python
import sys, math
sys.path.insert(0, "gen")
from emit import Emit

KNAME = "gated_mix__gqa_block_cached__dense_activation_relu__decode_kernel"

W_OFF = 0
WQ_OFF = 86016
W1_OFF = 100352
MRG_OFF = 129024
P_OFF = 145408
Q_OFF = 151552
COEF_OFF = 152576
FAC_OFF = 152832
TAG_OFF = 152896
G_OFF = 152904
MLW_OFF = 152960
FLAG_OFF = 153088
XS_OFF = 153152
LDS_BYTES = 154112
QBOX = 0x1000
MLBOX = 0x20000
H1BOX = 0x40000
H2BOX = 0x140000
XBOX = 0x18000
H1ML = 0x20000
WS_BYTES = 0x400000

NS = 6
RING = 64
SPIN = 400000


def gen(cfg):
    E = Emit()
    POL = cfg.get("pol", "nt")
    PROF = cfg.get("prof", 0)
    def stamp(k):
        if PROF:
            E(f"""
            s_memrealtime s[98:99]
            s_waitcnt lgkmcnt(0)
            v_writelane_b32 v7, s98, {k}
            """)
    hdr = open("gated_mix__gqa_block_cached__dense_activation_relu__decode.s.ref").read().split("\n")
    for l in hdr:
        if l.startswith("; @launch"): break
        if l.startswith(";"): E.raw(l)
    E.raw(f"; @launch grid=(256,1,1) block=(512,1,1) lds={LDS_BYTES}")
    E.raw('.amdgcn_target "amdgcn-amd-amdhsa--gfx950"')
    E.raw(".text")
    E.raw(f".globl {KNAME}\n.p2align 8\n.type {KNAME},@function\n{KNAME}:")
    E("s_cmp_ge_u32 s2, 256")
    E.branch("s_cbranch_scc1 L_exit")
    if PROF:
        E("v_mov_b32 v7, 0")
    stamp(0)
    E("""
    s_load_dwordx16 s[4:19], s[0:1], 0
    s_load_dwordx8 s[20:27], s[0:1], 64
    v_lshrrev_b32 v1, 6, v0
    v_and_b32 v0, 63, v0
    v_readfirstlane_b32 s52, v1
    """ + ("""
    s_and_b32 s55, s2, 7
    s_lshr_b32 s54, s2, 6
    s_bfe_u32 s53, s2, 0x30003
    s_lshl_b32 s56, s55, 2
    s_add_u32 s56, s56, s54
    """ if cfg.get("nox", 0) == 1 else """
    s_bfe_u32 s53, s2, 0x20001
    s_lshl_b32 s53, s53, 1
    s_bfe_u32 s55, s2, 0x10003
    s_add_u32 s53, s53, s55
    s_lshr_b32 s54, s2, 6
    s_bfe_u32 s55, s2, 0x20004
    s_lshl_b32 s55, s55, 1
    s_and_b32 s56, s2, 1
    s_add_u32 s55, s55, s56
    s_lshl_b32 s56, s55, 2
    s_add_u32 s56, s56, s54
    """ if cfg.get("nox", 0) == 2 else """
    s_and_b32 s53, s2, 7
    s_lshr_b32 s54, s2, 6
    s_bfe_u32 s55, s2, 0x30003
    s_lshr_b32 s56, s2, 3
    """) + """
    s_lshl_b32 s57, s54, 3
    s_add_u32 s57, s57, s53
    s_lshl_b32 s58, s53, 3
    s_add_u32 s58, s58, s55
    v_and_b32 v10, 15, v0
    v_lshrrev_b32 v11, 4, v0
    v_lshrrev_b32 v12, 2, v10
    v_and_b32 v13, 3, v10
    v_lshlrev_b32 v1, 9, v12
    v_lshl_add_u32 v1, v11, 6, v1
    v_lshl_add_u32 v1, v13, 4, v1
    v_add_u32 v2, 0x1000, v1
    v_lshlrev_b32 v3, 4, v0
    v_add_u32 v4, 0x1000, v3
    s_lshl_b32 s59, s57, 22
    s_lshl_b32 s60, s55, 19
    s_add_u32 s59, s59, s60
    s_mul_i32 s60, s52, """ + str(cfg.get("ps", 8192)) + """
    s_add_u32 s59, s59, s60
    s_mov_b32 s62, 0x22222222
    s_mov_b32 s63, 0x22222222
    s_mov_b32 s64, 0x44444444
    s_mov_b32 s65, 0x44444444
    s_mov_b32 s66, 0x88888888
    s_mov_b32 s67, 0x88888888
    s_mov_b32 s68, 0x05040100
    s_mov_b32 s69, 0x07060302
    s_mov_b32 s30, 0x8000000
    s_mov_b32 s31, 0x20000
    s_mov_b32 s34, 0x8000000
    s_mov_b32 s35, 0x20000
    """)
    E(f"s_mov_b32 s38, {WS_BYTES}")
    E("""
    s_mov_b32 s39, 0x20000
    s_mov_b32 s43, 0x20000
    s_mov_b32 s47, 0x20000
    s_mov_b32 s51, 0x20000
    s_min_u32 s72, s58, 55
    """ + {0: "", 1: "s_lshl_b32 s84, s55, 16", 2: "s_lshl_b32 s84, s53, 16",
           3: "s_add_u32 s84, s55, s53\ns_lshl_b32 s84, s84, 16",
           4: "s_lshl_b32 s84, s54, 1\ns_add_u32 s84, s84, s55\ns_add_u32 s84, s84, s53\ns_lshl_b32 s84, s84, 16",
           5: "s_lshl_b32 s84, s54, 17"}[cfg.get("rot", 0)] + """
    v_mov_b32 v14, 153088
    v_mov_b32 v15, 0
    ds_write_b32 v14, v15
    s_waitcnt lgkmcnt(0)
    """ + ("s_barrier" if cfg.get("bpos", 0) == 0 else "") + """
    s_mov_b32 s28, s6
    s_mov_b32 s29, s7
    s_mov_b32 s32, s8
    s_mov_b32 s33, s9
    s_mov_b32 s36, s26
    s_mov_b32 s37, s27
    s_mov_b32 s44, s4
    s_mov_b32 s45, s5
    s_mov_b32 s46, 3584
    s_mov_b32 s40, s10
    s_mov_b32 s41, s11
    s_mov_b32 s42, 3670016
    s_mov_b32 s48, s20
    s_mov_b32 s49, s21
    s_mov_b32 s50, 896
    """)
    E(f"""
    s_mul_i32 s73, s52, 768
    s_add_u32 s73, s73, {P_OFF}
    v_and_b32 v5, 1, v11
    v_lshlrev_b32 v5, 8, v5
    v_and_b32 v14, 1, v12
    v_lshl_add_u32 v5, v14, 4, v5
    v_lshl_add_u32 v5, v13, 2, v5
    v_lshrrev_b32 v14, 1, v12
    v_lshl_add_u32 v5, v14, 1, v5
    v_add_u32 v5, s73, v5
    v_lshrrev_b32 v6, 3, v10
    v_lshlrev_b32 v6, 8, v6
    v_xor_b32 v14, v12, v11
    v_and_b32 v14, 1, v14
    v_cmp_eq_u32 vcc, 1, v14
    v_mov_b32 v15, 0x200
    v_cndmask_b32 v6, v6, v15, vcc
    v_lshrrev_b32 v14, 1, v11
    v_lshl_add_u32 v6, v14, 4, v6
    v_add_u32 v6, s73, v6
    v_lshl_add_u32 v14, v0, 2, s73
    v_mov_b32 v15, 0
    ds_write_b32 v14, v15 offset:512
    """)
    if not cfg.get("nos0", 0):
        E("s_cmp_eq_u32 s52, 0")
        E.branch("s_cbranch_scc1 L_w0")

    def poll_pipe(lbl, nload, mk_load, tagregs, base, dst, nsets=2, sleep=0):
        sz = 4 * nload
        def issue_set(k):
            for i in range(nload):
                E(mk_load(i, base + k * sz + 4 * i))
        sv = E.vm
        E("s_mov_b32 s80, 0")
        for k in range(nsets - 1):
            issue_set(k)
            if sleep: E(f"s_sleep {sleep}")
        E.label(lbl)
        for k in range(nsets):
            issue_set((k + nsets - 1) % nsets)
            E(f"s_waitcnt vmcnt({(nsets - 1) * nload})")
            b = base + k * sz
            E(f"v_cmp_eq_u64 s[76:77], v[{b+2}:{b+3}], v[8:9]")
            for i in range(1, nload):
                E(f"v_cmp_eq_u64 s[78:79], v[{b+4*i+2}:{b+4*i+3}], v[8:9]")
                E("s_and_b64 s[76:77], s[76:77], s[78:79]")
            E("s_cmp_eq_u64 s[76:77], exec")
            E.branch(f"s_cbranch_scc1 {lbl}_g{k}")
        if cfg.get("lsl", 0): E(f"s_sleep {cfg.get('lsl')}")
        E("s_add_u32 s80, s80, 1")
        E(f"s_cmp_lt_u32 s80, {SPIN // nsets}")
        E.branch(f"s_cbranch_scc1 {lbl}")
        for k in reversed(range(nsets)):
            E.label(f"{lbl}_g{k}")
            b = base + k * sz
            if b != dst:
                for i in range(nload):
                    E(f"v_mov_b32 v{dst+4*i}, v{b+4*i}")
                    E(f"v_mov_b32 v{dst+4*i+1}, v{b+4*i+1}")
            if k: E.branch(f"s_branch {lbl}_got")
        E.label(f"{lbl}_got")
        E.vm = sv

    OVF = cfg.get("ovf", 0)
    PL = cfg.get("pacel", 0)
    SL = {n: n % NS for n in range(16)}
    if OVF:
        SL = {n: n for n in range(6)}
        SL[6] = 5
        nxt = 7
        ACT = {}
        for st in range(16):
            if st == 5: ACT[st] = 6
            elif nxt < 16:
                ACT[st] = nxt; SL[nxt] = SL[st]; nxt += 1
    def slot(n): return RING + 32 * SL[n]
    def issue(n, lds=False, pl=0):
        r = slot(n)
        i = n & 7
        PS = cfg.get("ps", 8192)
        last = None
        cur = [None]
        def addr(goff):
            if PS <= 8192:
                p, w_ = goff // PS, goff % PS
                so = i * 65536 + p * PS * 8
            else:
                k = PS // 8192
                w_ = goff
                so = (i // k) * PS * 8 + (i % k) * 8192
            if cur[0] != so:
                if cfg.get("rot", 0):
                    E(f"s_add_u32 s61, s84, {so}")
                    E("s_and_b32 s61, s61, 0x7ffff")
                    E("s_add_u32 s61, s61, s59")
                else:
                    E(f"s_add_u32 s61, s59, {so}")
                cur[0] = so
            return w_ >= 4096, w_ % 4096
        if n < 8:
            for u in range(4):
                for t in range(2):
                    hi, off = addr(u * 2048)
                    off += t * 256
                    va = "v2" if hi else "v1"
                    q = r + (u * 2 + t) * 4
                    if pl: E(f"s_waitcnt vmcnt({pl-1})")
                    if lds:
                        j = u * 2 + t
                        E(f"s_add_u32 m0, s83, {W_OFF + (j // 3) * 28672 + (j % 3) * 1024 - off}")
                        last = E.ins(f"buffer_load_dwordx4 {va}, s[28:31], s61 offen offset:{off} {POL} lds")
                    else:
                        last = E.ins(f"buffer_load_dwordx4 v[{q}:{q+3}], {va}, s[28:31], s61 offen offset:{off} {POL}")
        else:
            for j in range(8):
                hi, off = addr(j * 1024)
                va = "v4" if hi else "v3"
                q = r + j * 4
                last = E.ins(f"buffer_load_dwordx4 v[{q}:{q+3}], {va}, s[32:35], s61 offen offset:{off} {cfg.get('polv', POL)}")
        return last

    def prologue(pace=0, bar=False):
        ids = {}
        for n in range(NS):
            if pace and n >= pace and not PL:
                E.wait_vm(ids[n - pace])
            ids[n] = issue(n, pl=(PL if pace else 0))
            if bar and n == cfg.get("bgr", 1) - 1: E("s_barrier")
        if OVF:
            E("s_mul_i32 s83, s52, 3584")
            if pace and not PL: E.wait_vm(ids[NS - pace])
            ids[6] = issue(6, lds=True, pl=(PL if pace else 0))
        return ids

    SP = cfg.get("spol", "nt")
    E("s_cmp_lg_u32 s52, 1" if not cfg.get("nos0", 0) else "s_cmp_lg_u32 s52, 100")
    E.branch("s_cbranch_scc1 L_pro")
    E(f"""
    s_mov_b32 s40, s16
    s_mov_b32 s41, s17
    s_mov_b32 s42, 1605632
    v_lshrrev_b32 v14, 2, v0
    v_mul_u32_u24 v14, 3584, v14
    v_and_b32 v15, 3, v0
    v_lshl_add_u32 v14, v15, 4, v14
    s_lshl_b32 s73, s72, 6
    s_mul_i32 s75, s54, 896
    buffer_load_dwordx4 v[56:59], v3, s[44:47], s75 offen {SP}
    buffer_load_dwordx4 v[60:63], v3, s[48:51], 0 offen {SP}
    s_mov_b32 m0, {XS_OFF}
    s_mov_b32 exec_hi, 0x00ffffff
    buffer_load_dwordx4 v3, s[44:47], s75 offen {SP} lds
    s_mov_b32 exec_hi, -1
    """)
    for i in range(28):
        E(f"s_mov_b32 m0, {W1_OFF + i * 1024}")
        if cfg.get("fakesc", 0):
            E(f"s_mul_i32 s74, s72, 28672")
            E(f"s_add_u32 s74, s74, {i * 1024}")
            E(f"buffer_load_dwordx4 v3, s[40:43], s74 offen {SP} lds")
        elif not cfg.get("noffn", 0):
            E(f"s_add_u32 s74, s73, {i * 57344}")
            E(f"buffer_load_dwordx4 v14, s[40:43], s74 offen {SP} lds")
    E.label("L_pro")
    if cfg.get("cpf", 0):
        E("s_cmp_lg_u32 s52, 2")
        E.branch("s_cbranch_scc1 L_nocpf")
        E.raw("    s_getpc_b64 s[74:75]")
        E.raw("L_pcref:")
        E.raw(f"    s_sub_u32 s74, s74, L_pcref-{KNAME}")
        E.raw("    s_subb_u32 s75, s75, 0")
        E("v_lshlrev_b32 v14, 6, v0")
        for i in range(cfg.get("cpf")):
            E.raw(f"    v_min_u32 v16, L_exit-{KNAME}, v14")
            E(f"global_load_dword v15, v16, s[74:75] offset:0")
            E.ins("v_add_u32 v14, 0x1000, v14")
        E.label("L_nocpf")
    if cfg.get("dprio", 0): E("s_setprio 3")
    base_vm = E.vm
    if cfg.get('bpos', 0) and cfg.get('bgr', 1) == 0: E('s_barrier')
    ids = prologue(cfg.get('pace', 0), bar=cfg.get('bpos', 0) > 0)
    vm_after_prologue = E.vm
    stamp(1)
    E("s_cmp_eq_u32 s52, 1" if not cfg.get("nos0", 0) else "s_cmp_eq_u32 s52, 100")
    E.branch("s_cbranch_scc1 L_w1")
    E.label("L_flag")
    if cfg.get("noflag", 0): E.branch("s_branch L_main")
    E(f"v_mov_b32 v14, {FLAG_OFF}")
    E.label("L_flag_loop")
    E("""
    ds_read_b32 v15, v14
    s_waitcnt lgkmcnt(0)
    v_readfirstlane_b32 s85, v15
    s_cmp_lg_u32 s85, 0
    """)
    E.branch("s_cbranch_scc1 L_main")
    E("s_sleep 2")
    E.branch("s_branch L_flag_loop")

    E.label("L_w0")
    E("s_setprio 3")
    stamp(13)
    E(f"""
    buffer_load_dwordx2 v[8:9], v15, s[36:39], 0 offen
    v_lshrrev_b32 v14, 1, v0
    v_lshlrev_b32 v14, 13, v14
    v_and_b32 v15, 1, v0
    v_lshl_add_u32 v14, v15, 4, v14
    s_lshl_b32 s73, s53, 10
    s_lshl_b32 s74, s56, 5
    s_add_u32 s73, s73, s74
    """)
    for i in range(14):
        E(f"s_mov_b32 m0, {WQ_OFF + i * 1024}")
        if cfg.get("fakesc", 0):
            E(f"s_mul_i32 s74, s2, 14336")
            E(f"s_add_u32 s74, s74, {i * 1024}")
            E(f"buffer_load_dwordx4 v3, s[40:43], s74 offen {SP} lds")
        else:
            E(f"s_add_u32 s74, s73, {i * 262144}")
            E(f"buffer_load_dwordx4 v14, s[40:43], s74 offen {SP} lds")
    if cfg.get("bpos", 0) == 1: E("s_barrier")
    E(f"""
    v_mul_u32_u24 v15, 896, v13
    v_lshl_add_u32 v15, v11, 4, v15
    """)
    for ks in range(14):
        E(f"buffer_load_dwordx4 v[{64+4*ks}:{67+4*ks}], v15, s[44:47], 0 offen offset:{ks*64} {SP}")
    if cfg.get("bpos", 0) == 2: E("s_barrier")
    E(f"""
    v_lshl_add_u32 v14, v11, 3, v12
    v_lshlrev_b32 v14, 5, v14
    v_lshl_add_u32 v14, v13, 3, v14
    v_add_u32 v14, {WQ_OFF}, v14
    s_waitcnt lgkmcnt(0)
    """)
    stamp(14)
    E(f"""
    s_waitcnt vmcnt(0)
    v_add_co_u32 v8, vcc, 1, v8
    v_addc_co_u32 v9, vcc, 0, v9, vcc
    """)
    if cfg.get("bpos", 0) == 3: E("s_barrier")
    stamp(1)
    for ks in range(14):
        E(f"ds_read_b64_tr_b16 v[{128+4*ks}:{129+4*ks}], v14 offset:{ks*1024}")
        E(f"ds_read_b64_tr_b16 v[{130+4*ks}:{131+4*ks}], v14 offset:{ks*1024+128}")
        if ks % 7 == 6:
            E("s_waitcnt lgkmcnt(0)")
    for ks in range(14):
        c = "0" if ks == 0 else "v[48:51]"
        E(f"v_mfma_f32_16x16x32_bf16 v[48:51], v[{128+4*ks}:{131+4*ks}], v[{64+4*ks}:{67+4*ks}], {c}")
    E(f"""
    v_lshlrev_b32 v14, 14, v10
    v_lshl_add_u32 v14, v11, 4, v14
    s_lshl_b32 s73, s53, 11
    s_lshl_b32 s74, s56, 6
    s_add_u32 s73, s73, s74
    s_add_u32 s73, s73, {QBOX}
    v_mov_b32 v54, v8
    v_mov_b32 v55, v9
    v_cvt_pk_bf16_f32 v52, v48, v49
    v_cvt_pk_bf16_f32 v53, v50, v51
    s_mov_b32 exec_lo, 0x000f000f
    s_mov_b32 exec_hi, 0x000f000f
    buffer_store_dwordx4 v[52:55], v14, s[36:39], s73 offen sc1
    s_mov_b64 exec, -1
    s_lshl_b32 s73, s57, 11
    s_add_u32 s73, s73, {QBOX}
    s_mov_b32 s80, 0
    """)
    XF = cfg.get("xf", 0)
    if XF:
        E(f"""
        s_getreg_b32 s86, hwreg(HW_REG_XCC_ID)
        s_and_b32 s86, s86, 15
        s_lshl_b32 s87, s57, 7
        s_add_u32 s87, s87, {XBOX}
        s_lshl_b32 s74, s55, 4
        s_add_u32 s74, s74, s87
        v_mov_b32 v48, s86
        v_mov_b32 v49, s86
        v_mov_b32 v50, v8
        v_mov_b32 v51, v9
        v_mov_b32 v15, 0
        s_mov_b64 exec, 1
        buffer_store_dwordx4 v[48:51], v15, s[36:39], s74 offen sc1
        s_mov_b64 exec, -1
        v_and_b32 v15, 7, v0
        v_lshlrev_b32 v15, 4, v15
        """)
    if cfg.get("bpos", 0) == 4: E("s_barrier")
    stamp(2)
    if PROF:
        E("s_waitcnt vmcnt(0)")
    stamp(15)
    NPS = cfg.get("nps", 2)
    def q_load(i, r):
        if i < 2: return f"buffer_load_dwordx4 v[{r}:{r+3}], v3, s[36:39], s73 offen offset:{i*1024} sc1"
        return f"buffer_load_dwordx4 v[{r}:{r+3}], v15, s[36:39], s87 offen sc1"
    poll_pipe("L_w0_poll", 3 if XF else 2, q_load, None, 200, 56, nsets=NPS, sleep=cfg.get("psl", 4))
    if XF:
        E("""
        v_cmp_eq_u32 s[76:77], s86, v64
        s_cmp_eq_u64 s[76:77], exec
        s_cselect_b32 s85, 2, 1
        """)
    else:
        E("s_mov_b32 s85, 1")
    stamp(11)
    if PROF:
        E("v_writelane_b32 v7, s80, 12")
    E(f"""
    v_lshlrev_b32 v14, 3, v0
    v_add_u32 v14, {Q_OFF}, v14
    ds_write_b64 v14, v[56:57]
    ds_write_b64 v14, v[60:61] offset:512
    v_mov_b32 v15, {TAG_OFF}
    ds_write_b64 v15, v[8:9]
    v_mov_b32 v15, {FLAG_OFF}
    v_mov_b32 v14, s85
    s_waitcnt lgkmcnt(0)
    ds_write_b32 v15, v14
    """)
    if not cfg.get("dprio", 0): E("s_setprio 0")
    E.vm = base_vm
    ids2 = prologue()
    assert ids2 == ids and E.vm == vm_after_prologue
    E.branch("s_branch L_main")

    E.label("L_w1")
    E(f"""
    v_lshl_add_u32 v14, v11, 3, v12
    v_lshlrev_b32 v14, 6, v14
    v_lshl_add_u32 v14, v13, 3, v14
    v_add_u32 v14, {W1_OFF}, v14
    v_lshlrev_b32 v15, 4, v11
    v_add_u32 v15, {XS_OFF}, v15
    s_waitcnt vmcnt({8*(NS+OVF)})
    """)
    def ffn_rd(ks):
        xb = 16 + 4 * (ks & 1)
        tb = 24 + 8 * (ks & 1)
        E(f"ds_read_b128 v[{xb}:{xb+3}], v15 offset:{ks*64}")
        for ct in range(2):
            q = tb + 4 * ct
            E(f"ds_read_b64_tr_b16 v[{q}:{q+1}], v14 offset:{ks*2048+ct*32}")
            E(f"ds_read_b64_tr_b16 v[{q+2}:{q+3}], v14 offset:{ks*2048+ct*32+256}")
    ffn_rd(0)
    E("s_mov_b32 s74, 0xffff0000")
    E("v_mov_b32 v40, 0")
    for i in range(4):
        E(f"""
        v_lshlrev_b32 v41, 16, v{56+i}
        v_lshlrev_b32 v42, 16, v{60+i}
        v_fmac_f32 v40, v41, v42
        v_and_b32 v41, s74, v{56+i}
        v_and_b32 v42, s74, v{60+i}
        v_fmac_f32 v40, v41, v42
        """)
    E("""
    v_cmp_gt_u32 vcc, 56, v0
    v_cndmask_b32 v40, 0, v40, vcc
    """)
    for ks in range(14):
        if ks + 1 < 14:
            ffn_rd(ks + 1)
            E("s_waitcnt lgkmcnt(5)")
        else:
            E("s_waitcnt lgkmcnt(0)")
        xb = 16 + 4 * (ks & 1)
        tb = 24 + 8 * (ks & 1)
        for ct in range(2):
            d = 48 + ct * 4
            c = "0" if ks == 0 else f"v[{d}:{d+3}]"
            E(f"v_mfma_f32_16x16x32_bf16 v[{d}:{d+3}], v[{tb+4*ct}:{tb+4*ct+3}], v[{xb}:{xb+3}], {c}")
    for r in (8, 4, 2, 1):
        E(f"v_add_f32_dpp v40, v40, v40 row_ror:{r} row_mask:0xf bank_mask:0xf")
    E("""
    v_mov_b32 v41, v40
    v_permlane16_swap_b32 v40, v41
    v_add_f32 v40, v40, v41
    v_mov_b32 v41, v40
    v_permlane32_swap_b32 v40, v41
    v_add_f32 v40, v40, v41
    v_mul_f32 v40, 0xbfb8aa3b, v40
    v_exp_f32 v40, v40
    v_add_f32 v40, 1.0, v40
    v_rcp_f32 v40, v40
    v_sub_f32 v41, 1.0, v40
    s_cmp_lt_u32 s58, 56
    s_cselect_b64 s[76:77], -1, 0
    """)
    E(f"""
    v_mov_b32 v15, {G_OFF}
    ds_write_b32 v15, v40
    """)
    for r in range(8):
        E(f"""
        v_max_f32 v{48+r}, 0, v{48+r}
        v_mul_f32 v{48+r}, v41, v{48+r}
        v_cndmask_b32 v{48+r}, 0, v{48+r}, s[76:77]
        """)
    E(f"""
    v_cvt_pk_bf16_f32 v56, v48, v49
    v_cvt_pk_bf16_f32 v57, v50, v51
    v_cvt_pk_bf16_f32 v58, v52, v53
    v_cvt_pk_bf16_f32 v59, v54, v55
    v_lshlrev_b32 v14, 3, v11
    v_add_u32 v14, {COEF_OFF + 128}, v14
    s_mov_b32 exec_lo, 0x00010001
    s_mov_b32 exec_hi, 0x00010001
    ds_write_b64 v14, v[56:57]
    ds_write_b64 v14, v[58:59] offset:32
    s_mov_b64 exec, -1
    """)
    stamp(2)
    E.branch("s_branch L_flag")

    LA = cfg.get("la", NS)
    def sched(n):
        if OVF: return ACT.get(n)
        if n < LA: k = NS + n
        elif n < NS: return None
        else: k = n + LA
        return k if k < 16 else None
    def main(w7):
        ids_ = dict(ids)
        E.vm = vm_after_prologue
        E.label("L_main")
        stamp(3)
        E(f"""
        v_mov_b32 v15, {TAG_OFF}
        ds_read_b64 v[8:9], v15
        v_bfe_u32 v14, v10, 2, 1
        v_lshlrev_b32 v14, 9, v14
        v_lshl_add_u32 v14, v11, 6, v14
        v_lshl_add_u32 v14, v13, 4, v14
        v_add_u32 v14, {Q_OFF}, v14
        ds_read_b128 v[16:19], v14
        ds_read_b128 v[20:23], v14 offset:256
        s_mov_b32 s40, s12
        s_mov_b32 s41, s13
        s_mov_b32 s42, 3670016
        s_mov_b32 s44, s18
        s_mov_b32 s45, s19
        s_mov_b32 s46, 1605632
        s_mov_b32 s81, 0x3db8aa3b
        s_waitcnt lgkmcnt(0)
        """)
        DP = cfg.get("dprio", 0)
        TH = [int(x) for x in str(cfg.get("dth", "4.8.12")).split(".")]
        def setp(n):
            if DP and n in TH: E(f"s_setprio {2 - TH.index(n)}")
        for n in range(8):
            r = slot(n)
            setp(n)
            if OVF and n == 6: E("s_waitcnt lgkmcnt(0)")
            else: E.wait_vm(ids_[n])
            for t in range(2):
                for u in range(4):
                    d = 48 + 4 * u
                    q = r + (u * 2 + t) * 4
                    c = "0" if t == 0 else f"v[{d}:{d+3}]"
                    if not cfg.get("nocomp", 0): E(f"v_mfma_f32_16x16x32_bf16 v[{d}:{d+3}], v[{16+4*t}:{19+4*t}], v[{q}:{q+3}], {c}")
            if OVF and n == 5:
                E.wait_vm(ids_[6])
                E("v_add_u32 v14, s83, v3")
                for j in range(8):
                    E(f"ds_read_b128 v[{r+4*j}:{r+4*j+3}], v14 offset:{W_OFF + (j // 3) * 28672 + (j % 3) * 1024}")
            elif sched(n) is not None:
                ids_[sched(n)] = issue(sched(n))
            if n == cfg.get("stage_at", 6 if OVF else 3) and not cfg.get("nostage", 0):
                E(f"""
                s_mul_i32 s73, s52, 3584
                s_lshl_b32 s74, s53, 9
                s_lshl_b32 s75, s55, 5
                s_add_u32 s74, s74, s75
                s_mul_i32 s74, s74, 896
                s_add_u32 s74, s74, s73
                s_add_u32 s75, s74, {256*896}
                s_mul_i32 s82, s72, {32*896}
                s_add_u32 s82, s82, s73
                s_mov_b32 exec_hi, 0x00ffffff
                """)
                for blk in range(3):
                    E(f"s_add_u32 m0, s73, {W_OFF + blk * 28672}")
                    so = ["s74", "s75", "s82"][blk]
                    srd = "s[40:43]" if blk < 2 else "s[44:47]"
                    for k in range(4):
                        E(f"buffer_load_dwordx4 v3, {srd}, {so} offen offset:{k*896} {SP} lds")
                E("s_mov_b32 exec_hi, -1")
            for u in range(4):
                d = 48 + 4 * u
                E(f"v_cndmask_b32 v{32+u}, v{d}, v{d+1}, s[62:63]")
            for u in range(4):
                d = 48 + 4 * u
                E(f"v_cndmask_b32 v{32+u}, v{32+u}, v{d+2}, s[64:65]")
            for u in range(4):
                d = 48 + 4 * u
                E(f"v_cndmask_b32 v{32+u}, v{32+u}, v{d+3}, s[66:67]")
            for u in range(4):
                E(f"v_add_f32_dpp v{32+u}, v{32+u}, v{32+u} quad_perm:[1,0,3,2] row_mask:0xf bank_mask:0xf")
            for u in range(4):
                E(f"v_add_f32_dpp v{32+u}, v{32+u}, v{32+u} quad_perm:[2,3,0,1] row_mask:0xf bank_mask:0xf")
            E(f"""
            v_cndmask_b32 v{24+n}, v32, v33, s[62:63]
            v_cndmask_b32 v{24+n}, v{24+n}, v34, s[64:65]
            v_cndmask_b32 v{24+n}, v{24+n}, v35, s[66:67]
            """)
        stamp(4)
        E("""
        v_max3_f32 v32, v24, v25, v26
        v_max3_f32 v33, v27, v28, v29
        v_max3_f32 v32, v32, v30, v31
        v_max_f32 v32, v32, v33
        """)
        for r in (8, 4, 2, 1):
            E(f"v_max_f32_dpp v32, v32, v32 row_ror:{r} row_mask:0xf bank_mask:0xf")
        E("v_mul_f32 v36, s81, v32")
        for i in range(8):
            E(f"v_fma_f32 v{24+i}, v{24+i}, s81, -v36")
        for i in range(8):
            E(f"v_exp_f32 v{24+i}, v{24+i}")
        E("""
        v_add_f32 v32, v24, v25
        v_add_f32 v33, v26, v27
        v_add_f32 v34, v28, v29
        v_add_f32 v35, v30, v31
        v_add_f32 v32, v32, v33
        v_add_f32 v34, v34, v35
        v_add_f32 v37, v32, v34
        """)
        for i in range(0, 8, 2):
            E(f"v_cvt_pk_bf16_f32 v{40+i//2}, v{24+i}, v{25+i}")
        for r in (8, 4, 2, 1):
            E(f"v_add_f32_dpp v37, v37, v37 row_ror:{r} row_mask:0xf bank_mask:0xf")
        for i in range(0, 8, 2):
            E(f"ds_write_b16 v5, v{40+i//2} offset:{i*32}")
            E(f"ds_write_b16_d16_hi v5, v{40+i//2} offset:{(i+1)*32}")
        E(f"""
        s_lshl_b32 s73, s52, 3
        s_add_u32 s73, s73, {MLW_OFF}
        v_lshl_add_u32 v14, v0, 2, s73
        s_mov_b32 exec_lo, 0x00010001
        s_mov_b32 exec_hi, 0
        ds_write_b64 v14, v[36:37]
        s_mov_b64 exec, -1
        s_waitcnt lgkmcnt(0)
        ds_read_b128 v[12:15], v6
        """)
        ml_ids = None
        for n in range(8, 16):
            i = n - 8
            r = slot(n)
            pa = 12 if (i % 2 == 0) else 44
            pn = 44 if (i % 2 == 0) else 12
            setp(n)
            E.wait_vm(ids_[n])
            E("s_waitcnt lgkmcnt(0)")
            for half in range(2):
                for ii in range(2):
                    sreg = half * 2 + ii
                    for e in range(2):
                        dloc = ii * 2 + e
                        for jp in range(4):
                            tq = 48 + dloc * 4 + jp
                            s1 = r + (2 * jp) * 4 + sreg
                            s0 = r + (2 * jp + 1) * 4 + sreg
                            if not cfg.get("nocomp", 0): E(f"v_perm_b32 v{tq}, v{s0}, v{s1}, s{68+e}")
                if half == 1 and sched(n) is not None:
                    ids_[sched(n)] = issue(sched(n))
                for dloc in range(4):
                    d = half * 4 + dloc
                    a = 16 + 4 * d
                    c = "0" if i == 0 else f"v[{a}:{a+3}]"
                    if not cfg.get("nocomp", 0): E(f"v_mfma_f32_16x16x32_bf16 v[{a}:{a+3}], v[12:15], v[{48+dloc*4}:{51+dloc*4}], {c}")
            if i < 7:
                E(f"ds_read_b128 v[12:15], v6 offset:{(i+1)*32}")
        if cfg.get("dup", 0):
            for rep in range(cfg.get("dup")):
                for n in range(8):
                    if n >= 4 or rep: E("s_waitcnt vmcnt(24)")
                    SLs = SL[n]; SL[n] = n % 4
                    issue(n)
                    SL[n] = SLs
            E("s_waitcnt vmcnt(0)")
        stamp(5)
        E(f"""
        s_lshl_b32 s73, s52, 11
        s_add_u32 s73, s73, {MRG_OFF}
        v_lshlrev_b32 v14, 5, v0
        v_add_u32 v14, s73, v14
        """)
        for d in range(8):
            E(f"v_mov_b32 v{48+d}, v{16+4*d}")
        E("""
        ds_write_b128 v14, v[48:51]
        ds_write_b128 v14, v[52:55] offset:16
        s_waitcnt vmcnt(0) lgkmcnt(0)
        s_barrier
        """)

    main(False)
    stamp(6)
    if cfg.get("notail", 0): E.branch("s_branch L_end")
    E("s_cmp_eq_u32 s52, 7")
    E.branch("s_cbranch_scc1 L_w7tail")
    E("s_cmp_ge_u32 s52, 4")
    E.branch("s_cbranch_scc1 L_proj")
    E(f"""
    s_lshl_b32 s73, s52, 9
    s_add_u32 s73, s73, {MRG_OFF}
    v_lshl_add_u32 v14, v0, 3, s73
    s_lshr_b32 s74, s52, 1
    s_lshl_b32 s75, s74, 6
    s_add_u32 s75, s75, {MLW_OFF}
    v_mov_b32 v15, s75
    ds_read_b128 v[64:67], v15
    ds_read_b128 v[68:71], v15 offset:16
    ds_read_b128 v[72:75], v15 offset:32
    ds_read_b128 v[76:79], v15 offset:48
    """)
    for w in range(8):
        E(f"ds_read_b64 v[{24+2*w}:{25+2*w}], v14 offset:{w*2048}")
    E(f"""
    s_and_b32 s75, s52, 1
    s_lshl_b32 s75, s75, 14
    v_lshlrev_b32 v14, 12, v11
    v_lshl_add_u32 v14, v10, 4, v14
    s_lshl_b32 s73, s57, 15
    s_add_u32 s73, s73, s75
    s_lshl_b32 s75, s55, 9
    s_add_u32 s73, s73, s75
    s_lshl_b32 s75, s74, 8
    s_add_u32 s73, s73, s75
    s_add_u32 s73, s73, {H1BOX}
    v_mov_b32 v42, v8
    v_mov_b32 v43, v9
    v_mov_b32 v46, v8
    v_mov_b32 v47, v9
    s_lshl_b32 s82, s57, 11
    s_lshl_b32 s75, s55, 5
    s_add_u32 s82, s82, s75
    s_lshl_b32 s75, s74, 4
    s_add_u32 s82, s82, s75
    s_add_u32 s82, s82, {H1ML}
    v_lshlrev_b32 v15, 8, v0
    s_waitcnt lgkmcnt(8)
    v_max3_f32 v44, v64, v66, v68
    v_max3_f32 v45, v70, v72, v74
    v_max3_f32 v44, v44, v76, v78
    v_max_f32 v44, v44, v45
    """)
    for w in range(8):
        E(f"v_sub_f32 v{16+w}, v{64+2*w}, v44")
    for w in range(8):
        E(f"v_exp_f32 v{16+w}, v{16+w}")
    E("""
    s_waitcnt lgkmcnt(0)
    v_mul_f32 v40, v16, v24
    v_mul_f32 v41, v16, v25
    v_mul_f32 v45, v16, v65
    """)
    for w in range(1, 8):
        E(f"v_fmac_f32 v40, v{16+w}, v{24+2*w}")
        E(f"v_fmac_f32 v41, v{16+w}, v{25+2*w}")
        E(f"v_fmac_f32 v45, v{16+w}, v{65+2*w}")
    H1ST = cfg.get("h1st", "sc1").replace("+", " ")
    def h1_stores(pol):
        E(f"buffer_store_dwordx4 v[40:43], v14, s[36:39], s73 offen {pol}")
        E(f"""
        s_mov_b64 exec, 0xff
        buffer_store_dwordx4 v[44:47], v15, s[36:39], s82 offen {pol}
        s_mov_b64 exec, -1
        """)
    if cfg.get("xf", 0):
        E("s_cmp_eq_u32 s85, 2")
        E.branch("s_cbranch_scc1 L_h1loc")
        h1_stores(H1ST)
        E.branch("s_branch L_h1done")
        E.label("L_h1loc")
        h1_stores("")
        E.label("L_h1done")
    else:
        h1_stores(H1ST)
    stamp(12)
    E.label("L_proj")
    E(f"""
    v_lshrrev_b32 v12, 2, v10
    v_and_b32 v13, 3, v10
    v_lshl_add_u32 v14, v11, 3, v12
    v_mul_u32_u24 v14, 896, v14
    v_lshl_add_u32 v14, v13, 3, v14
    s_lshl_b32 s73, s52, 7
    v_add_u32 v14, s73, v14
    v_lshlrev_b32 v15, 4, v11
    v_add_u32 v15, {COEF_OFF}, v15
    ds_read_b128 v[120:123], v15 offset:128
    """)
    cnt = 1
    for ks in (2, 0, 1):
        for ct in range(4):
            q = 64 + (ks * 4 + ct) * 4
            E(f"ds_read_b64_tr_b16 v[{q}:{q+1}], v14 offset:{ks*28672+ct*32}")
            E(f"ds_read_b64_tr_b16 v[{q+2}:{q+3}], v14 offset:{ks*28672+ct*32+3584}")
        E("s_waitcnt lgkmcnt(0)")
    for ct in range(4):
        q = 64 + (2 * 4 + ct) * 4
        E(f"v_mfma_f32_16x16x32_bf16 v[{128+4*ct}:{131+4*ct}], v[{q}:{q+3}], v[120:123], 0")
    E(f"""
    v_lshrrev_b32 v12, 1, v11
    v_lshlrev_b32 v12, 12, v12
    v_and_b32 v13, 1, v11
    v_lshl_add_u32 v12, v13, 5, v12
    v_lshl_add_u32 v12, v10, 4, v12
    s_mul_i32 s73, s54, {56*4096}
    s_lshl_b32 s74, s58, 6
    s_add_u32 s73, s73, s74
    s_lshl_b32 s74, s52, 15
    s_add_u32 s73, s73, s74
    s_add_u32 s73, s73, {H2BOX}
    s_mov_b32 s76, 0x00020002
    s_mov_b32 s77, 0x00020002
    """)
    for ct in range(4):
        E(f"v_mov_b32 v{146+4*ct}, v8")
        E(f"v_mov_b32 v{147+4*ct}, v9")
    E("s_barrier")
    stamp(8)
    E("""
    ds_read_b128 v[112:115], v15
    ds_read_b128 v[116:119], v15 offset:64
    s_waitcnt lgkmcnt(0)
    """)
    for ks in range(2):
        for ct in range(4):
            q = 64 + (ks * 4 + ct) * 4
            E(f"v_mfma_f32_16x16x32_bf16 v[{128+4*ct}:{131+4*ct}], v[{q}:{q+3}], v[{112+4*ks}:{115+4*ks}], v[{128+4*ct}:{131+4*ct}]")
    for ct in range(4):
        E(f"v_cndmask_b32 v{144+4*ct}, v{128+4*ct}, v{130+4*ct}, s[76:77]")
        E(f"v_cndmask_b32 v{145+4*ct}, v{129+4*ct}, v{131+4*ct}, s[76:77]")
    E("""
    s_mov_b32 exec_lo, 0x00030003
    s_mov_b32 exec_hi, 0x00030003
    """)
    for ct in range(4):
        E(f"s_add_u32 s74, s73, {ct*8192}")
        E(f"buffer_store_dwordx4 v[{144+4*ct}:{147+4*ct}], v12, s[36:39], s74 offen {cfg.get('h2st', 'sc1').replace('+', ' ')}")
    E.branch("s_branch L_end")

    E.label("L_w7tail")
    E(f"""
    s_lshl_b32 s73, s57, 3
    s_add_u32 s73, s73, s55
    s_lshl_b32 s82, s73, 8
    s_add_u32 s82, s82, {H1ML}
    s_lshl_b32 s73, s73, 12
    s_add_u32 s73, s73, {H1BOX}
    v_mov_b32 v15, {G_OFF}
    ds_read_b32 v40, v15
    v_and_b32 v14, 31, v0
    v_lshlrev_b32 v14, 2, v14
    v_add_u32 v14, {COEF_OFF}, v14
    v_lshlrev_b32 v13, 4, v11
    s_mov_b32 s80, 0
    """)
    def h1_load(i, r):
        H1LD = cfg.get("h1ld", "sc1").replace("+", " ")
        if i < 4: return f"buffer_load_dwordx4 v[{r}:{r+3}], v3, s[36:39], s73 offen offset:{i*1024} {H1LD}"
        return f"buffer_load_dwordx4 v[{r}:{r+3}], v13, s[36:39], s82 offen offset:{(i-4)*64} {H1LD}"
    poll_pipe("L_h1", 8, h1_load, None, 128, 64, nsets=NPS, sleep=cfg.get("psl", 4))
    stamp(7)
    if PROF:
        E("v_writelane_b32 v7, s80, 13")
    E(f"""
    v_max3_f32 v96, v80, v84, v88
    v_max_f32 v96, v96, v92
    v_mov_b32 v97, v96
    v_permlane32_swap_b32 v96, v97
    v_max_f32 v96, v96, v97
    v_sub_f32 v80, v80, v96
    v_sub_f32 v84, v84, v96
    v_sub_f32 v88, v88, v96
    v_sub_f32 v92, v92, v96
    v_exp_f32 v80, v80
    v_exp_f32 v84, v84
    v_exp_f32 v88, v88
    v_exp_f32 v92, v92
    v_mul_f32 v98, v80, v81
    v_mul_f32 v64, v80, v64
    v_mul_f32 v65, v80, v65
    v_fmac_f32 v98, v84, v85
    v_fmac_f32 v64, v84, v68
    v_fmac_f32 v65, v84, v69
    v_fmac_f32 v98, v88, v89
    v_fmac_f32 v64, v88, v72
    v_fmac_f32 v65, v88, v73
    v_fmac_f32 v98, v92, v93
    v_fmac_f32 v64, v92, v76
    v_fmac_f32 v65, v92, v77
    v_mov_b32 v99, v98
    v_mov_b32 v66, v64
    v_mov_b32 v67, v65
    v_permlane32_swap_b32 v98, v99
    v_permlane32_swap_b32 v64, v66
    v_permlane32_swap_b32 v65, v67
    v_add_f32 v98, v98, v99
    v_add_f32 v64, v64, v66
    v_add_f32 v65, v65, v67
    v_rcp_f32 v98, v98
    s_waitcnt lgkmcnt(0)
    v_mul_f32 v98, v40, v98
    v_mul_f32 v64, v98, v64
    v_mul_f32 v65, v98, v65
    v_cvt_pk_bf16_f32 v64, v64, v65
    ds_write_b32 v14, v64
    s_waitcnt lgkmcnt(0)
    s_barrier
    s_cmp_ge_u32 s58, 56
    """)
    E.branch("s_cbranch_scc1 L_end")
    E(f"""
    s_mul_i32 s73, s54, 56
    s_add_u32 s73, s73, s58
    s_lshl_b32 s73, s73, 12
    s_add_u32 s73, s73, {H2BOX}
    s_mov_b32 s48, s22
    s_mov_b32 s49, s23
    s_mov_b32 s50, 3584
    s_mul_i32 s74, s54, 896
    s_lshl_b32 s75, s58, 4
    s_add_u32 s74, s74, s75
    v_lshlrev_b32 v14, 2, v0
    s_mov_b32 s80, 0
    """)
    poll_pipe("L_h2", 4, lambda i, r: f"buffer_load_dwordx4 v[{r}:{r+3}], v3, s[36:39], s73 offen offset:{i*1024} {cfg.get('h2ld', 'sc1').replace('+', ' ')}",
              None, 128, 64, nsets=NPS, sleep=cfg.get("psl", 4))
    E("""
    v_add_f32 v64, v64, v68
    v_add_f32 v65, v65, v69
    v_add_f32 v72, v72, v76
    v_add_f32 v73, v73, v77
    v_add_f32 v64, v64, v72
    v_add_f32 v65, v65, v73
    """)
    stamp(9)
    if PROF:
        E("v_writelane_b32 v7, s80, 14")
    for rr in (4, 8):
        E(f"v_add_f32_dpp v64, v64, v64 row_ror:{rr} row_mask:0xf bank_mask:0xf")
        E(f"v_add_f32_dpp v65, v65, v65 row_ror:{rr} row_mask:0xf bank_mask:0xf")
    E(f"""
    v_mov_b32 v66, v64
    v_mov_b32 v67, v65
    v_permlane16_swap_b32 v64, v66
    v_permlane16_swap_b32 v65, v67
    v_add_f32 v64, v64, v66
    v_add_f32 v65, v65, v67
    v_mov_b32 v66, v64
    v_mov_b32 v67, v65
    v_permlane32_swap_b32 v64, v66
    v_permlane32_swap_b32 v65, v67
    v_add_f32 v64, v64, v66
    v_add_f32 v65, v65, v67
    v_cvt_pk_bf16_f32 v64, v64, v65
    s_mov_b64 exec, 15
    buffer_store_dword v64, v14, s[48:51], s74 offen
    s_cmp_lg_u32 s2, 0
    """)
    E.branch("s_cbranch_scc1 L_end")
    E("""
    s_mov_b64 exec, 1
    buffer_store_dwordx2 v[8:9], v14, s[36:39], 0 offen sc1
    """)
    E.label("L_end")
    if PROF:
        stamp(10)
        E(f"""
        s_mov_b64 exec, 0xffff
        s_lshl_b32 s73, s2, 3
        s_add_u32 s73, s73, s52
        s_lshl_b32 s73, s73, 6
        s_add_u32 s73, s73, 0x300000
        v_lshlrev_b32 v14, 2, v0
        buffer_store_dword v7, v14, s[36:39], s73 offen
        """)
        if PROF == 2:
            E("""
            v_readlane_b32 s73, v7, 0
            s_not_b32 s73, s73
            v_writelane_b32 v7, s73, 0
            s_mov_b32 s48, s24
            s_mov_b32 s49, s25
            s_mov_b32 s50, 64
            s_mov_b32 s51, 0x20000
            s_cmp_lg_u32 s52, 7
            """)
            E.branch("s_cbranch_scc1 L_exit")
            E("""
            s_mov_b64 exec, 0x6e1
            buffer_atomic_umax v7, v14, s[48:51], 0 offen
            """)
    E.label("L_exit")
    E.raw("    s_endpgm")
    E.raw(f""".section .rodata,"a"
.p2align 6
.amdhsa_kernel {KNAME}
  .amdhsa_next_free_vgpr 256
  .amdhsa_next_free_sgpr 102
  .amdhsa_accum_offset 256
  .amdhsa_group_segment_fixed_size 0
  .amdhsa_kernarg_size 96
  .amdhsa_user_sgpr_count 2
  .amdhsa_user_sgpr_kernarg_segment_ptr 1
  .amdhsa_system_sgpr_workgroup_id_x 1
.end_amdhsa_kernel""")
    return E.text()

if __name__ == "__main__":
    out = sys.argv[1] if len(sys.argv) > 1 else "k1.s"
    cfg = {}
    for a in sys.argv[2:]:
        k, v = a.split("=")
        cfg[k] = int(v) if v.lstrip("-").isdigit() else v
    open(out, "w").write(gen(cfg))
```

```python
import sys, math
sys.path.insert(0, "gen")
from emit import Emit

KNAME = "gated_mix__gqa_block_cached__dense_activation_relu__decode_kernel"

W_OFF = 0
WQ_OFF = 86016
W1_OFF = 100352
MRG_OFF = 129024
P_OFF = 145408
Q_OFF = 151552
COEF_OFF = 152576
FAC_OFF = 152832
TAG_OFF = 152896
G_OFF = 152904
MLW_OFF = 152960
FLAG_OFF = 153088
XS_OFF = 153152
LDS_BYTES = 154112
QBOX = 0x1000
MLBOX = 0x20000
H1BOX = 0x40000
H2BOX = 0x140000
XBOX = 0x18000
H1ML = 0x20000
WS_BYTES = 0x400000

NS = 6
RING = 64
SPIN = 400000


def gen(cfg):
    E = Emit()
    POL = cfg.get("pol", "nt")
    PROF = cfg.get("prof", 0)
    def stamp(k):
        if PROF:
            E(f"""
            s_memrealtime s[98:99]
            s_waitcnt lgkmcnt(0)
            v_writelane_b32 v7, s98, {k}
            """)
    hdr = open("gated_mix__gqa_block_cached__dense_activation_relu__decode.s.ref").read().split("\n")
    for l in hdr:
        if l.startswith("; @launch"): break
        if l.startswith(";"): E.raw(l)
    E.raw(f"; @launch grid=(256,1,1) block=(512,1,1) lds={LDS_BYTES}")
    E.raw('.amdgcn_target "amdgcn-amd-amdhsa--gfx950"')
    E.raw(".text")
    E.raw(f".globl {KNAME}\n.p2align 8\n.type {KNAME},@function\n{KNAME}:")
    E("s_cmp_ge_u32 s2, 256")
    E.branch("s_cbranch_scc1 L_exit")
    if PROF:
        E("v_mov_b32 v7, 0")
    stamp(0)
    E("""
    s_load_dwordx16 s[4:19], s[0:1], 0
    s_load_dwordx8 s[20:27], s[0:1], 64
    v_lshrrev_b32 v1, 6, v0
    v_and_b32 v0, 63, v0
    v_readfirstlane_b32 s52, v1
    """ + ("""
    s_and_b32 s55, s2, 7
    s_lshr_b32 s54, s2, 6
    s_bfe_u32 s53, s2, 0x30003
    s_lshl_b32 s56, s55, 2
    s_add_u32 s56, s56, s54
    """ if cfg.get("nox", 0) == 1 else """
    s_bfe_u32 s53, s2, 0x20001
    s_lshl_b32 s53, s53, 1
    s_bfe_u32 s55, s2, 0x10003
    s_add_u32 s53, s53, s55
    s_lshr_b32 s54, s2, 6
    s_bfe_u32 s55, s2, 0x20004
    s_lshl_b32 s55, s55, 1
    s_and_b32 s56, s2, 1
    s_add_u32 s55, s55, s56
    s_lshl_b32 s56, s55, 2
    s_add_u32 s56, s56, s54
    """ if cfg.get("nox", 0) == 2 else """
    s_and_b32 s53, s2, 7
    s_lshr_b32 s54, s2, 6
    s_bfe_u32 s55, s2, 0x30003
    s_lshr_b32 s56, s2, 3
    """) + """
    s_lshl_b32 s57, s54, 3
    s_add_u32 s57, s57, s53
    s_lshl_b32 s58, s53, 3
    s_add_u32 s58, s58, s55
    v_and_b32 v10, 15, v0
    v_lshrrev_b32 v11, 4, v0
    v_lshrrev_b32 v12, 2, v10
    v_and_b32 v13, 3, v10
    v_lshlrev_b32 v1, 9, v12
    v_lshl_add_u32 v1, v11, 6, v1
    v_lshl_add_u32 v1, v13, 4, v1
    v_add_u32 v2, 0x1000, v1
    v_lshlrev_b32 v3, 4, v0
    v_add_u32 v4, 0x1000, v3
    s_lshl_b32 s59, s57, 22
    s_lshl_b32 s60, s55, 19
    s_add_u32 s59, s59, s60
    s_mul_i32 s60, s52, """ + str(cfg.get("ps", 8192)) + """
    s_add_u32 s59, s59, s60
    s_mov_b32 s62, 0x22222222
    s_mov_b32 s63, 0x22222222
    s_mov_b32 s64, 0x44444444
    s_mov_b32 s65, 0x44444444
    s_mov_b32 s66, 0x88888888
    s_mov_b32 s67, 0x88888888
    s_mov_b32 s68, 0x05040100
    s_mov_b32 s69, 0x07060302
    s_mov_b32 s30, 0x8000000
    s_mov_b32 s31, 0x20000
    s_mov_b32 s34, 0x8000000
    s_mov_b32 s35, 0x20000
    """)
    E(f"s_mov_b32 s38, {WS_BYTES}")
    E("""
    s_mov_b32 s39, 0x20000
    s_mov_b32 s43, 0x20000
    s_mov_b32 s47, 0x20000
    s_mov_b32 s51, 0x20000
    s_min_u32 s72, s58, 55
    """ + {0: "", 1: "s_lshl_b32 s84, s55, 16", 2: "s_lshl_b32 s84, s53, 16",
           3: "s_add_u32 s84, s55, s53\ns_lshl_b32 s84, s84, 16",
           4: "s_lshl_b32 s84, s54, 1\ns_add_u32 s84, s84, s55\ns_add_u32 s84, s84, s53\ns_lshl_b32 s84, s84, 16",
           5: "s_lshl_b32 s84, s54, 17"}[cfg.get("rot", 0)] + """
    v_mov_b32 v14, 153088
    v_mov_b32 v15, 0
    ds_write_b32 v14, v15
    s_waitcnt lgkmcnt(0)
    """ + ("s_barrier" if cfg.get("bpos", 0) == 0 else "") + """
    s_mov_b32 s28, s6
    s_mov_b32 s29, s7
    s_mov_b32 s32, s8
    s_mov_b32 s33, s9
    s_mov_b32 s36, s26
    s_mov_b32 s37, s27
    s_mov_b32 s44, s4
    s_mov_b32 s45, s5
    s_mov_b32 s46, 3584
    s_mov_b32 s40, s10
    s_mov_b32 s41, s11
    s_mov_b32 s42, 3670016
    s_mov_b32 s48, s20
    s_mov_b32 s49, s21
    s_mov_b32 s50, 896
    """)
    E(f"""
    s_mul_i32 s73, s52, 768
    s_add_u32 s73, s73, {P_OFF}
    v_and_b32 v5, 1, v11
    v_lshlrev_b32 v5, 8, v5
    v_and_b32 v14, 1, v12
    v_lshl_add_u32 v5, v14, 4, v5
    v_lshl_add_u32 v5, v13, 2, v5
    v_lshrrev_b32 v14, 1, v12
    v_lshl_add_u32 v5, v14, 1, v5
    v_add_u32 v5, s73, v5
    v_lshrrev_b32 v6, 3, v10
    v_lshlrev_b32 v6, 8, v6
    v_xor_b32 v14, v12, v11
    v_and_b32 v14, 1, v14
    v_cmp_eq_u32 vcc, 1, v14
    v_mov_b32 v15, 0x200
    v_cndmask_b32 v6, v6, v15, vcc
    v_lshrrev_b32 v14, 1, v11
    v_lshl_add_u32 v6, v14, 4, v6
    v_add_u32 v6, s73, v6
    v_lshl_add_u32 v14, v0, 2, s73
    v_mov_b32 v15, 0
    ds_write_b32 v14, v15 offset:512
    """)
    if not cfg.get("nos0", 0):
        E("s_cmp_eq_u32 s52, 0")
        E.branch("s_cbranch_scc1 L_w0")

    def poll_pipe(lbl, nload, mk_load, tagregs, base, dst, nsets=2, sleep=0):
        sz = 4 * nload
        def issue_set(k):
            for i in range(nload):
                E(mk_load(i, base + k * sz + 4 * i))
        sv = E.vm
        E("s_mov_b32 s80, 0")
        for k in range(nsets - 1):
            issue_set(k)
            if sleep: E(f"s_sleep {sleep}")
        E.label(lbl)
        for k in range(nsets):
            issue_set((k + nsets - 1) % nsets)
            E(f"s_waitcnt vmcnt({(nsets - 1) * nload})")
            b = base + k * sz
            E(f"v_cmp_eq_u64 s[76:77], v[{b+2}:{b+3}], v[8:9]")
            for i in range(1, nload):
                E(f"v_cmp_eq_u64 s[78:79], v[{b+4*i+2}:{b+4*i+3}], v[8:9]")
                E("s_and_b64 s[76:77], s[76:77], s[78:79]")
            E("s_cmp_eq_u64 s[76:77], exec")
            E.branch(f"s_cbranch_scc1 {lbl}_g{k}")
        if cfg.get("lsl", 0): E(f"s_sleep {cfg.get('lsl')}")
        E("s_add_u32 s80, s80, 1")
        E(f"s_cmp_lt_u32 s80, {SPIN // nsets}")
        E.branch(f"s_cbranch_scc1 {lbl}")
        for k in reversed(range(nsets)):
            E.label(f"{lbl}_g{k}")
            b = base + k * sz
            if b != dst:
                for i in range(nload):
                    E(f"v_mov_b32 v{dst+4*i}, v{b+4*i}")
                    E(f"v_mov_b32 v{dst+4*i+1}, v{b+4*i+1}")
            if k: E.branch(f"s_branch {lbl}_got")
        E.label(f"{lbl}_got")
        E.vm = sv

    OVF = cfg.get("ovf", 0)
    PL = cfg.get("pacel", 0)
    SL = {n: n % NS for n in range(16)}
    if OVF:
        SL = {n: n for n in range(6)}
        SL[6] = 5
        nxt = 7
        ACT = {}
        for st in range(16):
            if st == 5: ACT[st] = 6
            elif nxt < 16:
                ACT[st] = nxt; SL[nxt] = SL[st]; nxt += 1
    def slot(n): return RING + 32 * SL[n]
    def issue(n, lds=False, pl=0):
        r = slot(n)
        i = n & 7
        PS = cfg.get("ps", 8192)
        last = None
        cur = [None]
        def addr(goff):
            if PS <= 8192:
                p, w_ = goff // PS, goff % PS
                so = i * 65536 + p * PS * 8
            else:
                k = PS // 8192
                w_ = goff
                so = (i // k) * PS * 8 + (i % k) * 8192
            if cur[0] != so:
                if cfg.get("rot", 0):
                    E(f"s_add_u32 s61, s84, {so}")
                    E("s_and_b32 s61, s61, 0x7ffff")
                    E("s_add_u32 s61, s61, s59")
                else:
                    E(f"s_add_u32 s61, s59, {so}")
                cur[0] = so
            return w_ >= 4096, w_ % 4096
        if n < 8:
            for u in range(4):
                for t in range(2):
                    hi, off = addr(u * 2048)
                    off += t * 256
                    va = "v2" if hi else "v1"
                    q = r + (u * 2 + t) * 4
                    if pl: E(f"s_waitcnt vmcnt({pl-1})")
                    if lds:
                        j = u * 2 + t
                        E(f"s_add_u32 m0, s83, {W_OFF + (j // 3) * 28672 + (j % 3) * 1024 - off}")
                        last = E.ins(f"buffer_load_dwordx4 {va}, s[28:31], s61 offen offset:{off} {POL} lds")
                    else:
                        last = E.ins(f"buffer_load_dwordx4 v[{q}:{q+3}], {va}, s[28:31], s61 offen offset:{off} {POL}")
        else:
            for j in range(8):
                hi, off = addr(j * 1024)
                va = "v4" if hi else "v3"
                q = r + j * 4
                last = E.ins(f"buffer_load_dwordx4 v[{q}:{q+3}], {va}, s[32:35], s61 offen offset:{off} {cfg.get('polv', POL)}")
        return last

    def prologue(pace=0, bar=False):
        ids = {}
        for n in range(NS):
            if pace and n >= pace and not PL:
                E.wait_vm(ids[n - pace])
            ids[n] = issue(n, pl=(PL if pace else 0))
            if bar and n == cfg.get("bgr", 1) - 1: E("s_barrier")
        if OVF:
            E("s_mul_i32 s83, s52, 3584")
            if pace and not PL: E.wait_vm(ids[NS - pace])
            ids[6] = issue(6, lds=True, pl=(PL if pace else 0))
        return ids

    SP = cfg.get("spol", "nt")
    E("s_cmp_lg_u32 s52, 1" if not cfg.get("nos0", 0) else "s_cmp_lg_u32 s52, 100")
    E.branch("s_cbranch_scc1 L_pro")
    E(f"""
    s_mov_b32 s40, s16
    s_mov_b32 s41, s17
    s_mov_b32 s42, 1605632
    v_lshrrev_b32 v14, 2, v0
    v_mul_u32_u24 v14, 3584, v14
    v_and_b32 v15, 3, v0
    v_lshl_add_u32 v14, v15, 4, v14
    s_lshl_b32 s73, s72, 6
    s_mul_i32 s75, s54, 896
    buffer_load_dwordx4 v[56:59], v3, s[44:47], s75 offen {SP}
    buffer_load_dwordx4 v[60:63], v3, s[48:51], 0 offen {SP}
    s_mov_b32 m0, {XS_OFF}
    s_mov_b32 exec_hi, 0x00ffffff
    buffer_load_dwordx4 v3, s[44:47], s75 offen {SP} lds
    s_mov_b32 exec_hi, -1
    """)
    for i in range(28):
        E(f"s_mov_b32 m0, {W1_OFF + i * 1024}")
        if cfg.get("fakesc", 0):
            E(f"s_mul_i32 s74, s72, 28672")
            E(f"s_add_u32 s74, s74, {i * 1024}")
            E(f"buffer_load_dwordx4 v3, s[40:43], s74 offen {SP} lds")
        elif not cfg.get("noffn", 0):
            E(f"s_add_u32 s74, s73, {i * 57344}")
            E(f"buffer_load_dwordx4 v14, s[40:43], s74 offen {SP} lds")
    E.label("L_pro")
    if cfg.get("cpf", 0):
        E("s_cmp_lg_u32 s52, 2")
        E.branch("s_cbranch_scc1 L_nocpf")
        E.raw("    s_getpc_b64 s[74:75]")
        E.raw("L_pcref:")
        E.raw(f"    s_sub_u32 s74, s74, L_pcref-{KNAME}")
        E.raw("    s_subb_u32 s75, s75, 0")
        E("v_lshlrev_b32 v14, 6, v0")
        for i in range(cfg.get("cpf")):
            E.raw(f"    v_min_u32 v16, L_exit-{KNAME}, v14")
            E(f"global_load_dword v15, v16, s[74:75] offset:0")
            E.ins("v_add_u32 v14, 0x1000, v14")
        E.label("L_nocpf")
    if cfg.get("dprio", 0): E("s_setprio 3")
    base_vm = E.vm
    if cfg.get('bpos', 0) and cfg.get('bgr', 1) == 0: E('s_barrier')
    ids = prologue(cfg.get('pace', 0), bar=cfg.get('bpos', 0) > 0)
    vm_after_prologue = E.vm
    stamp(1)
    E("s_cmp_eq_u32 s52, 1" if not cfg.get("nos0", 0) else "s_cmp_eq_u32 s52, 100")
    E.branch("s_cbranch_scc1 L_w1")
    E.label("L_flag")
    if cfg.get("noflag", 0): E.branch("s_branch L_main")
    E(f"v_mov_b32 v14, {FLAG_OFF}")
    E.label("L_flag_loop")
    E("""
    ds_read_b32 v15, v14
    s_waitcnt lgkmcnt(0)
    v_readfirstlane_b32 s85, v15
    s_cmp_lg_u32 s85, 0
    """)
    E.branch("s_cbranch_scc1 L_main")
    E("s_sleep 2")
    E.branch("s_branch L_flag_loop")

    E.label("L_w0")
    E("s_setprio 3")
    stamp(13)
    E(f"""
    buffer_load_dwordx2 v[8:9], v15, s[36:39], 0 offen
    v_lshrrev_b32 v14, 1, v0
    v_lshlrev_b32 v14, 13, v14
    v_and_b32 v15, 1, v0
    v_lshl_add_u32 v14, v15, 4, v14
    s_lshl_b32 s73, s53, 10
    s_lshl_b32 s74, s56, 5
    s_add_u32 s73, s73, s74
    """)
    for i in range(14):
        E(f"s_mov_b32 m0, {WQ_OFF + i * 1024}")
        if cfg.get("fakesc", 0):
            E(f"s_mul_i32 s74, s2, 14336")
            E(f"s_add_u32 s74, s74, {i * 1024}")
            E(f"buffer_load_dwordx4 v3, s[40:43], s74 offen {SP} lds")
        else:
            E(f"s_add_u32 s74, s73, {i * 262144}")
            E(f"buffer_load_dwordx4 v14, s[40:43], s74 offen {SP} lds")
    if cfg.get("bpos", 0) == 1: E("s_barrier")
    E(f"""
    v_mul_u32_u24 v15, 896, v13
    v_lshl_add_u32 v15, v11, 4, v15
    """)
    for ks in range(14):
        E(f"buffer_load_dwordx4 v[{64+4*ks}:{67+4*ks}], v15, s[44:47], 0 offen offset:{ks*64} {SP}")
    if cfg.get("bpos", 0) == 2: E("s_barrier")
    E(f"""
    v_lshl_add_u32 v14, v11, 3, v12
    v_lshlrev_b32 v14, 5, v14
    v_lshl_add_u32 v14, v13, 3, v14
    v_add_u32 v14, {WQ_OFF}, v14
    s_waitcnt lgkmcnt(0)
    """)
    stamp(14)
    E(f"""
    s_waitcnt vmcnt(0)
    v_add_co_u32 v8, vcc, 1, v8
    v_addc_co_u32 v9, vcc, 0, v9, vcc
    """)
    if cfg.get("bpos", 0) == 3: E("s_barrier")
    stamp(1)
    for ks in range(14):
        E(f"ds_read_b64_tr_b16 v[{128+4*ks}:{129+4*ks}], v14 offset:{ks*1024}")
        E(f"ds_read_b64_tr_b16 v[{130+4*ks}:{131+4*ks}], v14 offset:{ks*1024+128}")
        if ks % 7 == 6:
            E("s_waitcnt lgkmcnt(0)")
    for ks in range(14):
        c = "0" if ks == 0 else "v[48:51]"
        E(f"v_mfma_f32_16x16x32_bf16 v[48:51], v[{128+4*ks}:{131+4*ks}], v[{64+4*ks}:{67+4*ks}], {c}")
    E(f"""
    v_lshlrev_b32 v14, 14, v10
    v_lshl_add_u32 v14, v11, 4, v14
    s_lshl_b32 s73, s53, 11
    s_lshl_b32 s74, s56, 6
    s_add_u32 s73, s73, s74
    s_add_u32 s73, s73, {QBOX}
    v_mov_b32 v54, v8
    v_mov_b32 v55, v9
    v_cvt_pk_bf16_f32 v52, v48, v49
    v_cvt_pk_bf16_f32 v53, v50, v51
    s_mov_b32 exec_lo, 0x000f000f
    s_mov_b32 exec_hi, 0x000f000f
    """ + ("""
    buffer_store_dwordx4 v[52:55], v14, s[36:39], s73 offen
    s_add_u32 s73, s73, 0x240000
    """ if cfg.get("qf", 0) else "") + f"""
    buffer_store_dwordx4 v[52:55], v14, s[36:39], s73 offen sc1
    s_mov_b64 exec, -1
    s_lshl_b32 s73, s57, 11
    s_add_u32 s73, s73, {QBOX}
    s_mov_b32 s80, 0
    """)
    XF = cfg.get("xf", 0)
    if XF:
        E(f"""
        s_getreg_b32 s86, hwreg(HW_REG_XCC_ID)
        s_and_b32 s86, s86, 15
        s_lshl_b32 s87, s57, 7
        s_add_u32 s87, s87, {XBOX}
        s_lshl_b32 s74, s55, 4
        s_add_u32 s74, s74, s87
        v_mov_b32 v48, s86
        v_mov_b32 v49, s86
        v_mov_b32 v50, v8
        v_mov_b32 v51, v9
        v_mov_b32 v15, 0
        s_mov_b64 exec, 1
        """ + ("""
        buffer_store_dwordx4 v[48:51], v15, s[36:39], s74 offen
        s_add_u32 s74, s74, 0x240000
        """ if cfg.get("qf", 0) else "") + f"""
        buffer_store_dwordx4 v[48:51], v15, s[36:39], s74 offen sc1
        s_mov_b64 exec, -1
        v_and_b32 v15, 7, v0
        v_lshlrev_b32 v15, 4, v15
        """)
    if cfg.get("bpos", 0) == 4: E("s_barrier")
    stamp(2)
    if PROF:
        E("s_waitcnt vmcnt(0)")
    stamp(15)
    NPS = cfg.get("nps", 2)
    def q_load(i, r):
        if i < 2: return f"buffer_load_dwordx4 v[{r}:{r+3}], v3, s[36:39], s73 offen offset:{i*1024} sc1"
        return f"buffer_load_dwordx4 v[{r}:{r+3}], v15, s[36:39], s87 offen sc1"
    if cfg.get("qf", 0):
        assert XF
        sv = E.vm
        E("""
        s_mov_b32 s80, 0
        s_add_u32 s88, s73, 0x240000
        s_add_u32 s89, s87, 0x240000
        """)
        def chk(lbl):
            E("""
            s_waitcnt vmcnt(0)
            v_cmp_eq_u64 s[76:77], v[58:59], v[8:9]
            v_cmp_eq_u64 s[78:79], v[62:63], v[8:9]
            s_and_b64 s[76:77], s[76:77], s[78:79]
            v_cmp_eq_u64 s[78:79], v[66:67], v[8:9]
            s_and_b64 s[76:77], s[76:77], s[78:79]
            s_cmp_eq_u64 s[76:77], exec
            """)
            E.branch(f"s_cbranch_scc1 {lbl}")
        E.label("L_w0_poll")
        for k in range(cfg.get("qf")):
            E("""
            buffer_load_dwordx4 v[56:59], v3, s[36:39], s73 offen sc1
            buffer_load_dwordx4 v[60:63], v3, s[36:39], s73 offen offset:1024 sc1
            buffer_load_dwordx4 v[64:67], v15, s[36:39], s87 offen sc1
            """)
            chk("L_w0_poll_got")
        E("""
        buffer_load_dwordx4 v[56:59], v3, s[36:39], s88 offen sc1
        buffer_load_dwordx4 v[60:63], v3, s[36:39], s88 offen offset:1024 sc1
        buffer_load_dwordx4 v[64:67], v15, s[36:39], s89 offen sc1
        """)
        chk("L_w0_poll_got")
        E("s_add_u32 s80, s80, 1")
        E(f"s_cmp_lt_u32 s80, {SPIN // 4}")
        E.branch("s_cbranch_scc1 L_w0_poll")
        E.label("L_w0_poll_got")
        E.vm = sv
    else:
        poll_pipe("L_w0_poll", 3 if XF else 2, q_load, None, 200, 56, nsets=NPS, sleep=cfg.get("psl", 4))
    if XF:
        E("""
        v_cmp_eq_u32 s[76:77], s86, v64
        s_cmp_eq_u64 s[76:77], exec
        s_cselect_b32 s85, 2, 1
        """)
    else:
        E("s_mov_b32 s85, 1")
    stamp(11)
    if PROF:
        E("v_writelane_b32 v7, s80, 12")
    E(f"""
    v_lshlrev_b32 v14, 3, v0
    v_add_u32 v14, {Q_OFF}, v14
    ds_write_b64 v14, v[56:57]
    ds_write_b64 v14, v[60:61] offset:512
    v_mov_b32 v15, {TAG_OFF}
    ds_write_b64 v15, v[8:9]
    v_mov_b32 v15, {FLAG_OFF}
    v_mov_b32 v14, s85
    s_waitcnt lgkmcnt(0)
    ds_write_b32 v15, v14
    """)
    if not cfg.get("dprio", 0): E("s_setprio 0")
    E.vm = base_vm
    ids2 = prologue()
    assert ids2 == ids and E.vm == vm_after_prologue
    E.branch("s_branch L_main")

    E.label("L_w1")
    E(f"""
    v_lshl_add_u32 v14, v11, 3, v12
    v_lshlrev_b32 v14, 6, v14
    v_lshl_add_u32 v14, v13, 3, v14
    v_add_u32 v14, {W1_OFF}, v14
    v_lshlrev_b32 v15, 4, v11
    v_add_u32 v15, {XS_OFF}, v15
    s_waitcnt vmcnt({8*(NS+OVF)})
    """)
    def ffn_rd(ks):
        xb = 16 + 4 * (ks & 1)
        tb = 24 + 8 * (ks & 1)
        E(f"ds_read_b128 v[{xb}:{xb+3}], v15 offset:{ks*64}")
        for ct in range(2):
            q = tb + 4 * ct
            E(f"ds_read_b64_tr_b16 v[{q}:{q+1}], v14 offset:{ks*2048+ct*32}")
            E(f"ds_read_b64_tr_b16 v[{q+2}:{q+3}], v14 offset:{ks*2048+ct*32+256}")
    ffn_rd(0)
    E("s_mov_b32 s74, 0xffff0000")
    E("v_mov_b32 v40, 0")
    for i in range(4):
        E(f"""
        v_lshlrev_b32 v41, 16, v{56+i}
        v_lshlrev_b32 v42, 16, v{60+i}
        v_fmac_f32 v40, v41, v42
        v_and_b32 v41, s74, v{56+i}
        v_and_b32 v42, s74, v{60+i}
        v_fmac_f32 v40, v41, v42
        """)
    E("""
    v_cmp_gt_u32 vcc, 56, v0
    v_cndmask_b32 v40, 0, v40, vcc
    """)
    for ks in range(14):
        if ks + 1 < 14:
            ffn_rd(ks + 1)
            E("s_waitcnt lgkmcnt(5)")
        else:
            E("s_waitcnt lgkmcnt(0)")
        xb = 16 + 4 * (ks & 1)
        tb = 24 + 8 * (ks & 1)
        for ct in range(2):
            d = 48 + ct * 4
            c = "0" if ks == 0 else f"v[{d}:{d+3}]"
            E(f"v_mfma_f32_16x16x32_bf16 v[{d}:{d+3}], v[{tb+4*ct}:{tb+4*ct+3}], v[{xb}:{xb+3}], {c}")
    for r in (8, 4, 2, 1):
        E(f"v_add_f32_dpp v40, v40, v40 row_ror:{r} row_mask:0xf bank_mask:0xf")
    E("""
    v_mov_b32 v41, v40
    v_permlane16_swap_b32 v40, v41
    v_add_f32 v40, v40, v41
    v_mov_b32 v41, v40
    v_permlane32_swap_b32 v40, v41
    v_add_f32 v40, v40, v41
    v_mul_f32 v40, 0xbfb8aa3b, v40
    v_exp_f32 v40, v40
    v_add_f32 v40, 1.0, v40
    v_rcp_f32 v40, v40
    v_sub_f32 v41, 1.0, v40
    s_cmp_lt_u32 s58, 56
    s_cselect_b64 s[76:77], -1, 0
    """)
    E(f"""
    v_mov_b32 v15, {G_OFF}
    ds_write_b32 v15, v40
    """)
    for r in range(8):
        E(f"""
        v_max_f32 v{48+r}, 0, v{48+r}
        v_mul_f32 v{48+r}, v41, v{48+r}
        v_cndmask_b32 v{48+r}, 0, v{48+r}, s[76:77]
        """)
    E(f"""
    v_cvt_pk_bf16_f32 v56, v48, v49
    v_cvt_pk_bf16_f32 v57, v50, v51
    v_cvt_pk_bf16_f32 v58, v52, v53
    v_cvt_pk_bf16_f32 v59, v54, v55
    v_lshlrev_b32 v14, 3, v11
    v_add_u32 v14, {COEF_OFF + 128}, v14
    s_mov_b32 exec_lo, 0x00010001
    s_mov_b32 exec_hi, 0x00010001
    ds_write_b64 v14, v[56:57]
    ds_write_b64 v14, v[58:59] offset:32
    s_mov_b64 exec, -1
    """)
    stamp(2)
    E.branch("s_branch L_flag")

    LA = cfg.get("la", NS)
    def sched(n):
        if OVF: return ACT.get(n)
        if n < LA: k = NS + n
        elif n < NS: return None
        else: k = n + LA
        return k if k < 16 else None
    def main(w7):
        ids_ = dict(ids)
        E.vm = vm_after_prologue
        E.label("L_main")
        stamp(3)
        E(f"""
        v_mov_b32 v15, {TAG_OFF}
        ds_read_b64 v[8:9], v15
        v_bfe_u32 v14, v10, 2, 1
        v_lshlrev_b32 v14, 9, v14
        v_lshl_add_u32 v14, v11, 6, v14
        v_lshl_add_u32 v14, v13, 4, v14
        v_add_u32 v14, {Q_OFF}, v14
        ds_read_b128 v[16:19], v14
        ds_read_b128 v[20:23], v14 offset:256
        s_mov_b32 s40, s12
        s_mov_b32 s41, s13
        s_mov_b32 s42, 3670016
        s_mov_b32 s44, s18
        s_mov_b32 s45, s19
        s_mov_b32 s46, 1605632
        s_mov_b32 s81, 0x3db8aa3b
        s_waitcnt lgkmcnt(0)
        """)
        DP = cfg.get("dprio", 0)
        TH = [int(x) for x in str(cfg.get("dth", "4.8.12")).split(".")]
        def setp(n):
            if DP and n in TH: E(f"s_setprio {2 - TH.index(n)}")
        for n in range(8):
            r = slot(n)
            setp(n)
            if OVF and n == 6: E("s_waitcnt lgkmcnt(0)")
            else: E.wait_vm(ids_[n])
            for t in range(2):
                for u in range(4):
                    d = 48 + 4 * u
                    q = r + (u * 2 + t) * 4
                    c = "0" if t == 0 else f"v[{d}:{d+3}]"
                    if not cfg.get("nocomp", 0): E(f"v_mfma_f32_16x16x32_bf16 v[{d}:{d+3}], v[{16+4*t}:{19+4*t}], v[{q}:{q+3}], {c}")
            if OVF and n == 5:
                E.wait_vm(ids_[6])
                E("v_add_u32 v14, s83, v3")
                for j in range(8):
                    E(f"ds_read_b128 v[{r+4*j}:{r+4*j+3}], v14 offset:{W_OFF + (j // 3) * 28672 + (j % 3) * 1024}")
            elif sched(n) is not None:
                ids_[sched(n)] = issue(sched(n))
            if n == cfg.get("stage_at", 6 if OVF else 3) and not cfg.get("nostage", 0):
                E(f"""
                s_mul_i32 s73, s52, 3584
                s_lshl_b32 s74, s53, 9
                s_lshl_b32 s75, s55, 5
                s_add_u32 s74, s74, s75
                s_mul_i32 s74, s74, 896
                s_add_u32 s74, s74, s73
                s_add_u32 s75, s74, {256*896}
                s_mul_i32 s82, s72, {32*896}
                s_add_u32 s82, s82, s73
                s_mov_b32 exec_hi, 0x00ffffff
                """)
                for blk in range(3):
                    E(f"s_add_u32 m0, s73, {W_OFF + blk * 28672}")
                    so = ["s74", "s75", "s82"][blk]
                    srd = "s[40:43]" if blk < 2 else "s[44:47]"
                    for k in range(4):
                        E(f"buffer_load_dwordx4 v3, {srd}, {so} offen offset:{k*896} {SP} lds")
                E("s_mov_b32 exec_hi, -1")
            for u in range(4):
                d = 48 + 4 * u
                E(f"v_cndmask_b32 v{32+u}, v{d}, v{d+1}, s[62:63]")
            for u in range(4):
                d = 48 + 4 * u
                E(f"v_cndmask_b32 v{32+u}, v{32+u}, v{d+2}, s[64:65]")
            for u in range(4):
                d = 48 + 4 * u
                E(f"v_cndmask_b32 v{32+u}, v{32+u}, v{d+3}, s[66:67]")
            for u in range(4):
                E(f"v_add_f32_dpp v{32+u}, v{32+u}, v{32+u} quad_perm:[1,0,3,2] row_mask:0xf bank_mask:0xf")
            for u in range(4):
                E(f"v_add_f32_dpp v{32+u}, v{32+u}, v{32+u} quad_perm:[2,3,0,1] row_mask:0xf bank_mask:0xf")
            E(f"""
            v_cndmask_b32 v{24+n}, v32, v33, s[62:63]
            v_cndmask_b32 v{24+n}, v{24+n}, v34, s[64:65]
            v_cndmask_b32 v{24+n}, v{24+n}, v35, s[66:67]
            """)
        stamp(4)
        E("""
        v_max3_f32 v32, v24, v25, v26
        v_max3_f32 v33, v27, v28, v29
        v_max3_f32 v32, v32, v30, v31
        v_max_f32 v32, v32, v33
        """)
        for r in (8, 4, 2, 1):
            E(f"v_max_f32_dpp v32, v32, v32 row_ror:{r} row_mask:0xf bank_mask:0xf")
        E("v_mul_f32 v36, s81, v32")
        for i in range(8):
            E(f"v_fma_f32 v{24+i}, v{24+i}, s81, -v36")
        for i in range(8):
            E(f"v_exp_f32 v{24+i}, v{24+i}")
        E("""
        v_add_f32 v32, v24, v25
        v_add_f32 v33, v26, v27
        v_add_f32 v34, v28, v29
        v_add_f32 v35, v30, v31
        v_add_f32 v32, v32, v33
        v_add_f32 v34, v34, v35
        v_add_f32 v37, v32, v34
        """)
        for i in range(0, 8, 2):
            E(f"v_cvt_pk_bf16_f32 v{40+i//2}, v{24+i}, v{25+i}")
        for r in (8, 4, 2, 1):
            E(f"v_add_f32_dpp v37, v37, v37 row_ror:{r} row_mask:0xf bank_mask:0xf")
        for i in range(0, 8, 2):
            E(f"ds_write_b16 v5, v{40+i//2} offset:{i*32}")
            E(f"ds_write_b16_d16_hi v5, v{40+i//2} offset:{(i+1)*32}")
        E(f"""
        s_lshl_b32 s73, s52, 3
        s_add_u32 s73, s73, {MLW_OFF}
        v_lshl_add_u32 v14, v0, 2, s73
        s_mov_b32 exec_lo, 0x00010001
        s_mov_b32 exec_hi, 0
        ds_write_b64 v14, v[36:37]
        s_mov_b64 exec, -1
        s_waitcnt lgkmcnt(0)
        ds_read_b128 v[12:15], v6
        """)
        ml_ids = None
        for n in range(8, 16):
            i = n - 8
            r = slot(n)
            pa = 12 if (i % 2 == 0) else 44
            pn = 44 if (i % 2 == 0) else 12
            setp(n)
            E.wait_vm(ids_[n])
            E("s_waitcnt lgkmcnt(0)")
            for half in range(2):
                for ii in range(2):
                    sreg = half * 2 + ii
                    for e in range(2):
                        dloc = ii * 2 + e
                        for jp in range(4):
                            tq = 48 + dloc * 4 + jp
                            s1 = r + (2 * jp) * 4 + sreg
                            s0 = r + (2 * jp + 1) * 4 + sreg
                            if not cfg.get("nocomp", 0): E(f"v_perm_b32 v{tq}, v{s0}, v{s1}, s{68+e}")
                if half == 1 and sched(n) is not None:
                    ids_[sched(n)] = issue(sched(n))
                for dloc in range(4):
                    d = half * 4 + dloc
                    a = 16 + 4 * d
                    c = "0" if i == 0 else f"v[{a}:{a+3}]"
                    if not cfg.get("nocomp", 0): E(f"v_mfma_f32_16x16x32_bf16 v[{a}:{a+3}], v[12:15], v[{48+dloc*4}:{51+dloc*4}], {c}")
            if i < 7:
                E(f"ds_read_b128 v[12:15], v6 offset:{(i+1)*32}")
        if cfg.get("dup", 0):
            for rep in range(cfg.get("dup")):
                for n in range(8):
                    if n >= 4 or rep: E("s_waitcnt vmcnt(24)")
                    SLs = SL[n]; SL[n] = n % 4
                    issue(n)
                    SL[n] = SLs
            E("s_waitcnt vmcnt(0)")
        stamp(5)
        E(f"""
        s_lshl_b32 s73, s52, 11
        s_add_u32 s73, s73, {MRG_OFF}
        v_lshlrev_b32 v14, 5, v0
        v_add_u32 v14, s73, v14
        """)
        for d in range(8):
            E(f"v_mov_b32 v{48+d}, v{16+4*d}")
        E("""
        ds_write_b128 v14, v[48:51]
        ds_write_b128 v14, v[52:55] offset:16
        s_waitcnt vmcnt(0) lgkmcnt(0)
        s_barrier
        """)

    main(False)
    stamp(6)
    if cfg.get("notail", 0): E.branch("s_branch L_end")
    E("s_cmp_eq_u32 s52, 7")
    E.branch("s_cbranch_scc1 L_w7tail")
    E("s_cmp_ge_u32 s52, 4")
    E.branch("s_cbranch_scc1 L_proj")
    E(f"""
    s_lshl_b32 s73, s52, 9
    s_add_u32 s73, s73, {MRG_OFF}
    v_lshl_add_u32 v14, v0, 3, s73
    s_lshr_b32 s74, s52, 1
    s_lshl_b32 s75, s74, 6
    s_add_u32 s75, s75, {MLW_OFF}
    v_mov_b32 v15, s75
    ds_read_b128 v[64:67], v15
    ds_read_b128 v[68:71], v15 offset:16
    ds_read_b128 v[72:75], v15 offset:32
    ds_read_b128 v[76:79], v15 offset:48
    """)
    for w in range(8):
        E(f"ds_read_b64 v[{24+2*w}:{25+2*w}], v14 offset:{w*2048}")
    E(f"""
    s_and_b32 s75, s52, 1
    s_lshl_b32 s75, s75, 14
    v_lshlrev_b32 v14, 12, v11
    v_lshl_add_u32 v14, v10, 4, v14
    s_lshl_b32 s73, s57, 15
    s_add_u32 s73, s73, s75
    s_lshl_b32 s75, s55, 9
    s_add_u32 s73, s73, s75
    s_lshl_b32 s75, s74, 8
    s_add_u32 s73, s73, s75
    s_add_u32 s73, s73, {H1BOX}
    v_mov_b32 v42, v8
    v_mov_b32 v43, v9
    v_mov_b32 v46, v8
    v_mov_b32 v47, v9
    s_lshl_b32 s82, s57, 11
    s_lshl_b32 s75, s55, 5
    s_add_u32 s82, s82, s75
    s_lshl_b32 s75, s74, 4
    s_add_u32 s82, s82, s75
    s_add_u32 s82, s82, {H1ML}
    v_lshlrev_b32 v15, 8, v0
    s_waitcnt lgkmcnt(8)
    v_max3_f32 v44, v64, v66, v68
    v_max3_f32 v45, v70, v72, v74
    v_max3_f32 v44, v44, v76, v78
    v_max_f32 v44, v44, v45
    """)
    for w in range(8):
        E(f"v_sub_f32 v{16+w}, v{64+2*w}, v44")
    for w in range(8):
        E(f"v_exp_f32 v{16+w}, v{16+w}")
    E("""
    s_waitcnt lgkmcnt(0)
    v_mul_f32 v40, v16, v24
    v_mul_f32 v41, v16, v25
    v_mul_f32 v45, v16, v65
    """)
    for w in range(1, 8):
        E(f"v_fmac_f32 v40, v{16+w}, v{24+2*w}")
        E(f"v_fmac_f32 v41, v{16+w}, v{25+2*w}")
        E(f"v_fmac_f32 v45, v{16+w}, v{65+2*w}")
    H1ST = cfg.get("h1st", "sc1").replace("+", " ")
    def h1_stores(pol):
        E(f"buffer_store_dwordx4 v[40:43], v14, s[36:39], s73 offen {pol}")
        E(f"""
        s_mov_b64 exec, 0xff
        buffer_store_dwordx4 v[44:47], v15, s[36:39], s82 offen {pol}
        s_mov_b64 exec, -1
        """)
    if cfg.get("xf", 0):
        E("s_cmp_eq_u32 s85, 2")
        E.branch("s_cbranch_scc1 L_h1loc")
        h1_stores(H1ST)
        E.branch("s_branch L_h1done")
        E.label("L_h1loc")
        h1_stores("")
        E.label("L_h1done")
    else:
        h1_stores(H1ST)
    stamp(12)
    E.label("L_proj")
    E(f"""
    v_lshrrev_b32 v12, 2, v10
    v_and_b32 v13, 3, v10
    v_lshl_add_u32 v14, v11, 3, v12
    v_mul_u32_u24 v14, 896, v14
    v_lshl_add_u32 v14, v13, 3, v14
    s_lshl_b32 s73, s52, 7
    v_add_u32 v14, s73, v14
    v_lshlrev_b32 v15, 4, v11
    v_add_u32 v15, {COEF_OFF}, v15
    ds_read_b128 v[120:123], v15 offset:128
    """)
    cnt = 1
    for ks in (2, 0, 1):
        for ct in range(4):
            q = 64 + (ks * 4 + ct) * 4
            E(f"ds_read_b64_tr_b16 v[{q}:{q+1}], v14 offset:{ks*28672+ct*32}")
            E(f"ds_read_b64_tr_b16 v[{q+2}:{q+3}], v14 offset:{ks*28672+ct*32+3584}")
        E("s_waitcnt lgkmcnt(0)")
    for ct in range(4):
        q = 64 + (2 * 4 + ct) * 4
        E(f"v_mfma_f32_16x16x32_bf16 v[{128+4*ct}:{131+4*ct}], v[{q}:{q+3}], v[120:123], 0")
    E(f"""
    v_lshrrev_b32 v12, 1, v11
    v_lshlrev_b32 v12, 12, v12
    v_and_b32 v13, 1, v11
    v_lshl_add_u32 v12, v13, 5, v12
    v_lshl_add_u32 v12, v10, 4, v12
    s_mul_i32 s73, s54, {56*4096}
    s_lshl_b32 s74, s58, 6
    s_add_u32 s73, s73, s74
    s_lshl_b32 s74, s52, 15
    s_add_u32 s73, s73, s74
    s_add_u32 s73, s73, {H2BOX}
    s_mov_b32 s76, 0x00020002
    s_mov_b32 s77, 0x00020002
    """)
    for ct in range(4):
        E(f"v_mov_b32 v{146+4*ct}, v8")
        E(f"v_mov_b32 v{147+4*ct}, v9")
    E("s_barrier")
    stamp(8)
    E("""
    ds_read_b128 v[112:115], v15
    ds_read_b128 v[116:119], v15 offset:64
    s_waitcnt lgkmcnt(0)
    """)
    for ks in range(2):
        for ct in range(4):
            q = 64 + (ks * 4 + ct) * 4
            E(f"v_mfma_f32_16x16x32_bf16 v[{128+4*ct}:{131+4*ct}], v[{q}:{q+3}], v[{112+4*ks}:{115+4*ks}], v[{128+4*ct}:{131+4*ct}]")
    for ct in range(4):
        E(f"v_cndmask_b32 v{144+4*ct}, v{128+4*ct}, v{130+4*ct}, s[76:77]")
        E(f"v_cndmask_b32 v{145+4*ct}, v{129+4*ct}, v{131+4*ct}, s[76:77]")
    E("""
    s_mov_b32 exec_lo, 0x00030003
    s_mov_b32 exec_hi, 0x00030003
    """)
    for ct in range(4):
        E(f"s_add_u32 s74, s73, {ct*8192}")
        E(f"buffer_store_dwordx4 v[{144+4*ct}:{147+4*ct}], v12, s[36:39], s74 offen {cfg.get('h2st', 'sc1').replace('+', ' ')}")
    E.branch("s_branch L_end")

    E.label("L_w7tail")
    E(f"""
    s_lshl_b32 s73, s57, 3
    s_add_u32 s73, s73, s55
    s_lshl_b32 s82, s73, 8
    s_add_u32 s82, s82, {H1ML}
    s_lshl_b32 s73, s73, 12
    s_add_u32 s73, s73, {H1BOX}
    v_mov_b32 v15, {G_OFF}
    ds_read_b32 v40, v15
    v_and_b32 v14, 31, v0
    v_lshlrev_b32 v14, 2, v14
    v_add_u32 v14, {COEF_OFF}, v14
    v_lshlrev_b32 v13, 4, v11
    s_mov_b32 s80, 0
    """)
    def h1_load(i, r):
        H1LD = cfg.get("h1ld", "sc1").replace("+", " ")
        if i < 4: return f"buffer_load_dwordx4 v[{r}:{r+3}], v3, s[36:39], s73 offen offset:{i*1024} {H1LD}"
        return f"buffer_load_dwordx4 v[{r}:{r+3}], v13, s[36:39], s82 offen offset:{(i-4)*64} {H1LD}"
    poll_pipe("L_h1", 8, h1_load, None, 128, 64, nsets=NPS, sleep=cfg.get("psl", 4))
    stamp(7)
    if PROF:
        E("v_writelane_b32 v7, s80, 13")
    E(f"""
    v_max3_f32 v96, v80, v84, v88
    v_max_f32 v96, v96, v92
    v_mov_b32 v97, v96
    v_permlane32_swap_b32 v96, v97
    v_max_f32 v96, v96, v97
    v_sub_f32 v80, v80, v96
    v_sub_f32 v84, v84, v96
    v_sub_f32 v88, v88, v96
    v_sub_f32 v92, v92, v96
    v_exp_f32 v80, v80
    v_exp_f32 v84, v84
    v_exp_f32 v88, v88
    v_exp_f32 v92, v92
    v_mul_f32 v98, v80, v81
    v_mul_f32 v64, v80, v64
    v_mul_f32 v65, v80, v65
    v_fmac_f32 v98, v84, v85
    v_fmac_f32 v64, v84, v68
    v_fmac_f32 v65, v84, v69
    v_fmac_f32 v98, v88, v89
    v_fmac_f32 v64, v88, v72
    v_fmac_f32 v65, v88, v73
    v_fmac_f32 v98, v92, v93
    v_fmac_f32 v64, v92, v76
    v_fmac_f32 v65, v92, v77
    v_mov_b32 v99, v98
    v_mov_b32 v66, v64
    v_mov_b32 v67, v65
    v_permlane32_swap_b32 v98, v99
    v_permlane32_swap_b32 v64, v66
    v_permlane32_swap_b32 v65, v67
    v_add_f32 v98, v98, v99
    v_add_f32 v64, v64, v66
    v_add_f32 v65, v65, v67
    v_rcp_f32 v98, v98
    s_waitcnt lgkmcnt(0)
    v_mul_f32 v98, v40, v98
    v_mul_f32 v64, v98, v64
    v_mul_f32 v65, v98, v65
    v_cvt_pk_bf16_f32 v64, v64, v65
    ds_write_b32 v14, v64
    s_waitcnt lgkmcnt(0)
    s_barrier
    s_cmp_ge_u32 s58, 56
    """)
    E.branch("s_cbranch_scc1 L_end")
    E(f"""
    s_mul_i32 s73, s54, 56
    s_add_u32 s73, s73, s58
    s_lshl_b32 s73, s73, 12
    s_add_u32 s73, s73, {H2BOX}
    s_mov_b32 s48, s22
    s_mov_b32 s49, s23
    s_mov_b32 s50, 3584
    s_mul_i32 s74, s54, 896
    s_lshl_b32 s75, s58, 4
    s_add_u32 s74, s74, s75
    v_lshlrev_b32 v14, 2, v0
    s_mov_b32 s80, 0
    """)
    poll_pipe("L_h2", 4, lambda i, r: f"buffer_load_dwordx4 v[{r}:{r+3}], v3, s[36:39], s73 offen offset:{i*1024} {cfg.get('h2ld', 'sc1').replace('+', ' ')}",
              None, 128, 64, nsets=NPS, sleep=cfg.get("psl", 4))
    E("""
    v_add_f32 v64, v64, v68
    v_add_f32 v65, v65, v69
    v_add_f32 v72, v72, v76
    v_add_f32 v73, v73, v77
    v_add_f32 v64, v64, v72
    v_add_f32 v65, v65, v73
    """)
    stamp(9)
    if PROF:
        E("v_writelane_b32 v7, s80, 14")
    for rr in (4, 8):
        E(f"v_add_f32_dpp v64, v64, v64 row_ror:{rr} row_mask:0xf bank_mask:0xf")
        E(f"v_add_f32_dpp v65, v65, v65 row_ror:{rr} row_mask:0xf bank_mask:0xf")
    E(f"""
    v_mov_b32 v66, v64
    v_mov_b32 v67, v65
    v_permlane16_swap_b32 v64, v66
    v_permlane16_swap_b32 v65, v67
    v_add_f32 v64, v64, v66
    v_add_f32 v65, v65, v67
    v_mov_b32 v66, v64
    v_mov_b32 v67, v65
    v_permlane32_swap_b32 v64, v66
    v_permlane32_swap_b32 v65, v67
    v_add_f32 v64, v64, v66
    v_add_f32 v65, v65, v67
    v_cvt_pk_bf16_f32 v64, v64, v65
    s_mov_b64 exec, 15
    buffer_store_dword v64, v14, s[48:51], s74 offen
    s_cmp_lg_u32 s2, 0
    """)
    E.branch("s_cbranch_scc1 L_end")
    E("""
    s_mov_b64 exec, 1
    buffer_store_dwordx2 v[8:9], v14, s[36:39], 0 offen sc1
    """)
    E.label("L_end")
    if PROF:
        stamp(10)
        E(f"""
        s_mov_b64 exec, 0xffff
        s_lshl_b32 s73, s2, 3
        s_add_u32 s73, s73, s52
        s_lshl_b32 s73, s73, 6
        s_add_u32 s73, s73, 0x300000
        v_lshlrev_b32 v14, 2, v0
        buffer_store_dword v7, v14, s[36:39], s73 offen
        """)
        if PROF == 2:
            E("""
            v_readlane_b32 s73, v7, 0
            s_not_b32 s73, s73
            v_writelane_b32 v7, s73, 0
            s_mov_b32 s48, s24
            s_mov_b32 s49, s25
            s_mov_b32 s50, 64
            s_mov_b32 s51, 0x20000
            s_cmp_lg_u32 s52, 7
            """)
            E.branch("s_cbranch_scc1 L_exit")
            E("""
            s_mov_b64 exec, 0x6e1
            buffer_atomic_umax v7, v14, s[48:51], 0 offen
            """)
    E.label("L_exit")
    E.raw("    s_endpgm")
    E.raw(f""".section .rodata,"a"
.p2align 6
.amdhsa_kernel {KNAME}
  .amdhsa_next_free_vgpr 256
  .amdhsa_next_free_sgpr 102
  .amdhsa_accum_offset 256
  .amdhsa_group_segment_fixed_size 0
  .amdhsa_kernarg_size 96
  .amdhsa_user_sgpr_count 2
  .amdhsa_user_sgpr_kernarg_segment_ptr 1
  .amdhsa_system_sgpr_workgroup_id_x 1
.end_amdhsa_kernel""")
    return E.text()

if __name__ == "__main__":
    out = sys.argv[1] if len(sys.argv) > 1 else "k1.s"
    cfg = {}
    for a in sys.argv[2:]:
        k, v = a.split("=")
        cfg[k] = int(v) if v.lstrip("-").isdigit() else v
    open(out, "w").write(gen(cfg))
```

```python
import sys, math
sys.path.insert(0, "gen")
from emit import Emit

KNAME = "gated_mix__gqa_block_cached__dense_activation_relu__decode_kernel"

W_OFF = 0
WQ_OFF = 86016
W1_OFF = 100352
MRG_OFF = 129024
P_OFF = 145408
Q_OFF = 151552
COEF_OFF = 152576
FAC_OFF = 152832
TAG_OFF = 152896
G_OFF = 152904
MLW_OFF = 152960
FLAG_OFF = 153088
XS_OFF = 153152
LDS_BYTES = 154112
QBOX = 0x1000
MLBOX = 0x20000
H1BOX = 0x40000
H2BOX = 0x140000
XBOX = 0x18000
H1ML = 0x20000
WS_BYTES = 0x400000

NS = 6
RING = 64
SPIN = 400000


def gen(cfg):
    E = Emit()
    POL = cfg.get("pol", "nt")
    PROF = cfg.get("prof", 0)
    def stamp(k):
        if PROF:
            E(f"""
            s_memrealtime s[98:99]
            s_waitcnt lgkmcnt(0)
            v_writelane_b32 v7, s98, {k}
            """)
    hdr = open("gated_mix__gqa_block_cached__dense_activation_relu__decode.s.ref").read().split("\n")
    for l in hdr:
        if l.startswith("; @launch"): break
        if l.startswith(";"): E.raw(l)
    E.raw(f"; @launch grid=(256,1,1) block=(512,1,1) lds={LDS_BYTES}")
    E.raw('.amdgcn_target "amdgcn-amd-amdhsa--gfx950"')
    E.raw(".text")
    E.raw(f".globl {KNAME}\n.p2align 8\n.type {KNAME},@function\n{KNAME}:")
    E("s_cmp_ge_u32 s2, 256")
    E.branch("s_cbranch_scc1 L_exit")
    if PROF:
        E("v_mov_b32 v7, 0")
    stamp(0)
    E("""
    s_load_dwordx16 s[4:19], s[0:1], 0
    s_load_dwordx8 s[20:27], s[0:1], 64
    v_lshrrev_b32 v1, 6, v0
    v_and_b32 v0, 63, v0
    v_readfirstlane_b32 s52, v1
    """ + ("""
    s_and_b32 s55, s2, 7
    s_lshr_b32 s54, s2, 6
    s_bfe_u32 s53, s2, 0x30003
    s_lshl_b32 s56, s55, 2
    s_add_u32 s56, s56, s54
    """ if cfg.get("nox", 0) == 1 else """
    s_bfe_u32 s53, s2, 0x20001
    s_lshl_b32 s53, s53, 1
    s_bfe_u32 s55, s2, 0x10003
    s_add_u32 s53, s53, s55
    s_lshr_b32 s54, s2, 6
    s_bfe_u32 s55, s2, 0x20004
    s_lshl_b32 s55, s55, 1
    s_and_b32 s56, s2, 1
    s_add_u32 s55, s55, s56
    s_lshl_b32 s56, s55, 2
    s_add_u32 s56, s56, s54
    """ if cfg.get("nox", 0) == 2 else """
    s_and_b32 s53, s2, 7
    s_lshr_b32 s54, s2, 6
    s_bfe_u32 s55, s2, 0x30003
    s_lshr_b32 s56, s2, 3
    """) + """
    s_lshl_b32 s57, s54, 3
    s_add_u32 s57, s57, s53
    s_lshl_b32 s58, s53, 3
    s_add_u32 s58, s58, s55
    v_and_b32 v10, 15, v0
    v_lshrrev_b32 v11, 4, v0
    v_lshrrev_b32 v12, 2, v10
    v_and_b32 v13, 3, v10
    v_lshlrev_b32 v1, 9, v12
    v_lshl_add_u32 v1, v11, 6, v1
    v_lshl_add_u32 v1, v13, 4, v1
    v_add_u32 v2, 0x1000, v1
    v_lshlrev_b32 v3, 4, v0
    v_add_u32 v4, 0x1000, v3
    s_lshl_b32 s59, s57, 22
    s_lshl_b32 s60, s55, 19
    s_add_u32 s59, s59, s60
    s_mul_i32 s60, s52, """ + str(cfg.get("ps", 8192)) + """
    s_add_u32 s59, s59, s60
    s_mov_b32 s62, 0x22222222
    s_mov_b32 s63, 0x22222222
    s_mov_b32 s64, 0x44444444
    s_mov_b32 s65, 0x44444444
    s_mov_b32 s66, 0x88888888
    s_mov_b32 s67, 0x88888888
    s_mov_b32 s68, 0x05040100
    s_mov_b32 s69, 0x07060302
    s_mov_b32 s30, 0x8000000
    s_mov_b32 s31, 0x20000
    s_mov_b32 s34, 0x8000000
    s_mov_b32 s35, 0x20000
    """)
    E(f"s_mov_b32 s38, {WS_BYTES}")
    E("""
    s_mov_b32 s39, 0x20000
    s_mov_b32 s43, 0x20000
    s_mov_b32 s47, 0x20000
    s_mov_b32 s51, 0x20000
    """ + (f"""
    s_cmp_gt_u32 s53, {cfg.get("exh")}
    s_cselect_b32 s91, 8, 0
    s_sub_u32 s91, s58, s91
    s_cmp_eq_u32 s53, {cfg.get("exh")}
    s_cselect_b32 s91, 56, s91
    """ if "exh" in cfg else """
    s_mov_b32 s91, s58
    """) + """
    s_min_u32 s72, s91, 55
    s_cmp_lt_u32 s91, 56
    s_cselect_b64 s[92:93], -1, 0
    """ + {0: "", 1: "s_lshl_b32 s84, s55, 16", 2: "s_lshl_b32 s84, s53, 16",
           3: "s_add_u32 s84, s55, s53\ns_lshl_b32 s84, s84, 16",
           4: "s_lshl_b32 s84, s54, 1\ns_add_u32 s84, s84, s55\ns_add_u32 s84, s84, s53\ns_lshl_b32 s84, s84, 16",
           5: "s_lshl_b32 s84, s54, 17"}[cfg.get("rot", 0)] + """
    v_mov_b32 v14, 153088
    v_mov_b32 v15, 0
    ds_write_b32 v14, v15
    ds_write_b32 v14, v15 offset:4
    s_waitcnt lgkmcnt(0)
    """ + ("s_barrier" if cfg.get("bpos", 0) == 0 else "") + """
    s_mov_b32 s28, s6
    s_mov_b32 s29, s7
    s_mov_b32 s32, s8
    s_mov_b32 s33, s9
    s_mov_b32 s36, s26
    s_mov_b32 s37, s27
    s_mov_b32 s44, s4
    s_mov_b32 s45, s5
    s_mov_b32 s46, 3584
    s_mov_b32 s40, s10
    s_mov_b32 s41, s11
    s_mov_b32 s42, 3670016
    s_mov_b32 s48, s20
    s_mov_b32 s49, s21
    s_mov_b32 s50, 896
    """)
    E(f"""
    s_mul_i32 s73, s52, 768
    s_add_u32 s73, s73, {P_OFF}
    v_and_b32 v5, 1, v11
    v_lshlrev_b32 v5, 8, v5
    v_and_b32 v14, 1, v12
    v_lshl_add_u32 v5, v14, 4, v5
    v_lshl_add_u32 v5, v13, 2, v5
    v_lshrrev_b32 v14, 1, v12
    v_lshl_add_u32 v5, v14, 1, v5
    v_add_u32 v5, s73, v5
    v_lshrrev_b32 v6, 3, v10
    v_lshlrev_b32 v6, 8, v6
    v_xor_b32 v14, v12, v11
    v_and_b32 v14, 1, v14
    v_cmp_eq_u32 vcc, 1, v14
    v_mov_b32 v15, 0x200
    v_cndmask_b32 v6, v6, v15, vcc
    v_lshrrev_b32 v14, 1, v11
    v_lshl_add_u32 v6, v14, 4, v6
    v_add_u32 v6, s73, v6
    v_lshl_add_u32 v14, v0, 2, s73
    v_mov_b32 v15, 0
    ds_write_b32 v14, v15 offset:512
    """)
    if not cfg.get("nos0", 0):
        E("s_cmp_eq_u32 s52, 0")
        E.branch("s_cbranch_scc1 L_w0")

    def poll_pipe(lbl, nload, mk_load, tagregs, base, dst, nsets=2, sleep=0):
        sz = 4 * nload
        def issue_set(k):
            for i in range(nload):
                E(mk_load(i, base + k * sz + 4 * i))
        sv = E.vm
        E("s_mov_b32 s80, 0")
        for k in range(nsets - 1):
            issue_set(k)
            if sleep: E(f"s_sleep {sleep}")
        E.label(lbl)
        for k in range(nsets):
            issue_set((k + nsets - 1) % nsets)
            E(f"s_waitcnt vmcnt({(nsets - 1) * nload})")
            b = base + k * sz
            E(f"v_cmp_eq_u64 s[76:77], v[{b+2}:{b+3}], v[8:9]")
            for i in range(1, nload):
                E(f"v_cmp_eq_u64 s[78:79], v[{b+4*i+2}:{b+4*i+3}], v[8:9]")
                E("s_and_b64 s[76:77], s[76:77], s[78:79]")
            E("s_cmp_eq_u64 s[76:77], exec")
            E.branch(f"s_cbranch_scc1 {lbl}_g{k}")
        if cfg.get("lsl", 0): E(f"s_sleep {cfg.get('lsl')}")
        E("s_add_u32 s80, s80, 1")
        E(f"s_cmp_lt_u32 s80, {SPIN // nsets}")
        E.branch(f"s_cbranch_scc1 {lbl}")
        for k in reversed(range(nsets)):
            E.label(f"{lbl}_g{k}")
            b = base + k * sz
            if b != dst:
                for i in range(nload):
                    E(f"v_mov_b32 v{dst+4*i}, v{b+4*i}")
                    E(f"v_mov_b32 v{dst+4*i+1}, v{b+4*i+1}")
            if k: E.branch(f"s_branch {lbl}_got")
        E.label(f"{lbl}_got")
        E.vm = sv

    OVF = cfg.get("ovf", 0)
    PL = cfg.get("pacel", 0)
    SL = {n: n % NS for n in range(16)}
    if OVF:
        SL = {n: n for n in range(6)}
        SL[6] = 5
        nxt = 7
        ACT = {}
        for st in range(16):
            if st == 5: ACT[st] = 6
            elif nxt < 16:
                ACT[st] = nxt; SL[nxt] = SL[st]; nxt += 1
    def slot(n): return RING + 32 * SL[n]
    def issue(n, lds=False, pl=0):
        r = slot(n)
        i = n & 7
        PS = cfg.get("ps", 8192)
        last = None
        cur = [None]
        def addr(goff):
            if PS <= 8192:
                p, w_ = goff // PS, goff % PS
                so = i * 65536 + p * PS * 8
            else:
                k = PS // 8192
                w_ = goff
                so = (i // k) * PS * 8 + (i % k) * 8192
            if cur[0] != so:
                if cfg.get("rot", 0):
                    E(f"s_add_u32 s61, s84, {so}")
                    E("s_and_b32 s61, s61, 0x7ffff")
                    E("s_add_u32 s61, s61, s59")
                else:
                    E(f"s_add_u32 s61, s59, {so}")
                cur[0] = so
            return w_ >= 4096, w_ % 4096
        if n < 8:
            for u in range(4):
                for t in range(2):
                    hi, off = addr(u * 2048)
                    off += t * 256
                    va = "v2" if hi else "v1"
                    q = r + (u * 2 + t) * 4
                    if pl: E(f"s_waitcnt vmcnt({pl-1})")
                    if lds:
                        j = u * 2 + t
                        E(f"s_add_u32 m0, s83, {W_OFF + (j // 3) * 28672 + (j % 3) * 1024 - off}")
                        last = E.ins(f"buffer_load_dwordx4 {va}, s[28:31], s61 offen offset:{off} {POL} lds")
                    else:
                        last = E.ins(f"buffer_load_dwordx4 v[{q}:{q+3}], {va}, s[28:31], s61 offen offset:{off} {POL}")
        else:
            for j in range(8):
                hi, off = addr(j * 1024)
                va = "v4" if hi else "v3"
                q = r + j * 4
                last = E.ins(f"buffer_load_dwordx4 v[{q}:{q+3}], {va}, s[32:35], s61 offen offset:{off} {cfg.get('polv', POL)}")
        return last

    def prologue(pace=0, bar=False):
        ids = {}
        for n in range(NS):
            if pace and n >= pace and not PL:
                E.wait_vm(ids[n - pace])
            ids[n] = issue(n, pl=(PL if pace else 0))
            if bar and n == cfg.get("bgr", 1) - 1: E("s_barrier")
        if OVF:
            E("s_mul_i32 s83, s52, 3584")
            if pace and not PL: E.wait_vm(ids[NS - pace])
            ids[6] = issue(6, lds=True, pl=(PL if pace else 0))
        return ids

    SP = cfg.get("spol", "nt")
    E("s_cmp_lg_u32 s52, 1" if not cfg.get("nos0", 0) else "s_cmp_lg_u32 s52, 100")
    E.branch("s_cbranch_scc1 L_pro")
    E(f"""
    s_mov_b32 s40, s16
    s_mov_b32 s41, s17
    s_mov_b32 s42, 1605632
    v_lshrrev_b32 v14, 2, v0
    v_mul_u32_u24 v14, 3584, v14
    v_and_b32 v15, 3, v0
    v_lshl_add_u32 v14, v15, 4, v14
    s_lshl_b32 s73, s72, 6
    s_mul_i32 s75, s54, 896
    buffer_load_dwordx4 v[56:59], v3, s[44:47], s75 offen {SP}
    buffer_load_dwordx4 v[60:63], v3, s[48:51], 0 offen {SP}
    s_mov_b32 m0, {XS_OFF}
    s_mov_b32 exec_hi, 0x00ffffff
    buffer_load_dwordx4 v3, s[44:47], s75 offen {SP} lds
    s_mov_b32 exec_hi, -1
    """)
    if cfg.get("skipx", 0): E("s_mov_b64 exec, s[92:93]")
    for i in range(28):
        E(f"s_mov_b32 m0, {W1_OFF + i * 1024}")
        if cfg.get("fakesc", 0):
            E(f"s_mul_i32 s74, s72, 28672")
            E(f"s_add_u32 s74, s74, {i * 1024}")
            E(f"buffer_load_dwordx4 v3, s[40:43], s74 offen {SP} lds")
        elif not cfg.get("noffn", 0):
            E(f"s_add_u32 s74, s73, {i * 57344}")
            E(f"buffer_load_dwordx4 v14, s[40:43], s74 offen {SP} lds")
    if cfg.get("skipx", 0): E("s_mov_b64 exec, -1")
    E.label("L_pro")
    if cfg.get("cpf", 0):
        E("s_cmp_lg_u32 s52, 2")
        E.branch("s_cbranch_scc1 L_nocpf")
        E.raw("    s_getpc_b64 s[74:75]")
        E.raw("L_pcref:")
        E.raw(f"    s_sub_u32 s74, s74, L_pcref-{KNAME}")
        E.raw("    s_subb_u32 s75, s75, 0")
        E("v_lshlrev_b32 v14, 6, v0")
        for i in range(cfg.get("cpf")):
            E.raw(f"    v_min_u32 v16, L_exit-{KNAME}, v14")
            E(f"global_load_dword v15, v16, s[74:75] offset:0")
            E.ins("v_add_u32 v14, 0x1000, v14")
        E.label("L_nocpf")
    if cfg.get("dprio", 0): E("s_setprio 3")
    base_vm = E.vm
    if cfg.get('bpos', 0) and cfg.get('bgr', 1) == 0: E('s_barrier')
    ids = prologue(cfg.get('pace', 0), bar=cfg.get('bpos', 0) > 0)
    vm_after_prologue = E.vm
    stamp(1)
    E("s_cmp_eq_u32 s52, 1" if not cfg.get("nos0", 0) else "s_cmp_eq_u32 s52, 100")
    E.branch("s_cbranch_scc1 L_w1")
    GW = cfg.get("gw", 0)
    if GW:
        E(f"s_cmp_eq_u32 s52, {GW}")
        E.branch("s_cbranch_scc1 L_gw")
    E.label("L_flag")
    if cfg.get("noflag", 0): E.branch("s_branch L_main")
    E(f"v_mov_b32 v14, {FLAG_OFF}")
    E.label("L_flag_loop")
    E("""
    ds_read_b32 v15, v14
    s_waitcnt lgkmcnt(0)
    v_readfirstlane_b32 s85, v15
    s_cmp_lg_u32 s85, 0
    """)
    E.branch("s_cbranch_scc1 L_main")
    E("s_sleep 2")
    E.branch("s_branch L_flag_loop")

    E.label("L_w0")
    E("s_setprio 3")
    stamp(13)
    E(f"""
    buffer_load_dwordx2 v[8:9], v15, s[36:39], 0 offen
    v_lshrrev_b32 v14, 1, v0
    v_lshlrev_b32 v14, 13, v14
    v_and_b32 v15, 1, v0
    v_lshl_add_u32 v14, v15, 4, v14
    s_lshl_b32 s73, s53, 10
    s_lshl_b32 s74, s56, 5
    s_add_u32 s73, s73, s74
    """)
    for i in range(14):
        E(f"s_mov_b32 m0, {WQ_OFF + i * 1024}")
        if cfg.get("fakesc", 0):
            E(f"s_mul_i32 s74, s2, 14336")
            E(f"s_add_u32 s74, s74, {i * 1024}")
            E(f"buffer_load_dwordx4 v3, s[40:43], s74 offen {SP} lds")
        else:
            E(f"s_add_u32 s74, s73, {i * 262144}")
            E(f"buffer_load_dwordx4 v14, s[40:43], s74 offen {SP} lds")
    if cfg.get("bpos", 0) == 1: E("s_barrier")
    E(f"""
    v_mul_u32_u24 v15, 896, v13
    v_lshl_add_u32 v15, v11, 4, v15
    """)
    for ks in range(14):
        E(f"buffer_load_dwordx4 v[{64+4*ks}:{67+4*ks}], v15, s[44:47], 0 offen offset:{ks*64} {SP}")
    if cfg.get("bpos", 0) == 2: E("s_barrier")
    E(f"""
    v_lshl_add_u32 v14, v11, 3, v12
    v_lshlrev_b32 v14, 5, v14
    v_lshl_add_u32 v14, v13, 3, v14
    v_add_u32 v14, {WQ_OFF}, v14
    s_waitcnt lgkmcnt(0)
    """)
    stamp(14)
    E(f"""
    s_waitcnt vmcnt(0)
    v_add_co_u32 v8, vcc, 1, v8
    v_addc_co_u32 v9, vcc, 0, v9, vcc
    """)
    if cfg.get("bpos", 0) == 3: E("s_barrier")
    stamp(1)
    for ks in range(14):
        E(f"ds_read_b64_tr_b16 v[{128+4*ks}:{129+4*ks}], v14 offset:{ks*1024}")
        E(f"ds_read_b64_tr_b16 v[{130+4*ks}:{131+4*ks}], v14 offset:{ks*1024+128}")
        if ks % 7 == 6:
            E("s_waitcnt lgkmcnt(0)")
    for ks in range(14):
        c = "0" if ks == 0 else "v[48:51]"
        E(f"v_mfma_f32_16x16x32_bf16 v[48:51], v[{128+4*ks}:{131+4*ks}], v[{64+4*ks}:{67+4*ks}], {c}")
    E(f"""
    v_lshlrev_b32 v14, 14, v10
    v_lshl_add_u32 v14, v11, 4, v14
    s_lshl_b32 s73, s53, 11
    s_lshl_b32 s74, s56, 6
    s_add_u32 s73, s73, s74
    s_add_u32 s73, s73, {QBOX}
    v_mov_b32 v54, v8
    v_mov_b32 v55, v9
    v_cvt_pk_bf16_f32 v52, v48, v49
    v_cvt_pk_bf16_f32 v53, v50, v51
    s_mov_b32 exec_lo, 0x000f000f
    s_mov_b32 exec_hi, 0x000f000f
    """ + ("""
    buffer_store_dwordx4 v[52:55], v14, s[36:39], s73 offen
    s_add_u32 s73, s73, 0x240000
    """ if cfg.get("qf", 0) else "") + f"""
    buffer_store_dwordx4 v[52:55], v14, s[36:39], s73 offen sc1
    s_mov_b64 exec, -1
    s_lshl_b32 s73, s57, 11
    s_add_u32 s73, s73, {QBOX}
    s_mov_b32 s80, 0
    """)
    XF = cfg.get("xf", 0)
    if XF:
        E(f"""
        s_getreg_b32 s86, hwreg(HW_REG_XCC_ID)
        s_and_b32 s86, s86, 15
        s_lshl_b32 s87, s57, 7
        s_add_u32 s87, s87, {XBOX}
        s_lshl_b32 s74, s55, 4
        s_add_u32 s74, s74, s87
        v_mov_b32 v48, s86
        v_mov_b32 v49, s86
        v_mov_b32 v50, v8
        v_mov_b32 v51, v9
        v_mov_b32 v15, 0
        s_mov_b64 exec, 1
        """ + ("""
        buffer_store_dwordx4 v[48:51], v15, s[36:39], s74 offen
        s_add_u32 s74, s74, 0x240000
        """ if cfg.get("qf", 0) else "") + f"""
        buffer_store_dwordx4 v[48:51], v15, s[36:39], s74 offen sc1
        s_mov_b64 exec, -1
        v_and_b32 v15, 7, v0
        v_lshlrev_b32 v15, 4, v15
        """)
    if cfg.get("bpos", 0) == 4: E("s_barrier")
    stamp(2)
    if PROF:
        E("s_waitcnt vmcnt(0)")
    stamp(15)
    NPS = cfg.get("nps", 2)
    if GW:
        assert XF and not cfg.get("qf", 0)
        E(f"""
        v_mov_b32 v15, {TAG_OFF}
        ds_write_b64 v15, v[8:9]
        v_mov_b32 v15, {FLAG_OFF}
        v_mov_b32 v14, 1
        s_waitcnt lgkmcnt(0)
        ds_write_b32 v15, v14 offset:4
        """)
        E.vm = base_vm
        ids2 = prologue(cfg.get("pace0", 0))
        assert ids2 == ids and E.vm == vm_after_prologue
        E.branch("s_branch L_flag")
        E.label("L_gw")
        E(f"""
        s_getreg_b32 s86, hwreg(HW_REG_XCC_ID)
        s_and_b32 s86, s86, 15
        s_lshl_b32 s87, s57, 7
        s_add_u32 s87, s87, {XBOX}
        s_lshl_b32 s73, s57, 11
        s_add_u32 s73, s73, {QBOX}
        v_mov_b32 v14, {FLAG_OFF}
        """)
        E.label("L_gw_tag")
        E("""
        ds_read_b32 v15, v14 offset:4
        s_waitcnt lgkmcnt(0)
        v_readfirstlane_b32 s85, v15
        s_cmp_lg_u32 s85, 0
        """)
        E.branch("s_cbranch_scc1 L_gw_go")
        E("s_sleep 1")
        E.branch("s_branch L_gw_tag")
        E.label("L_gw_go")
        E(f"""
        v_mov_b32 v15, {TAG_OFF}
        ds_read_b64 v[8:9], v15
        v_and_b32 v15, 7, v0
        v_lshlrev_b32 v15, 4, v15
        s_waitcnt lgkmcnt(0)
        """)
        QD = 48
    else:
        QD = 56
    def q_load(i, r):
        if i < 2: return f"buffer_load_dwordx4 v[{r}:{r+3}], v3, s[36:39], s73 offen offset:{i*1024} sc1"
        return f"buffer_load_dwordx4 v[{r}:{r+3}], v15, s[36:39], s87 offen sc1"
    if cfg.get("qf", 0):
        assert XF
        sv = E.vm
        E("""
        s_mov_b32 s80, 0
        s_add_u32 s88, s73, 0x240000
        s_add_u32 s89, s87, 0x240000
        """)
        def chk(lbl):
            E("""
            s_waitcnt vmcnt(0)
            v_cmp_eq_u64 s[76:77], v[58:59], v[8:9]
            v_cmp_eq_u64 s[78:79], v[62:63], v[8:9]
            s_and_b64 s[76:77], s[76:77], s[78:79]
            v_cmp_eq_u64 s[78:79], v[66:67], v[8:9]
            s_and_b64 s[76:77], s[76:77], s[78:79]
            s_cmp_eq_u64 s[76:77], exec
            """)
            E.branch(f"s_cbranch_scc1 {lbl}")
        E.label("L_w0_poll")
        for k in range(cfg.get("qf")):
            E("""
            buffer_load_dwordx4 v[56:59], v3, s[36:39], s73 offen sc1
            buffer_load_dwordx4 v[60:63], v3, s[36:39], s73 offen offset:1024 sc1
            buffer_load_dwordx4 v[64:67], v15, s[36:39], s87 offen sc1
            """)
            chk("L_w0_poll_got")
        E("""
        buffer_load_dwordx4 v[56:59], v3, s[36:39], s88 offen sc1
        buffer_load_dwordx4 v[60:63], v3, s[36:39], s88 offen offset:1024 sc1
        buffer_load_dwordx4 v[64:67], v15, s[36:39], s89 offen sc1
        """)
        chk("L_w0_poll_got")
        E("s_add_u32 s80, s80, 1")
        E(f"s_cmp_lt_u32 s80, {SPIN // 4}")
        E.branch("s_cbranch_scc1 L_w0_poll")
        E.label("L_w0_poll_got")
        E.vm = sv
    else:
        poll_pipe("L_w0_poll", 3 if XF else 2, q_load, None, 48 if GW else 200, QD, nsets=1 if GW else NPS, sleep=cfg.get("psl", 4))
    if XF:
        E(f"""
        v_cmp_eq_u32 s[76:77], s86, v{QD+8}
        s_cmp_eq_u64 s[76:77], exec
        s_cselect_b32 s85, 2, 1
        """)
    else:
        E("s_mov_b32 s85, 1")
    stamp(11)
    if PROF:
        E("v_writelane_b32 v7, s80, 12")
    E(f"""
    v_lshlrev_b32 v14, 3, v0
    v_add_u32 v14, {Q_OFF}, v14
    ds_write_b64 v14, v[{QD}:{QD+1}]
    ds_write_b64 v14, v[{QD+4}:{QD+5}] offset:512
    v_mov_b32 v15, {TAG_OFF}
    ds_write_b64 v15, v[8:9]
    v_mov_b32 v15, {FLAG_OFF}
    v_mov_b32 v14, s85
    s_waitcnt lgkmcnt(0)
    ds_write_b32 v15, v14
    """)
    if not cfg.get("dprio", 0): E("s_setprio 0")
    if not GW:
        E.vm = base_vm
        ids2 = prologue()
        assert ids2 == ids and E.vm == vm_after_prologue
    E.branch("s_branch L_main")

    E.label("L_w1")
    E(f"""
    v_lshl_add_u32 v14, v11, 3, v12
    v_lshlrev_b32 v14, 6, v14
    v_lshl_add_u32 v14, v13, 3, v14
    v_add_u32 v14, {W1_OFF}, v14
    v_lshlrev_b32 v15, 4, v11
    v_add_u32 v15, {XS_OFF}, v15
    s_waitcnt vmcnt({8*(NS+OVF)})
    """)
    def ffn_rd(ks):
        xb = 16 + 4 * (ks & 1)
        tb = 24 + 8 * (ks & 1)
        E(f"ds_read_b128 v[{xb}:{xb+3}], v15 offset:{ks*64}")
        for ct in range(2):
            q = tb + 4 * ct
            E(f"ds_read_b64_tr_b16 v[{q}:{q+1}], v14 offset:{ks*2048+ct*32}")
            E(f"ds_read_b64_tr_b16 v[{q+2}:{q+3}], v14 offset:{ks*2048+ct*32+256}")
    ffn_rd(0)
    E("s_mov_b32 s74, 0xffff0000")
    E("v_mov_b32 v40, 0")
    for i in range(4):
        E(f"""
        v_lshlrev_b32 v41, 16, v{56+i}
        v_lshlrev_b32 v42, 16, v{60+i}
        v_fmac_f32 v40, v41, v42
        v_and_b32 v41, s74, v{56+i}
        v_and_b32 v42, s74, v{60+i}
        v_fmac_f32 v40, v41, v42
        """)
    E("""
    v_cmp_gt_u32 vcc, 56, v0
    v_cndmask_b32 v40, 0, v40, vcc
    """)
    for ks in range(14):
        if ks + 1 < 14:
            ffn_rd(ks + 1)
            E("s_waitcnt lgkmcnt(5)")
        else:
            E("s_waitcnt lgkmcnt(0)")
        xb = 16 + 4 * (ks & 1)
        tb = 24 + 8 * (ks & 1)
        for ct in range(2):
            d = 48 + ct * 4
            c = "0" if ks == 0 else f"v[{d}:{d+3}]"
            E(f"v_mfma_f32_16x16x32_bf16 v[{d}:{d+3}], v[{tb+4*ct}:{tb+4*ct+3}], v[{xb}:{xb+3}], {c}")
    for r in (8, 4, 2, 1):
        E(f"v_add_f32_dpp v40, v40, v40 row_ror:{r} row_mask:0xf bank_mask:0xf")
    E("""
    v_mov_b32 v41, v40
    v_permlane16_swap_b32 v40, v41
    v_add_f32 v40, v40, v41
    v_mov_b32 v41, v40
    v_permlane32_swap_b32 v40, v41
    v_add_f32 v40, v40, v41
    v_mul_f32 v40, 0xbfb8aa3b, v40
    v_exp_f32 v40, v40
    v_add_f32 v40, 1.0, v40
    v_rcp_f32 v40, v40
    v_sub_f32 v41, 1.0, v40
    s_cmp_lt_u32 s91, 56
    s_cselect_b64 s[76:77], -1, 0
    """)
    E(f"""
    v_mov_b32 v15, {G_OFF}
    ds_write_b32 v15, v40
    """)
    for r in range(8):
        E(f"""
        v_max_f32 v{48+r}, 0, v{48+r}
        v_mul_f32 v{48+r}, v41, v{48+r}
        v_cndmask_b32 v{48+r}, 0, v{48+r}, s[76:77]
        """)
    E(f"""
    v_cvt_pk_bf16_f32 v56, v48, v49
    v_cvt_pk_bf16_f32 v57, v50, v51
    v_cvt_pk_bf16_f32 v58, v52, v53
    v_cvt_pk_bf16_f32 v59, v54, v55
    v_lshlrev_b32 v14, 3, v11
    v_add_u32 v14, {COEF_OFF + 128}, v14
    s_mov_b32 exec_lo, 0x00010001
    s_mov_b32 exec_hi, 0x00010001
    ds_write_b64 v14, v[56:57]
    ds_write_b64 v14, v[58:59] offset:32
    s_mov_b64 exec, -1
    """)
    stamp(2)
    E.branch("s_branch L_flag")

    LA = cfg.get("la", NS)
    def sched(n):
        if OVF: return ACT.get(n)
        if n < LA: k = NS + n
        elif n < NS: return None
        else: k = n + LA
        return k if k < 16 else None
    def main(w7):
        ids_ = dict(ids)
        E.vm = vm_after_prologue
        E.label("L_main")
        stamp(3)
        E(f"""
        v_mov_b32 v15, {TAG_OFF}
        ds_read_b64 v[8:9], v15
        v_bfe_u32 v14, v10, 2, 1
        v_lshlrev_b32 v14, 9, v14
        v_lshl_add_u32 v14, v11, 6, v14
        v_lshl_add_u32 v14, v13, 4, v14
        v_add_u32 v14, {Q_OFF}, v14
        ds_read_b128 v[16:19], v14
        ds_read_b128 v[20:23], v14 offset:256
        s_mov_b32 s40, s12
        s_mov_b32 s41, s13
        s_mov_b32 s42, 3670016
        s_mov_b32 s44, s18
        s_mov_b32 s45, s19
        s_mov_b32 s46, 1605632
        s_mov_b32 s81, 0x3db8aa3b
        s_sub_u32 s90, s52, 1
        s_cmp_lt_u32 s90, 3
        s_cselect_b32 s90, 1, 0
        s_waitcnt lgkmcnt(0)
        """)
        DP = cfg.get("dprio", 0)
        TH = [int(x) for x in str(cfg.get("dth", "4.8.12")).split(".")]
        DSH = cfg.get("dsh", 0)
        def setp(n):
            if not DP: return
            if not DSH:
                if n in TH: E(f"s_setprio {2 - TH.index(n)}")
                return
            po = 2 - TH.index(n) if n in TH else None
            py = 2 - TH.index(n - DSH) if (n - DSH) in TH else None
            if po is None and py is None: return
            lbl = f"L_sp{n}"
            E("s_cmp_eq_u32 s90, 1")
            if po is not None and py is not None:
                E.branch(f"s_cbranch_scc1 {lbl}o")
                E(f"s_setprio {py}")
                E.branch(f"s_branch {lbl}")
                E.label(f"{lbl}o")
                E(f"s_setprio {po}")
                E.label(lbl)
            elif po is not None:
                E.branch(f"s_cbranch_scc0 {lbl}")
                E(f"s_setprio {po}")
                E.label(lbl)
            else:
                E.branch(f"s_cbranch_scc1 {lbl}")
                E(f"s_setprio {py}")
                E.label(lbl)
        for n in range(8):
            r = slot(n)
            setp(n)
            if OVF and n == 6: E("s_waitcnt lgkmcnt(0)")
            else: E.wait_vm(ids_[n])
            for t in range(2):
                for u in range(4):
                    d = 48 + 4 * u
                    q = r + (u * 2 + t) * 4
                    c = "0" if t == 0 else f"v[{d}:{d+3}]"
                    if not cfg.get("nocomp", 0): E(f"v_mfma_f32_16x16x32_bf16 v[{d}:{d+3}], v[{16+4*t}:{19+4*t}], v[{q}:{q+3}], {c}")
            if OVF and n == 5:
                E.wait_vm(ids_[6])
                E("v_add_u32 v14, s83, v3")
                for j in range(8):
                    E(f"ds_read_b128 v[{r+4*j}:{r+4*j+3}], v14 offset:{W_OFF + (j // 3) * 28672 + (j % 3) * 1024}")
            elif sched(n) is not None:
                ids_[sched(n)] = issue(sched(n))
            if n == cfg.get("stage_at", 6 if OVF else 3) and not cfg.get("nostage", 0):
                E(f"""
                s_mul_i32 s73, s52, 3584
                s_lshl_b32 s74, s53, 9
                s_lshl_b32 s75, s55, 5
                s_add_u32 s74, s74, s75
                s_mul_i32 s74, s74, 896
                s_add_u32 s74, s74, s73
                s_add_u32 s75, s74, {256*896}
                s_mul_i32 s82, s72, {32*896}
                s_add_u32 s82, s82, s73
                s_mov_b32 exec_hi, 0x00ffffff
                """)
                for blk in range(3):
                    E(f"s_add_u32 m0, s73, {W_OFF + blk * 28672}")
                    if blk == 2 and cfg.get("skipx", 0): E("s_and_b64 exec, exec, s[92:93]")
                    so = ["s74", "s75", "s82"][blk]
                    srd = "s[40:43]" if blk < 2 else "s[44:47]"
                    for k in range(4):
                        E(f"buffer_load_dwordx4 v3, {srd}, {so} offen offset:{k*896} {SP} lds")
                E("s_mov_b64 exec, -1")
            for u in range(4):
                d = 48 + 4 * u
                E(f"v_cndmask_b32 v{32+u}, v{d}, v{d+1}, s[62:63]")
            for u in range(4):
                d = 48 + 4 * u
                E(f"v_cndmask_b32 v{32+u}, v{32+u}, v{d+2}, s[64:65]")
            for u in range(4):
                d = 48 + 4 * u
                E(f"v_cndmask_b32 v{32+u}, v{32+u}, v{d+3}, s[66:67]")
            for u in range(4):
                E(f"v_add_f32_dpp v{32+u}, v{32+u}, v{32+u} quad_perm:[1,0,3,2] row_mask:0xf bank_mask:0xf")
            for u in range(4):
                E(f"v_add_f32_dpp v{32+u}, v{32+u}, v{32+u} quad_perm:[2,3,0,1] row_mask:0xf bank_mask:0xf")
            E(f"""
            v_cndmask_b32 v{24+n}, v32, v33, s[62:63]
            v_cndmask_b32 v{24+n}, v{24+n}, v34, s[64:65]
            v_cndmask_b32 v{24+n}, v{24+n}, v35, s[66:67]
            """)
        stamp(4)
        E("""
        v_max3_f32 v32, v24, v25, v26
        v_max3_f32 v33, v27, v28, v29
        v_max3_f32 v32, v32, v30, v31
        v_max_f32 v32, v32, v33
        """)
        for r in (8, 4, 2, 1):
            E(f"v_max_f32_dpp v32, v32, v32 row_ror:{r} row_mask:0xf bank_mask:0xf")
        E("v_mul_f32 v36, s81, v32")
        for i in range(8):
            E(f"v_fma_f32 v{24+i}, v{24+i}, s81, -v36")
        for i in range(8):
            E(f"v_exp_f32 v{24+i}, v{24+i}")
        E("""
        v_add_f32 v32, v24, v25
        v_add_f32 v33, v26, v27
        v_add_f32 v34, v28, v29
        v_add_f32 v35, v30, v31
        v_add_f32 v32, v32, v33
        v_add_f32 v34, v34, v35
        v_add_f32 v37, v32, v34
        """)
        for i in range(0, 8, 2):
            E(f"v_cvt_pk_bf16_f32 v{40+i//2}, v{24+i}, v{25+i}")
        for r in (8, 4, 2, 1):
            E(f"v_add_f32_dpp v37, v37, v37 row_ror:{r} row_mask:0xf bank_mask:0xf")
        for i in range(0, 8, 2):
            E(f"ds_write_b16 v5, v{40+i//2} offset:{i*32}")
            E(f"ds_write_b16_d16_hi v5, v{40+i//2} offset:{(i+1)*32}")
        E(f"""
        s_lshl_b32 s73, s52, 3
        s_add_u32 s73, s73, {MLW_OFF}
        v_lshl_add_u32 v14, v0, 2, s73
        s_mov_b32 exec_lo, 0x00010001
        s_mov_b32 exec_hi, 0
        ds_write_b64 v14, v[36:37]
        s_mov_b64 exec, -1
        s_waitcnt lgkmcnt(0)
        ds_read_b128 v[12:15], v6
        """)
        ml_ids = None
        for n in range(8, 16):
            i = n - 8
            r = slot(n)
            pa = 12 if (i % 2 == 0) else 44
            pn = 44 if (i % 2 == 0) else 12
            setp(n)
            E.wait_vm(ids_[n])
            E("s_waitcnt lgkmcnt(0)")
            for half in range(2):
                for ii in range(2):
                    sreg = half * 2 + ii
                    for e in range(2):
                        dloc = ii * 2 + e
                        for jp in range(4):
                            tq = 48 + dloc * 4 + jp
                            s1 = r + (2 * jp) * 4 + sreg
                            s0 = r + (2 * jp + 1) * 4 + sreg
                            if not cfg.get("nocomp", 0): E(f"v_perm_b32 v{tq}, v{s0}, v{s1}, s{68+e}")
                if half == 1 and sched(n) is not None:
                    ids_[sched(n)] = issue(sched(n))
                for dloc in range(4):
                    d = half * 4 + dloc
                    a = 16 + 4 * d
                    c = "0" if i == 0 else f"v[{a}:{a+3}]"
                    if not cfg.get("nocomp", 0): E(f"v_mfma_f32_16x16x32_bf16 v[{a}:{a+3}], v[12:15], v[{48+dloc*4}:{51+dloc*4}], {c}")
            if i < 7:
                E(f"ds_read_b128 v[12:15], v6 offset:{(i+1)*32}")
        if cfg.get("dup", 0):
            for rep in range(cfg.get("dup")):
                for n in range(8):
                    if n >= 4 or rep: E("s_waitcnt vmcnt(24)")
                    SLs = SL[n]; SL[n] = n % 4
                    issue(n)
                    SL[n] = SLs
            E("s_waitcnt vmcnt(0)")
        stamp(5)
        E(f"""
        s_lshl_b32 s73, s52, 11
        s_add_u32 s73, s73, {MRG_OFF}
        v_lshlrev_b32 v14, 5, v0
        v_add_u32 v14, s73, v14
        """)
        for d in range(8):
            E(f"v_mov_b32 v{48+d}, v{16+4*d}")
        E("""
        ds_write_b128 v14, v[48:51]
        ds_write_b128 v14, v[52:55] offset:16
        s_waitcnt vmcnt(0) lgkmcnt(0)
        s_barrier
        """)

    main(False)
    stamp(6)
    if cfg.get("notail", 0): E.branch("s_branch L_end")
    E("s_cmp_eq_u32 s52, 7")
    E.branch("s_cbranch_scc1 L_w7tail")
    E("s_cmp_ge_u32 s52, 4")
    E.branch("s_cbranch_scc1 L_proj")
    E(f"""
    s_lshl_b32 s73, s52, 9
    s_add_u32 s73, s73, {MRG_OFF}
    v_lshl_add_u32 v14, v0, 3, s73
    s_lshr_b32 s74, s52, 1
    s_lshl_b32 s75, s74, 6
    s_add_u32 s75, s75, {MLW_OFF}
    v_mov_b32 v15, s75
    ds_read_b128 v[64:67], v15
    ds_read_b128 v[68:71], v15 offset:16
    ds_read_b128 v[72:75], v15 offset:32
    ds_read_b128 v[76:79], v15 offset:48
    """)
    for w in range(8):
        E(f"ds_read_b64 v[{24+2*w}:{25+2*w}], v14 offset:{w*2048}")
    E(f"""
    s_and_b32 s75, s52, 1
    s_lshl_b32 s75, s75, 14
    v_lshlrev_b32 v14, 12, v11
    v_lshl_add_u32 v14, v10, 4, v14
    s_lshl_b32 s73, s57, 15
    s_add_u32 s73, s73, s75
    s_lshl_b32 s75, s55, 9
    s_add_u32 s73, s73, s75
    s_lshl_b32 s75, s74, 8
    s_add_u32 s73, s73, s75
    s_add_u32 s73, s73, {H1BOX}
    v_mov_b32 v42, v8
    v_mov_b32 v43, v9
    v_mov_b32 v46, v8
    v_mov_b32 v47, v9
    s_lshl_b32 s82, s57, 11
    s_lshl_b32 s75, s55, 5
    s_add_u32 s82, s82, s75
    s_lshl_b32 s75, s74, 4
    s_add_u32 s82, s82, s75
    s_add_u32 s82, s82, {H1ML}
    v_lshlrev_b32 v15, 8, v0
    s_waitcnt lgkmcnt(8)
    v_max3_f32 v44, v64, v66, v68
    v_max3_f32 v45, v70, v72, v74
    v_max3_f32 v44, v44, v76, v78
    v_max_f32 v44, v44, v45
    """)
    for w in range(8):
        E(f"v_sub_f32 v{16+w}, v{64+2*w}, v44")
    for w in range(8):
        E(f"v_exp_f32 v{16+w}, v{16+w}")
    E("""
    s_waitcnt lgkmcnt(0)
    v_mul_f32 v40, v16, v24
    v_mul_f32 v41, v16, v25
    v_mul_f32 v45, v16, v65
    """)
    for w in range(1, 8):
        E(f"v_fmac_f32 v40, v{16+w}, v{24+2*w}")
        E(f"v_fmac_f32 v41, v{16+w}, v{25+2*w}")
        E(f"v_fmac_f32 v45, v{16+w}, v{65+2*w}")
    H1ST = cfg.get("h1st", "sc1").replace("+", " ")
    def h1_stores(pol):
        E(f"buffer_store_dwordx4 v[40:43], v14, s[36:39], s73 offen {pol}")
        E(f"""
        s_mov_b64 exec, 0xff
        buffer_store_dwordx4 v[44:47], v15, s[36:39], s82 offen {pol}
        s_mov_b64 exec, -1
        """)
    if cfg.get("xf", 0):
        E("s_cmp_eq_u32 s85, 2")
        E.branch("s_cbranch_scc1 L_h1loc")
        h1_stores(H1ST)
        E.branch("s_branch L_h1done")
        E.label("L_h1loc")
        h1_stores("")
        E.label("L_h1done")
    else:
        h1_stores(H1ST)
    stamp(12)
    E.label("L_proj")
    E(f"""
    v_lshrrev_b32 v12, 2, v10
    v_and_b32 v13, 3, v10
    v_lshl_add_u32 v14, v11, 3, v12
    v_mul_u32_u24 v14, 896, v14
    v_lshl_add_u32 v14, v13, 3, v14
    s_lshl_b32 s73, s52, 7
    v_add_u32 v14, s73, v14
    v_lshlrev_b32 v15, 4, v11
    v_add_u32 v15, {COEF_OFF}, v15
    ds_read_b128 v[120:123], v15 offset:128
    """)
    cnt = 1
    for ks in (2, 0, 1):
        for ct in range(4):
            q = 64 + (ks * 4 + ct) * 4
            E(f"ds_read_b64_tr_b16 v[{q}:{q+1}], v14 offset:{ks*28672+ct*32}")
            E(f"ds_read_b64_tr_b16 v[{q+2}:{q+3}], v14 offset:{ks*28672+ct*32+3584}")
        E("s_waitcnt lgkmcnt(0)")
    if cfg.get("skipx", 0):
        for r_ in range(16): E(f"v_mov_b32 v{128+r_}, 0")
        E("s_cmp_ge_u32 s91, 56")
        E.branch("s_cbranch_scc1 L_noffn")
    for ct in range(4):
        q = 64 + (2 * 4 + ct) * 4
        E(f"v_mfma_f32_16x16x32_bf16 v[{128+4*ct}:{131+4*ct}], v[{q}:{q+3}], v[120:123], 0")
    if cfg.get("skipx", 0): E.label("L_noffn")
    E(f"""
    v_lshrrev_b32 v12, 1, v11
    v_lshlrev_b32 v12, 12, v12
    v_and_b32 v13, 1, v11
    v_lshl_add_u32 v12, v13, 5, v12
    v_lshl_add_u32 v12, v10, 4, v12
    s_mul_i32 s73, s54, {56*4096}
    s_lshl_b32 s74, s58, 6
    s_add_u32 s73, s73, s74
    s_lshl_b32 s74, s52, 15
    s_add_u32 s73, s73, s74
    s_add_u32 s73, s73, {H2BOX}
    s_mov_b32 s76, 0x00020002
    s_mov_b32 s77, 0x00020002
    """)
    for ct in range(4):
        E(f"v_mov_b32 v{146+4*ct}, v8")
        E(f"v_mov_b32 v{147+4*ct}, v9")
    E("s_barrier")
    stamp(8)
    E("""
    ds_read_b128 v[112:115], v15
    ds_read_b128 v[116:119], v15 offset:64
    s_waitcnt lgkmcnt(0)
    """)
    for ks in range(2):
        for ct in range(4):
            q = 64 + (ks * 4 + ct) * 4
            E(f"v_mfma_f32_16x16x32_bf16 v[{128+4*ct}:{131+4*ct}], v[{q}:{q+3}], v[{112+4*ks}:{115+4*ks}], v[{128+4*ct}:{131+4*ct}]")
    for ct in range(4):
        E(f"v_cndmask_b32 v{144+4*ct}, v{128+4*ct}, v{130+4*ct}, s[76:77]")
        E(f"v_cndmask_b32 v{145+4*ct}, v{129+4*ct}, v{131+4*ct}, s[76:77]")
    E("""
    s_mov_b32 exec_lo, 0x00030003
    s_mov_b32 exec_hi, 0x00030003
    """)
    for ct in range(4):
        E(f"s_add_u32 s74, s73, {ct*8192}")
        E(f"buffer_store_dwordx4 v[{144+4*ct}:{147+4*ct}], v12, s[36:39], s74 offen {cfg.get('h2st', 'sc1').replace('+', ' ')}")
    E.branch("s_branch L_end")

    E.label("L_w7tail")
    E(f"""
    s_lshl_b32 s73, s57, 3
    s_add_u32 s73, s73, s55
    s_lshl_b32 s82, s73, 8
    s_add_u32 s82, s82, {H1ML}
    s_lshl_b32 s73, s73, 12
    s_add_u32 s73, s73, {H1BOX}
    v_mov_b32 v15, {G_OFF}
    ds_read_b32 v40, v15
    v_and_b32 v14, 31, v0
    v_lshlrev_b32 v14, 2, v14
    v_add_u32 v14, {COEF_OFF}, v14
    v_lshlrev_b32 v13, 4, v11
    s_mov_b32 s80, 0
    """)
    def h1_load(i, r):
        H1LD = cfg.get("h1ld", "sc1").replace("+", " ")
        if i < 4: return f"buffer_load_dwordx4 v[{r}:{r+3}], v3, s[36:39], s73 offen offset:{i*1024} {H1LD}"
        return f"buffer_load_dwordx4 v[{r}:{r+3}], v13, s[36:39], s82 offen offset:{(i-4)*64} {H1LD}"
    poll_pipe("L_h1", 8, h1_load, None, 128, 64, nsets=NPS, sleep=cfg.get("psl", 4))
    stamp(7)
    if PROF:
        E("v_writelane_b32 v7, s80, 13")
    E(f"""
    v_max3_f32 v96, v80, v84, v88
    v_max_f32 v96, v96, v92
    v_mov_b32 v97, v96
    v_permlane32_swap_b32 v96, v97
    v_max_f32 v96, v96, v97
    v_sub_f32 v80, v80, v96
    v_sub_f32 v84, v84, v96
    v_sub_f32 v88, v88, v96
    v_sub_f32 v92, v92, v96
    v_exp_f32 v80, v80
    v_exp_f32 v84, v84
    v_exp_f32 v88, v88
    v_exp_f32 v92, v92
    v_mul_f32 v98, v80, v81
    v_mul_f32 v64, v80, v64
    v_mul_f32 v65, v80, v65
    v_fmac_f32 v98, v84, v85
    v_fmac_f32 v64, v84, v68
    v_fmac_f32 v65, v84, v69
    v_fmac_f32 v98, v88, v89
    v_fmac_f32 v64, v88, v72
    v_fmac_f32 v65, v88, v73
    v_fmac_f32 v98, v92, v93
    v_fmac_f32 v64, v92, v76
    v_fmac_f32 v65, v92, v77
    v_mov_b32 v99, v98
    v_mov_b32 v66, v64
    v_mov_b32 v67, v65
    v_permlane32_swap_b32 v98, v99
    v_permlane32_swap_b32 v64, v66
    v_permlane32_swap_b32 v65, v67
    v_add_f32 v98, v98, v99
    v_add_f32 v64, v64, v66
    v_add_f32 v65, v65, v67
    v_rcp_f32 v98, v98
    s_waitcnt lgkmcnt(0)
    v_mul_f32 v98, v40, v98
    v_mul_f32 v64, v98, v64
    v_mul_f32 v65, v98, v65
    v_cvt_pk_bf16_f32 v64, v64, v65
    ds_write_b32 v14, v64
    s_waitcnt lgkmcnt(0)
    s_barrier
    s_cmp_ge_u32 s91, 56
    """)
    E.branch("s_cbranch_scc1 L_end")
    E(f"""
    s_mul_i32 s73, s54, 56
    s_add_u32 s73, s73, s91
    s_lshl_b32 s73, s73, 12
    s_add_u32 s73, s73, {H2BOX}
    s_mov_b32 s48, s22
    s_mov_b32 s49, s23
    s_mov_b32 s50, 3584
    s_mul_i32 s74, s54, 896
    s_lshl_b32 s75, s91, 4
    s_add_u32 s74, s74, s75
    v_lshlrev_b32 v14, 2, v0
    s_mov_b32 s80, 0
    """)
    poll_pipe("L_h2", 4, lambda i, r: f"buffer_load_dwordx4 v[{r}:{r+3}], v3, s[36:39], s73 offen offset:{i*1024} {cfg.get('h2ld', 'sc1').replace('+', ' ')}",
              None, 128, 64, nsets=NPS, sleep=cfg.get("psl", 4))
    E("""
    v_add_f32 v64, v64, v68
    v_add_f32 v65, v65, v69
    v_add_f32 v72, v72, v76
    v_add_f32 v73, v73, v77
    v_add_f32 v64, v64, v72
    v_add_f32 v65, v65, v73
    """)
    stamp(9)
    if PROF:
        E("v_writelane_b32 v7, s80, 14")
    for rr in (4, 8):
        E(f"v_add_f32_dpp v64, v64, v64 row_ror:{rr} row_mask:0xf bank_mask:0xf")
        E(f"v_add_f32_dpp v65, v65, v65 row_ror:{rr} row_mask:0xf bank_mask:0xf")
    E(f"""
    v_mov_b32 v66, v64
    v_mov_b32 v67, v65
    v_permlane16_swap_b32 v64, v66
    v_permlane16_swap_b32 v65, v67
    v_add_f32 v64, v64, v66
    v_add_f32 v65, v65, v67
    v_mov_b32 v66, v64
    v_mov_b32 v67, v65
    v_permlane32_swap_b32 v64, v66
    v_permlane32_swap_b32 v65, v67
    v_add_f32 v64, v64, v66
    v_add_f32 v65, v65, v67
    v_cvt_pk_bf16_f32 v64, v64, v65
    s_mov_b64 exec, 15
    buffer_store_dword v64, v14, s[48:51], s74 offen
    s_cmp_lg_u32 s2, 0
    """)
    E.branch("s_cbranch_scc1 L_end")
    E("""
    s_mov_b64 exec, 1
    buffer_store_dwordx2 v[8:9], v14, s[36:39], 0 offen sc1
    """)
    E.label("L_end")
    if PROF:
        stamp(10)
        E(f"""
        s_mov_b64 exec, 0xffff
        s_lshl_b32 s73, s2, 3
        s_add_u32 s73, s73, s52
        s_lshl_b32 s73, s73, 6
        s_add_u32 s73, s73, 0x300000
        v_lshlrev_b32 v14, 2, v0
        buffer_store_dword v7, v14, s[36:39], s73 offen
        """)
        if PROF == 2:
            E("""
            v_readlane_b32 s73, v7, 0
            s_not_b32 s73, s73
            v_writelane_b32 v7, s73, 0
            s_mov_b32 s48, s24
            s_mov_b32 s49, s25
            s_mov_b32 s50, 64
            s_mov_b32 s51, 0x20000
            s_cmp_lg_u32 s52, 7
            """)
            E.branch("s_cbranch_scc1 L_exit")
            E("""
            s_mov_b64 exec, 0x6e1
            buffer_atomic_umax v7, v14, s[48:51], 0 offen
            """)
    E.label("L_exit")
    E.raw("    s_endpgm")
    E.raw(f""".section .rodata,"a"
.p2align 6
.amdhsa_kernel {KNAME}
  .amdhsa_next_free_vgpr 256
  .amdhsa_next_free_sgpr 102
  .amdhsa_accum_offset 256
  .amdhsa_group_segment_fixed_size 0
  .amdhsa_kernarg_size 96
  .amdhsa_user_sgpr_count 2
  .amdhsa_user_sgpr_kernarg_segment_ptr 1
  .amdhsa_system_sgpr_workgroup_id_x 1
.end_amdhsa_kernel""")
    return E.text()

if __name__ == "__main__":
    out = sys.argv[1] if len(sys.argv) > 1 else "k1.s"
    cfg = {}
    for a in sys.argv[2:]:
        k, v = a.split("=")
        cfg[k] = int(v) if v.lstrip("-").isdigit() else v
    open(out, "w").write(gen(cfg))
```
